```python
import torch

def _softmax(x, axis=-1):
    return torch.softmax(x, dim=axis)
def _gelu(x):
    return torch.nn.functional.gelu(x, approximate="tanh")
def _silu(x):
    return torch.nn.functional.silu(x)
def _sigmoid(x):
    return torch.sigmoid(x)
def _layernorm(x, axis=-1, eps=1e-5):
    m = x.mean(dim=axis, keepdim=True)
    v = x.var(dim=axis, keepdim=True, unbiased=False)
    return (x - m) / torch.sqrt(v + eps)
def _scatter_add(tgt, idx, src, axis=0):
    return tgt.clone().index_add_(axis, idx, src)
def _segment_sum(src, seg, n):
    out = torch.zeros((n,) + src.shape[1:], dtype=src.dtype)
    return out.index_add_(0, seg, src)
def _pad(x, pw):
    flat = tuple(v for pair in reversed(pw) for v in pair)
    return torch.nn.functional.pad(x, flat)

kernel_name = 'gated_mix__grouped_kv_mqa__geglu_ffn__prompt'

def setup_inputs():

    _w = (lambda a: (lambda t: t.to(torch.bfloat16) if t.is_floating_point() else t)(torch.as_tensor(a)))
    def _A_setup():
        B, S, D, H = 1, 2048, 640, 32
        Dh = D // H
        return {
            "x": _w((lambda *s: torch.randn(*s, dtype=torch.bfloat16) * 0.05)(B, S, D)),
            "wq": _w((lambda *s: torch.randn(*s, dtype=torch.bfloat16) * 0.8)(D, H * Dh)),
            "wk": _w((lambda *s: torch.randn(*s, dtype=torch.bfloat16) * 0.8)(D, Dh)),
            "wv": _w((lambda *s: torch.randn(*s, dtype=torch.bfloat16) * 0.05)(D, Dh)),
            "wo": _w((lambda *s: torch.randn(*s, dtype=torch.bfloat16) * 0.05)(H * Dh, D)),
        }
    _A_in = _A_setup()

    def _B_setup():
        B, S, D, F = 1, 2048, 640, 1728
        return {
            "x": _w((lambda *s: torch.randn(*s, dtype=torch.bfloat16) * 0.05)(B, S, D)),
            "w_gate": _w((lambda *s: torch.randn(*s, dtype=torch.bfloat16) * 0.05)(D, F)),
            "w_up": _w((lambda *s: torch.randn(*s, dtype=torch.bfloat16) * 0.05)(D, F)),
            "w_down": _w((lambda *s: torch.randn(*s, dtype=torch.bfloat16) * 0.05)(F, D)),
        }
    _B_in = _B_setup()

    return {
        "A_x": _A_in["x"],
        "A_wq": _A_in["wq"],
        "A_wk": _A_in["wk"],
        "A_wv": _A_in["wv"],
        "A_wo": _A_in["wo"],
        "B_x": _B_in["x"],
        "B_w_gate": _B_in["w_gate"],
        "B_w_up": _B_in["w_up"],
        "B_w_down": _B_in["w_down"],
        "gate_w": _w((lambda *s: torch.randn(*s, dtype=torch.bfloat16) * 0.05)(640) * 16.0),
    }

def reference(A_x, A_wq, A_wk, A_wv, A_wo, B_x, B_w_gate, B_w_up, B_w_down, gate_w):
    def _A_ref(x, wq, wk, wv, wo):
        B, S, D = x.shape
        H = 32
        Dh = D // H
        q = (lambda x, *d: x.permute(*d))((x @ wq).reshape(B, S, H, Dh), 0, 2, 1, 3)
        k = x @ wk
        v = x @ wv
        scores = torch.einsum("bhqd,bkd->bhqk", q, k) * (Dh ** -0.5)
        p = _softmax(scores, axis=-1)
        o = torch.einsum("bhqk,bkd->bhqd", p, v)
        return (lambda x, *d: x.permute(*d))(o, 0, 2, 1, 3).reshape(B, S, H * Dh) @ wo

    def _B_ref(x, w_gate, w_up, w_down):
        return (_gelu(x @ w_gate) * (x @ w_up)) @ w_down

    x = A_x
    g = _sigmoid((x * gate_w).sum(-1, keepdims=True))
    a = _A_ref(x, A_wq, A_wk, A_wv, A_wo)
    b = _B_ref(x, B_w_gate, B_w_up, B_w_down)
    return g * a + (1 - g) * b
```

```python
import re

TRANS = ('v_exp_f32','v_log_f32','v_rcp_f32','v_rsq_f32','v_sqrt_f32','v_sin_f32','v_cos_f32','v_exp_f16','v_rcp_f16','v_rcp_iflag_f32','v_log_f16','v_rsq_f16','v_sqrt_f16')

def parse_reg(tok):
    tok = tok.strip()
    neg = tok.startswith('-')
    if neg: tok = tok[1:]
    m = re.match(r'^(?:abs\()?\|?([vsa])(\d+)\|?\)?$', tok)
    if m: return [(m.group(1), int(m.group(2)))]
    m = re.match(r'^(?:abs\()?([vsa])\[(\d+):(\d+)\]\)?$', tok)
    if m: return [(m.group(1), i) for i in range(int(m.group(2)), int(m.group(3))+1)]
    if tok == 'vcc': return [('vcc',0),('vcc',1)]
    if tok == 'vcc_lo': return [('vcc',0)]
    if tok == 'vcc_hi': return [('vcc',1)]
    if tok == 'exec': return [('exec',0),('exec',1)]
    if tok == 'exec_lo': return [('exec',0)]
    if tok == 'exec_hi': return [('exec',1)]
    if tok == 'm0': return [('m0',0)]
    if tok == 'scc': return [('scc',0)]
    return []

class Ins:
    __slots__ = ('text','op','ops','mods','dst','src','cls','passes','srcC','srcAB','label','target','nop','wide','lds_dma','dpp','sdwa','vm','lgkm','comment','wait')
    def __init__(self, text):
        self.text = text
        self.label = None; self.target = None; self.nop = 0; self.wide = False; self.lds_dma = False
        self.dpp = False; self.sdwa = False; self.vm = False; self.lgkm = False; self.passes = 0
        self.srcC = []; self.srcAB = []; self.dst = []; self.src = []; self.cls = 'other'; self.wait = None
        t = text.split(';')[0].strip()
        if t.endswith(':'):
            self.label = t[:-1]; self.cls = 'label'; self.op = ''; return
        if t.startswith('.') or t == '':
            self.cls = 'directive'; self.op = ''; return
        parts = t.split(None, 1)
        op = parts[0]; self.op = op
        rest = parts[1] if len(parts) > 1 else ''
        toks = []; depth = 0; cur = ''
        for ch in rest:
            if ch in '[(': depth += 1
            if ch in '])': depth -= 1
            if ch == ',' and depth == 0: toks.append(cur.strip()); cur = ''
            else: cur += ch
        if cur.strip(): toks.append(cur.strip())
        mods = []
        if toks:
            sp = []; depth = 0; cur = ''
            for ch in toks[-1]:
                if ch in '[(': depth += 1
                if ch in '])': depth -= 1
                if ch == ' ' and depth == 0:
                    if cur: sp.append(cur); cur = ''
                else: cur += ch
            if cur: sp.append(cur)
            toks[-1] = sp[0]; mods = sp[1:]
        self.ops = toks; self.mods = mods
        R = [parse_reg(x) for x in toks]
        base = re.sub(r'_(e32|e64|dpp|sdwa)$', '', op)
        if op.endswith('_dpp') or any(m.startswith(('row_','quad_perm','wave_')) for m in mods): self.dpp = True
        if op.endswith('_sdwa') or any(m.startswith('op_sel') for m in mods): self.sdwa = True
        if op == 's_nop':
            self.cls = 'nop'; self.nop = int(toks[0], 0) + 1; return
        if op == 's_waitcnt':
            self.cls = 'wait'
            w = {}
            for m in re.finditer(r'(vmcnt|lgkmcnt|expcnt)\((\d+)\)', rest): w[m.group(1)] = int(m.group(2))
            self.wait = w; return
        if op in ('s_branch','s_cbranch_scc0','s_cbranch_scc1','s_cbranch_vccz','s_cbranch_vccnz','s_cbranch_execz','s_cbranch_execnz'):
            self.cls = 'branch'; self.target = toks[0]
            if 'vcc' in op: self.src = [('vcc',0),('vcc',1)]
            return
        if op in ('s_endpgm',): self.cls = 'end'; return
        if op in ('s_barrier','s_setprio','s_sleep','s_sethalt','s_inst_prefetch','s_setreg_b32','s_setreg_imm32_b32','buffer_wbl2','buffer_inv'):
            self.cls = 'salu'
            if op in ('buffer_wbl2','buffer_inv'): self.cls = 'vmem'; self.vm = True
            return
        if op.startswith('s_load') or op.startswith('s_buffer_load') or op in ('s_memtime','s_memrealtime'):
            self.cls = 'smem'; self.dst = R[0]; self.src = sum(R[1:], []); self.lgkm = True; return
        if op.startswith('s_'):
            self.cls = 'salu'
            if op.startswith('s_cmp') or op.startswith('s_bitcmp'):
                self.src = sum(R, [])
            else:
                self.dst = list(R[0]) if R else []; self.src = sum(R[1:], [])
                if 'saveexec' in op: self.dst += [('exec',0),('exec',1)]; self.src += [('exec',0),('exec',1)]
                if op in ('s_addk_i32','s_mulk_i32'): self.src += R[0]
            return
        if op.startswith('v_mfma'):
            self.cls = 'mfma'
            self.dst = R[0]; self.srcAB = R[1] + R[2]; self.srcC = R[3]; self.src = self.srcAB + self.srcC
            if '32x32' in op: self.passes = 8
            elif '16x16' in op: self.passes = 4
            else: raise ValueError(op)
            return
        if op.startswith('v_'):
            self.cls = 'trans' if base in TRANS else 'valu'
            if base.startswith('v_cmp'):
                self.dst = R[0]; self.src = sum(R[1:], [])
                if base.startswith('v_cmpx'): self.dst = self.dst + [('exec',0),('exec',1)]
            elif base in ('v_add_co_u32','v_sub_co_u32','v_subrev_co_u32'):
                self.dst = R[0] + R[1]; self.src = sum(R[2:], [])
            elif base in ('v_addc_co_u32','v_subb_co_u32'):
                self.dst = R[0] + R[1]; self.src = sum(R[2:], [])
            elif base.startswith('v_permlane') and 'swap' in base:
                self.dst = R[0] + R[1]; self.src = R[0] + R[1]
            elif base in ('v_fmac_f32','v_dot2c_f32_bf16','v_pk_fmac_f16','v_fmac_f16','v_writelane_b32'):
                self.dst = R[0]; self.src = sum(R, [])
            elif base == 'v_nop':
                pass
            else:
                self.dst = R[0]; self.src = sum(R[1:], [])
                if any('PRESERVE' in m for m in mods): self.src += R[0]
                if base == 'v_cndmask_b32' and len(toks) == 3: self.src += [('vcc',0),('vcc',1)]
            return
        if op.startswith('ds_'):
            self.cls = 'ds'; self.lgkm = True
            if op.startswith('ds_read') or op.startswith('ds_bpermute') or op.startswith('ds_permute') or op.startswith('ds_swizzle') or '_rtn' in op:
                self.dst = R[0]; self.src = sum(R[1:], [])
            else:
                self.src = sum(R, [])
            return
        if op.startswith('buffer_') or op.startswith('global_'):
            self.cls = 'vmem'; self.vm = True
            allm = mods + toks
            if 'lds' in mods or '_lds_' in op:
                self.lds_dma = True; self.src = sum(R, []) + [('m0',0)]
            elif 'store' in op or ('atomic' in op and 'sc0' not in mods):
                self.src = sum(R, [])
                if op.endswith('x4') or op.endswith('x3'):
                    self.wide = True
            else:
                self.dst = R[0]; self.src = sum(R[1:], [])
                if 'd16' in op: self.src += R[0]
            return
        raise ValueError("unknown instruction: " + text)
    def store_data(self):
        if self.op.startswith('buffer_'): return parse_reg(self.ops[0])
        return parse_reg(self.ops[1])

def is_valu(i): return i.cls in ('valu','trans')

def need_states(p, c):
    n = 0
    pd = set(p.dst); cs = set(c.src); cd = set(c.dst)
    if is_valu(p):
        vd = {r for r in pd if r[0] in 'va'}
        sd = {r for r in pd if r[0] in ('s','vcc')}
        if c.cls == 'mfma' and vd & cs: n = max(n, 2)
        if p.cls == 'trans' and c.cls in ('valu','vmem','ds','trans') and vd & cs: n = max(n, 1)
        if p.sdwa and is_valu(c) and vd & (cs | cd): n = max(n, 1)
        if is_valu(c):
            if sd & cs:
                n = max(n, 4 if c.op.startswith(('v_readlane','v_writelane')) else 2)
                if c.op.startswith('v_div_fmas'): n = max(n, 4)
            if c.op.startswith(('v_readlane','v_readfirstlane')) and vd & cs: n = max(n, 1)
            if c.dpp and vd & cs: n = max(n, 2)
            if c.op.startswith('v_permlane') and vd & cs: n = max(n, 2)
        if p.op.startswith('v_dot'):
            if c.op == p.op:
                ab = set(sum([parse_reg(x) for x in c.ops[1:3]], []))
                if vd & ab: n = max(n, 3)
            elif vd & (cs | cd): n = max(n, 3)
        if c.cls == 'vmem' and sd & cs: n = max(n, 5)
        if c.cls == 'salu' and sd & cs: n = max(n, 1)
        if c.cls == 'branch' and sd & cs: n = max(n, 5 if False else 1)
        if ('exec',0) in pd:
            if c.cls == 'mfma' or c.op.startswith(('v_readlane','v_readfirstlane','v_writelane','v_permlane')): n = max(n, 4)
            if c.dpp: n = max(n, 5)
    if p.cls == 'mfma':
        ps = p.passes
        big = {4: 8, 8: 12}[ps]
        if c.cls == 'mfma':
            cC = set(c.srcC)
            if pd & set(c.srcAB): n = max(n, big)
            if pd & cC:
                if not (p.dst == c.srcC and c.passes == ps): n = max(n, ps + 2)
            if pd & cd and not (pd & cC): n = max(n, ps + 2)
        elif is_valu(c):
            if pd & (cs | cd): n = max(n, big)
            if set(p.srcC) & cd: n = max(n, {4: 3, 8: 7}[ps])
        elif c.cls in ('vmem','ds'):
            if pd & (cs | cd): n = max(n, big)
            if set(p.srcC) & cd: n = max(n, {4: 3, 8: 7}[ps])
    if p.cls == 'vmem' and p.wide:
        sdat = set(p.store_data())
        if sdat & cd: n = max(n, 2 if is_valu(c) else 1)
    if p.cls == 'ds' and p.op in ('ds_write_b128','ds_write_b96'):
        sdat = set(parse_reg(p.ops[1]))
        if sdat & cd: n = max(n, 2 if is_valu(c) else 1)
    if p.cls == 'salu' and ('m0',0) in pd and (c.lds_dma or 'addtid' in c.op): n = max(n, 1)
    return n

MAXW = 13
class Asm:
    def __init__(self):
        self.ins = []
        self.uid = 0
    def __call__(self, text):
        for line in text.split('\n'):
            line = line.strip()
            if not line: continue
            self.ins.append(Ins(line))
    def label(self, name): self.ins.append(Ins(name + ':'))
    def newlabel(self, base='L'):
        self.uid += 1
        return f"{base}_{self.uid}"
    def insert_nops(self):
        out = []
        for c in self.ins:
            if c.cls in ('label','directive'):
                out.append(c); continue
            need = 0; dist = 0
            for p in reversed(out):
                if p.cls in ('label','directive'): continue
                if p.cls == 'end' or (p.cls == 'branch' and p.op == 's_branch'): break
                n = need_states(p, c)
                if n > dist: need = max(need, n - dist)
                dist += p.nop if p.cls == 'nop' else 1
                if dist >= MAXW: break
            while need > 0:
                k = min(need, 16)
                out.append(Ins(f"s_nop {k-1}"))
                need -= k
            out.append(c)
        self.ins = out
    def verify(self, entry, max_paths=200000):
        idx = {i.label: k for k, i in enumerate(self.ins) if i.label}
        errs = []
        seen = set()
        stack = [(idx[entry], (), (), (), frozenset())]
        steps = 0
        while stack:
            pc, win, vmq, lgq, taken = stack.pop()
            while True:
                steps += 1
                if steps > 5_000_000: raise RuntimeError("verify: too many steps")
                if pc >= len(self.ins): errs.append("fell off end"); break
                c = self.ins[pc]
                if c.cls in ('directive',): pc += 1; continue
                if c.cls == 'label':
                    key = (pc, win, vmq, lgq)
                    if key in seen: break
                    seen.add(key); pc += 1; continue
                dist = 0
                for pk in reversed(win):
                    p = self.ins[pk]
                    n = need_states(p, c)
                    if n > dist: errs.append(f"HAZARD need {n} have {dist}: [{p.text}] -> [{c.text}]")
                    dist += p.nop if p.cls == 'nop' else 1
                    if dist >= MAXW: break
                touched = set(c.src) | set(c.dst)
                for q, nm in ((vmq,'vm'),(lgq,'lgkm')):
                    for pk in q:
                        p = self.ins[pk]
                        if set(p.dst) & touched:
                            if (nm == 'lgkm' and c.cls == 'ds' and p.cls == 'ds' and not (set(p.dst) & set(c.src))): continue
                            if (nm == 'vm' and c.cls == 'vmem' and not (set(p.dst) & set(c.src))): continue
                            errs.append(f"WAITCNT({nm}) missing: [{p.text}] -> [{c.text}]")
                if c.cls == 'wait':
                    if 'vmcnt' in c.wait:
                        n = c.wait['vmcnt']; vmq = vmq[len(vmq)-n:] if n < len(vmq) else vmq
                        if n == 0: vmq = ()
                    if 'lgkmcnt' in c.wait:
                        n = c.wait['lgkmcnt']
                        if any(self.ins[k].cls == 'smem' for k in lgq):
                            if n == 0: lgq = ()
                        else:
                            lgq = lgq[len(lgq)-n:] if n < len(lgq) else lgq
                            if n == 0: lgq = ()
                if c.vm: vmq = (vmq + (pc,))[-64:]
                if c.lgkm: lgq = (lgq + (pc,))[-40:]
                win = (win + (pc,))[-MAXW:]
                if c.cls == 'end': break
                if c.cls == 'branch':
                    t = idx[c.target]
                    if c.op == 's_branch': pc = t; continue
                    stack.append((t, win, vmq, lgq, taken))
                    pc += 1; continue
                pc += 1
        u = []
        for e in errs:
            if e not in u: u.append(e)
        return u
    def text(self):
        out = []
        for i in self.ins:
            if i.cls in ('label','directive'): out.append(i.text)
            else: out.append('  ' + i.text)
        return '\n'.join(out) + '\n'

def kd(name, vgpr, sgpr=102, accum=None):
    if accum is None: accum = (vgpr + 3)//4*4
    return f""".p2align 6
.amdhsa_kernel {name}
  .amdhsa_next_free_vgpr {vgpr}
  .amdhsa_next_free_sgpr {sgpr}
  .amdhsa_accum_offset {accum}
  .amdhsa_group_segment_fixed_size 0
  .amdhsa_kernarg_size 104
  .amdhsa_user_sgpr_count 2
  .amdhsa_user_sgpr_kernarg_segment_ptr 1
  .amdhsa_system_sgpr_workgroup_id_x 1
.end_amdhsa_kernel
"""
```

```python
from asmlib import *
from layout import *

def srd(a, d, base, size):
    a(f"s_mov_b32 s{d}, s{base}")
    a(f"s_and_b32 s{d+1}, s{base+1}, 0xffff")
    a(f"s_mov_b32 s{d+2}, {size}")
    a(f"s_mov_b32 s{d+3}, 0x20000")

class VMQ:
    def __init__(self): self.q = []
    def issue(self, tag): self.q.append(tag)
    def wait(self, a, tag, extra=''):
        last = max(i for i, t in enumerate(self.q) if t == tag)
        n = len(self.q) - 1 - last
        assert n <= 63
        a(f"s_waitcnt vmcnt({n}){extra}")
        self.q = self.q[last+1:]
    def copy(self):
        v = VMQ(); v.q = list(self.q); return v

L_X = 0
L_W = 98304
L_S = 147456
K1_LDS = 163840

STAMP = False
def gen_k1(a, name='k1_kernel'):
    vST = 175
    def stamp(i):
        if not STAMP: return
        a("s_memtime s[92:93]")
        a("s_waitcnt lgkmcnt(0)")
        a(f"v_writelane_b32 v{vST}, s92, {i}")
    def stamp_out():
        if not STAMP: return
        stamp(63)
        a("s_memrealtime s[92:93]")
        a("s_waitcnt lgkmcnt(0)")
        a(f"v_writelane_b32 v{vST}, s92, 61")
        a("s_lshl_b32 s92, s2, 3")
        a("s_add_u32 s92, s92, s3")
        a("s_lshl_b32 s92, s92, 8")
        a(f"s_add_u32 s92, s92, {WS_END}")
        a("v_lshlrev_b32 v174, 2, v11")
        a(f"buffer_store_dword v{vST}, v174, s[20:23], s92 offen")
    vXA = [1,2,3,4]; vWA = 5; vKA = 6; vXD = [7,8]; vWD = 9; vL16 = 10; vLane = 11; vT = [12,13,14,15,16,17,18,19]
    FX = lambda b,t: 24 + b*8 + t*4
    FW = lambda b,p: 40 + b*8 + p*4
    FK = lambda b: 56 + b*4
    ACC = lambda p,t: 64 + (p*2+t)*16
    JACC = 128
    TMP = 144
    sW = 3
    sRB = 4; sCT = 5
    SX = 8; SA = 12; SB = 16; SWS = 20; SK = 24; SV = 28; SR = 32
    sXoff = 40; sWoff = 41; sLdw = 42; sM0x = 43; sM0w = 44; sT0 = 45; sT1 = 46; sT2 = 47; sT3=48; sWstep = 49; sP = 50; sKoff = 51; sM0k = 52; sExecK=54
    sWoffB = 56
    a(f".p2align 8\n.globl {name}\n.type {name},@function")
    a.label(name)
    a(f"s_cmp_ge_u32 s2, 256")
    a(f"s_cbranch_scc1 {name}_end")
    a("s_load_dwordx4 s[60:63], s[0:1], 0")
    a("s_load_dwordx4 s[64:67], s[0:1], 16")
    a("s_load_dwordx2 s[68:69], s[0:1], 32")
    a("s_load_dwordx4 s[72:75], s[0:1], 48")
    a("s_load_dwordx4 s[76:79], s[0:1], 64")
    a("s_load_dwordx2 s[80:81], s[0:1], 96")
    if STAMP:
        a("s_memtime s[94:95]")
        a("s_memrealtime s[96:97]")
    a(f"v_lshrrev_b32 v{vT[0]}, 6, v0")
    a(f"v_and_b32 v{vLane}, 63, v0")
    a(f"v_readfirstlane_b32 s{sW}, v{vT[0]}")
    a(f"s_and_b32 s{sT0}, s2, 7")
    a(f"s_lshr_b32 s{sT1}, s2, 3")
    a(f"s_and_b32 s{sRB}, s{sT0}, 1")
    a(f"s_lshl_b32 s{sRB}, s{sRB}, 2")
    a(f"s_and_b32 s{sT2}, s{sT1}, 3")
    a(f"s_add_u32 s{sRB}, s{sRB}, s{sT2}")
    a(f"s_lshr_b32 s{sCT}, s{sT0}, 1")
    a(f"s_lshl_b32 s{sCT}, s{sCT}, 3")
    a(f"s_lshr_b32 s{sT2}, s{sT1}, 2")
    a(f"s_add_u32 s{sCT}, s{sCT}, s{sT2}")
    L = vLane
    t0,t1,t2,t3,t4,t5 = vT[:6]
    a(f"v_lshlrev_b32 v{vL16}, 4, v{L}")
    a(f"v_lshrrev_b32 v{t0}, 3, v{L}")
    a(f"v_and_b32 v{t1}, 7, v{L}")
    a(f"v_lshrrev_b32 v{t2}, 1, v{t0}")
    a(f"v_xor_b32 v{t3}, v{t1}, v{t2}")
    a(f"v_mul_u32_u24 v{t4}, 1280, v{t0}")
    a(f"v_lshl_add_u32 v{vXD[0]}, v{t3}, 4, v{t4}")
    a(f"v_xor_b32 v{t3}, 4, v{t3}")
    a(f"v_lshl_add_u32 v{vXD[1]}, v{t3}, 4, v{t4}")
    a(f"v_add_u32 v{vXD[1]}, {8*1280}, v{vXD[1]}")
    a(f"v_and_b32 v{t3}, 1, v{t2}")
    a(f"v_lshlrev_b32 v{t3}, 2, v{t3}")
    a(f"v_xor_b32 v{t3}, v{t3}, v{t1}")
    a(f"v_lshlrev_b32 v{vWD}, 4, v{t3}")
    a(f"v_and_b32 v{t1}, 31, v{L}")
    a(f"v_lshrrev_b32 v{t2}, 5, v{L}")
    a(f"v_bfe_u32 v{t3}, v{L}, 1, 3")
    a(f"v_xor_b32 v{t3}, v{t3}, v{t2}")
    a(f"v_lshlrev_b32 v{t3}, 4, v{t3}")
    a(f"v_lshl_add_u32 v{t3}, v{t1}, 7, v{t3}")
    a(f"s_lshr_b32 s{sT0}, s{sW}, 1")
    a(f"s_mul_i32 s{sT0}, s{sT0}, 24576")
    a(f"v_add_u32 v{vXA[0]}, s{sT0}, v{t3}")
    for s in range(1,4):
        a(f"v_xor_b32 v{vXA[s]}, {32*s}, v{vXA[0]}")
    a(f"v_bfe_u32 v{t1}, v{L}, 2, 2")
    a(f"v_and_b32 v{t3}, 3, v{L}")
    a(f"v_bfe_u32 v{t4}, v{L}, 4, 1")
    a(f"v_lshlrev_b32 v{t3}, 3, v{t3}")
    a(f"v_lshl_add_u32 v{t3}, v{t4}, 5, v{t3}")
    a(f"v_lshrrev_b32 v{t4}, 1, v{t1}")
    a(f"s_and_b32 s{sT0}, s{sW}, 1")
    a(f"v_xor_b32 v{t4}, s{sT0}, v{t4}")
    a(f"v_lshl_add_u32 v{t4}, v{t4}, 6, v{t3}")
    a(f"v_lshl_add_u32 v{t5}, v{t2}, 3, v{t1}")
    a(f"v_lshl_add_u32 v{vWA}, v{t5}, 7, v{t4}")
    a(f"v_add_u32 v{vWA}, {L_W}, v{vWA}")
    a(f"v_mul_u32_u24 v{vKA}, 40, v{t5}")
    a(f"v_add_u32 v{vKA}, v{vKA}, v{t3}")
    a(f"s_mul_i32 s{sT0}, s{sT0}, 2560")
    a(f"s_add_u32 s{sT0}, s{sT0}, {L_S}")
    a(f"v_add_u32 v{vKA}, s{sT0}, v{vKA}")
    a(f"v_lshl_add_u32 v{t5}, v{t2}, 2, v{t1}")
    a(f"v_lshrrev_b32 v{t4}, 1, v{t1}")
    a(f"v_lshl_add_u32 v{t4}, v{t4}, 6, v{t3}")
    a(f"v_lshl_add_u32 v{vT[6]}, v{t5}, 7, v{t4}")
    a(f"s_lshl_b32 s{sT0}, s{sW}, 11")
    a(f"s_add_u32 s{sT0}, s{sT0}, {L_S}")
    a(f"v_add_u32 v{vT[6]}, s{sT0}, v{vT[6]}")
    a(f"v_xor_b32 v{vT[7]}, 64, v{vT[6]}")
    a(f"s_lshl_b32 s{sT0}, s{sRB}, 8")
    a(f"s_lshl_b32 s{sT1}, s{sW}, 5")
    a(f"s_add_u32 s{sT0}, s{sT0}, s{sT1}")
    a(f"s_mul_i32 s{sXoff}, s{sT0}, 1280")
    a(f"s_lshr_b32 s{sT0}, s{sW}, 1")
    a(f"s_mul_i32 s{sM0x}, s{sT0}, 24576")
    a(f"s_and_b32 s{sT0}, s{sW}, 1")
    a(f"s_lshl_b32 s{sT0}, s{sT0}, 12")
    a(f"s_add_u32 s{sM0x}, s{sM0x}, s{sT0}")
    a(f"s_lshl_b32 s{sM0w}, s{sW}, 10")
    a(f"s_add_u32 s{sM0w}, s{sM0w}, {L_W}")
    a("s_waitcnt lgkmcnt(0)")
    stamp(1)
    if STAMP:
        a(f"v_writelane_b32 v{vST}, s94, 0")
        a(f"v_writelane_b32 v{vST}, s96, 62")
    srd(a, SX, 60, S*D*2)
    srd(a, SWS, 80, WS_END + (1<<20))
    for r in range(64, 144): a(f"v_mov_b32 v{r}, 0")
    a(f"s_cmp_ge_u32 s{sCT}, 27")
    a(f"s_cbranch_scc1 {name}_q")

    def dma_chunk(vq, c, kv):
        st = c % 3
        for j in range(4):
            a(f"s_add_u32 m0, s{sM0x}, {st*8192 + j*1024}")
            a(f"s_add_u32 s{sT0}, s{sXoff}, {c*128 + (j>>1)*16*1280}")
            a(f"buffer_load_dwordx4 v{vXD[j&1]}, s[{SX}:{SX+3}], s{sT0} offen lds")
            vq.issue(('c', c))
        a(f"s_add_u32 m0, s{sM0w}, {st*16384}")
        a(f"s_mul_i32 s{sT1}, s{sWstep}, {c}")
        a(f"s_add_u32 s{sT0}, s{sWoff}, s{sT1}")
        a(f"buffer_load_dwordx4 v{vWD}, s[{SA}:{SA+3}], s{sT0} offen lds")
        vq.issue(('c', c))
        a(f"s_add_u32 m0, s{sM0w}, {st*16384 + 8192}")
        a(f"s_add_u32 s{sT0}, s{sWoffB}, s{sT1}")
        a(f"buffer_load_dwordx4 v{vWD}, s[{SB}:{SB+3}], s{sT0} offen lds")
        vq.issue(('c', c))
        if kv:
            a(f"s_add_u32 m0, s{sM0k}, {st*5120}")
            a(f"s_add_u32 s{sT0}, s{sKoff}, {c*2560}")
            a(f"s_mov_b64 exec, s[{sExecK}:{sExecK+1}]")
            a(f"buffer_load_dwordx4 v{vL16}, s[{SK}:{SK+3}], s{sT0} offen lds")
            a(f"s_mov_b64 exec, -1")
            vq.issue(('c', c))

    def reads(gs, job):
        c, s = divmod(gs, 4); st = c % 3; b = gs & 1
        out = []
        for t in range(2):
            out.append(f"ds_read_b128 v[{FX(b,t)}:{FX(b,t)+3}], v{vXA[s]} offset:{st*8192 + t*4096}")
        for p in range(2):
            for e in range(2):
                out.append(f"ds_read_b64_tr_b16 v[{FW(b,p)+2*e}:{FW(b,p)+2*e+1}], v{vWA} offset:{st*16384 + p*8192 + (16*s+4*e)*128}")
        if job in ('K0','K1','V0','V1'):
            for e in range(2):
                out.append(f"ds_read_b64_tr_b16 v[{FK(b)+2*e}:{FK(b)+2*e+1}], v{vKA} offset:{st*5120 + (16*s+4*e)*40}")
        elif job == 'G':
            out.append(f"ds_read_b128 v[{FK(b)}:{FK(b)+3}], v{vKA} offset:{gs*32}")
        return out

    def mfmas(gs, job):
        b = gs & 1
        out = []
        for p in range(2):
            for t in range(2):
                A = ACC(p,t)
                out.append(f"v_mfma_f32_32x32x16_bf16 v[{A}:{A+15}], v[{FW(b,p)}:{FW(b,p)+3}], v[{FX(b,t)}:{FX(b,t)+3}], v[{A}:{A+15}]")
        if job:
            t = {'K0':0,'K1':1,'V0':0,'V1':1,'G0':0,'G1':1}[job]
            fk = f"v[{FK(b)}:{FK(b)+3}]"; fx = f"v[{FX(b,t)}:{FX(b,t)+3}]"
            if job[0] == 'V': out.append(f"v_mfma_f32_32x32x16_bf16 v[{JACC}:{JACC+15}], {fx}, {fk}, v[{JACC}:{JACC+15}]")
            else: out.append(f"v_mfma_f32_32x32x16_bf16 v[{JACC}:{JACC+15}], {fk}, {fx}, v[{JACC}:{JACC+15}]")
        return out

    def mainloop(vq, job, kv, after_first_barrier=None):
        rj = 'G' if (job and job[0] == 'G') else job
        stamp(2)
        vq.wait(a, ('c', 0))
        stamp(3)
        a("s_barrier")
        stamp(4)
        if after_first_barrier: after_first_barrier(vq)
        for r in reads(0, rj): a(r)
        for gs in range(40):
            c, s = divmod(gs, 4)
            a("s_waitcnt lgkmcnt(0)")
            if s == 3 and c < 9:
                stamp(5+3*c)
                vq.wait(a, ('c', c+1))
                stamp(6+3*c)
                a("s_barrier")
                stamp(7+3*c)
            M = mfmas(gs, job)
            R = reads(gs+1, rj) if gs < 39 else []
            ri = 0
            for mi, m in enumerate(M):
                a(m)
                k = 2 if mi < len(M)-1 else len(R)
                for r in R[ri:ri+k]: a(r)
                ri += k
                if mi == 0 and s == 3 and c + 3 < 10:
                    dma_chunk(vq, c+3, kv)
        stamp(40)

    srd(a, SA, 72, D*F*2)
    srd(a, SB, 74, D*F*2)
    a(f"v_mul_u32_u24 v{t0}, {F*2}, v{t0}")
    a(f"v_add_u32 v{TMP}, v{vWD}, v{t0}")
    a(f"v_lshrrev_b32 v{t0}, 3, v{L}")
    a(f"v_mul_u32_u24 v{t0}, 1280, v{t0}")
    a(f"v_add_u32 v{TMP+1}, v{vWD}, v{t0}")
    a(f"v_mov_b32 v{vWD}, v{TMP}")
    a(f"s_mul_i32 s{sWoff}, s{sW}, {8*F*2}")
    a(f"s_lshl_b32 s{sT0}, s{sCT}, 7")
    a(f"s_add_u32 s{sWoff}, s{sWoff}, s{sT0}")
    a(f"s_mov_b32 s{sWoffB}, s{sWoff}")
    a(f"s_mov_b32 s{sWstep}, {64*F*2}")
    sU = 84; sK16 = 85; sGrp = 86; sNK = 87; sDst = 88; sIsWo = 89
    a(f"s_mul_i32 s{sU}, s{sRB}, 27")
    a(f"s_add_u32 s{sU}, s{sU}, s{sCT}")
    a(f"s_lshl_b32 s{sU}, s{sU}, 3")
    a(f"s_add_u32 s{sU}, s{sU}, s{sW}")
    a(f"s_min_u32 s{sU}, s{sU}, 1479")
    a(f"s_cmp_ge_u32 s{sU}, 1080")
    a(f"s_cselect_b32 s{SR}, s68, s76")
    a(f"s_cselect_b32 s{SR+1}, s69, s77")
    a(f"s_mov_b32 s{SR+2}, {F*D*2}")
    a(f"s_cselect_b32 s{SR+2}, {D*D*2}, s{SR+2}")
    a(f"s_cselect_b32 s{sNK}, 40, 108")
    a(f"s_mov_b32 s{sDst}, {WS_WD}")
    a(f"s_cselect_b32 s{sDst}, {WS_WO}, s{sDst}")
    a(f"s_cselect_b32 s{sT0}, 1080, 0")
    a(f"s_and_b32 s{SR+1}, s{SR+1}, 0xffff")
    a(f"s_mov_b32 s{SR+3}, 0x20000")
    a(f"s_sub_u32 s{sU}, s{sU}, s{sT0}")
    a(f"s_mul_hi_u32 s{sK16}, s{sU}, {(2**32+9)//10}")
    a(f"s_mul_i32 s{sT0}, s{sK16}, 10")
    a(f"s_sub_u32 s{sGrp}, s{sU}, s{sT0}")
    a(f"s_mul_i32 s{sT0}, s{sK16}, {16*1280}")
    a(f"s_lshl_b32 s{sT1}, s{sGrp}, 7")
    a(f"s_add_u32 s{sT0}, s{sT0}, s{sT1}")
    a(f"s_lshl_b32 s{sT2}, s{sW}, 11")
    a(f"s_add_u32 m0, s{sT2}, {L_S}")
    vq = VMQ()
    a(f"buffer_load_dwordx4 v{TMP+1}, s[{SR}:{SR+3}], s{sT0} offen lds"); vq.issue('rl')
    a(f"s_add_u32 m0, s{sT2}, {L_S+1024}")
    a(f"s_add_u32 s{sT0}, s{sT0}, {8*1280}")
    a(f"buffer_load_dwordx4 v{TMP+1}, s[{SR}:{SR+3}], s{sT0} offen lds"); vq.issue('rl')
    for c in range(3): dma_chunk(vq, c, False)
    sD = [90, 91]
    for c in range(2):
        a(f"s_lshl_b32 s{sT0}, s{sGrp}, 1")
        if c: a(f"s_add_u32 s{sT0}, s{sT0}, 1")
        a(f"s_mul_hi_u32 s{sT1}, s{sT0}, {(2**32+4)//5}")
        a(f"s_mul_i32 s{sT2}, s{sT1}, 5")
        a(f"s_sub_u32 s{sT2}, s{sT0}, s{sT2}")
        a(f"s_mul_i32 s{sT1}, s{sT1}, s{sNK}")
        a(f"s_add_u32 s{sT1}, s{sT1}, s{sK16}")
        a(f"s_mul_i32 s{sT1}, s{sT1}, 5120")
        a(f"s_lshl_b32 s{sT2}, s{sT2}, 10")
        a(f"s_add_u32 s{sT1}, s{sT1}, s{sT2}")
        a(f"s_add_u32 s{sD[c]}, s{sT1}, s{sDst}")
    def relayout(vq):
        for c in range(2):
            for e in range(2):
                a(f"ds_read_b64_tr_b16 v[{TMP+4*c+2*e}:{TMP+4*c+2*e+1}], v{vT[6+c]} offset:{8*e*128}")
        a("s_waitcnt lgkmcnt(0)")
        for c in range(2):
            a(f"buffer_store_dwordx4 v[{TMP+4*c}:{TMP+4*c+3}], v{vL16}, s[{SWS}:{SWS+3}], s{sD[c]} offen"); vq.issue('st')
    mainloop(vq, None, False, relayout)
    c0 = -2.0*math.sqrt(2.0/math.pi)*math.log2(math.e); c1 = c0*0.044715
    vC0 = 24; vC1 = 26; vOne = 28
    for r, val in ((vC0, c0), (vC1, c1), (vOne, 1.0)):
        a(f"v_mov_b32 v{r}, {f2u(val):#x}"); a(f"v_mov_b32 v{r+1}, {f2u(val):#x}")
    a(f"s_lshl_b32 s{sT0}, s{sRB}, 3")
    a(f"s_and_b32 s{sT1}, s{sW}, 6")
    a(f"s_add_u32 s{sT0}, s{sT0}, s{sT1}")
    a(f"s_mul_i32 s{sT0}, s{sT0}, 108")
    a(f"s_lshl_b32 s{sT1}, s{sCT}, 2")
    a(f"s_add_u32 s{sT0}, s{sT0}, s{sT1}")
    a(f"s_and_b32 s{sT1}, s{sW}, 1")
    a(f"s_lshl_b32 s{sT1}, s{sT1}, 1")
    a(f"s_add_u32 s{sT0}, s{sT0}, s{sT1}")
    a(f"s_lshl_b32 s{sT0}, s{sT0}, 10")
    a(f"s_add_u32 s{sT0}, s{sT0}, {WS_H}")
    a(f"s_add_u32 s{sT1}, s{sT0}, {108*1024}")
    P = lambda r: f"v[{r}:{r+1}]"
    for t in range(2):
        G = ACC(0,t); U = ACC(1,t)
        for m in range(2):
            T = TMP + 8*m
            O = 32 + 4*(2*t+m)
            for j in range(4): a(f"v_pk_mul_f32 {P(T+2*j)}, {P(G+8*m+2*j)}, {P(G+8*m+2*j)}")
            for j in range(4): a(f"v_pk_fma_f32 {P(T+2*j)}, {P(T+2*j)}, {P(vC1)}, {P(vC0)}")
            for j in range(4): a(f"v_pk_mul_f32 {P(T+2*j)}, {P(T+2*j)}, {P(G+8*m+2*j)}")
            for j in range(8): a(f"v_exp_f32 v{T+j}, v{T+j}")
            for j in range(4): a(f"v_pk_mul_f32 {P(U+8*m+2*j)}, {P(U+8*m+2*j)}, {P(G+8*m+2*j)}")
            for j in range(4): a(f"v_pk_add_f32 {P(T+2*j)}, {P(T+2*j)}, {P(vOne)}")
            for j in range(8): a(f"v_rcp_f32 v{T+j}, v{T+j}")
            for j in range(4): a(f"v_pk_mul_f32 {P(U+8*m+2*j)}, {P(U+8*m+2*j)}, {P(T+2*j)}")
            for j in range(4): a(f"v_cvt_pk_bf16_f32 v{O+j}, v{U+8*m+2*j}, v{U+8*m+2*j+1}")
            a(f"buffer_store_dwordx4 v[{O}:{O+3}], v{vL16}, s[{SWS}:{SWS+3}], s{sT0 if t == 0 else sT1} offen offset:{m*1024}")
    stamp_out()
    a("s_endpgm")

    a.label(f"{name}_q")
    sCQ = 84
    a(f"s_sub_u32 s{sCQ}, s{sCT}, 27")
    srd(a, SA, 62, D*D*2)
    srd(a, SB, 62, D*D*2)
    a(f"v_mul_u32_u24 v{t0}, 1280, v{t0}")
    a(f"v_add_u32 v{vWD}, v{vWD}, v{t0}")
    a(f"s_mul_i32 s{sWoff}, s{sW}, {8*1280}")
    a(f"s_lshl_b32 s{sT0}, s{sCQ}, 8")
    a(f"s_add_u32 s{sWoff}, s{sWoff}, s{sT0}")
    a(f"s_add_u32 s{sWoffB}, s{sWoff}, 128")
    a(f"s_mov_b32 s{sWstep}, {64*1280}")
    a(f"s_cmp_eq_u32 s{sCQ}, 4")
    a(f"s_cbranch_scc1 {name}_qg")
    a(f"s_min_u32 s{sT0}, s{sW}, 5")
    a(f"s_cmp_ge_u32 s{sT0}, 3")
    a(f"s_cselect_b32 s{SK}, s66, s64")
    a(f"s_cselect_b32 s{SK+1}, s67, s65")
    a(f"s_cselect_b32 s{sT1}, 3, 0")
    a(f"s_mov_b32 s{sM0k}, {L_S}")
    a(f"s_cselect_b32 s{sM0k}, {L_S+2560}, s{sM0k}")
    a(f"s_and_b32 s{SK+1}, s{SK+1}, 0xffff")
    a(f"s_mov_b32 s{SK+2}, {D*DH*2}")
    a(f"s_mov_b32 s{SK+3}, 0x20000")
    a(f"s_sub_u32 s{sT0}, s{sT0}, s{sT1}")
    a(f"s_lshl_b32 s{sKoff}, s{sT0}, 10")
    a(f"s_add_u32 s{sM0k}, s{sM0k}, s{sKoff}")
    a(f"s_cmp_eq_u32 s{sT0}, 2")
    a(f"s_mov_b32 s{sExecK}, -1")
    a(f"s_cselect_b32 s{sExecK+1}, 0, -1")
    vq0 = VMQ()
    for c in range(3): dma_chunk(vq0, c, True)
    a(f"s_lshr_b32 s{sT0}, s{sW}, 2")
    a(f"s_lshr_b32 s{sT1}, s{sCQ}, 1")
    a(f"s_cmp_lg_u32 s{sT0}, s{sT1}")
    a(f"s_cbranch_scc1 {name}_qN")
    a(f"s_and_b32 s{sT0}, s{sCQ}, 1")
    a(f"s_and_b32 s{sT1}, s{sW}, 1")
    a(f"s_lshl_b32 s{sT1}, s{sT1}, 1")
    a(f"s_or_b32 s{sT0}, s{sT0}, s{sT1}")
    a(f"s_lshl_b32 s{sP}, s{sRB}, 3")
    a(f"s_and_b32 s{sT1}, s{sW}, 6")
    a(f"s_add_u32 s{sP}, s{sP}, s{sT1}")
    a(f"s_and_b32 s{sT1}, s{sCQ}, 1")
    a(f"s_add_u32 s{sP}, s{sP}, s{sT1}")
    a(f"s_cmp_eq_u32 s{sT0}, 1"); a(f"s_cbranch_scc1 {name}_qK1")
    a(f"s_cmp_eq_u32 s{sT0}, 2"); a(f"s_cbranch_scc1 {name}_qV0")
    a(f"s_cmp_eq_u32 s{sT0}, 3"); a(f"s_cbranch_scc1 {name}_qV1")

    def kv_base():
        a(f"s_lshr_b32 s{sT2}, s{sP}, 1")
        a(f"s_mul_i32 s{sT2}, s{sT2}, {DUO}")
        a(f"s_add_u32 s{sT2}, s{sT2}, {WS_KV}")
        a(f"s_and_b32 s{sT3}, s{sP}, 1")
    def k_epi():
        J = JACC
        kv_base()
        for j in range(6): a(f"v_cvt_pk_bf16_f32 v{TMP+j}, v{J+2*j}, v{J+2*j+1}")
        a(f"s_lshl_b32 s{sT0}, s{sT3}, 10")
        a(f"s_add_u32 s{sT0}, s{sT0}, s{sT2}")
        a(f"buffer_store_dwordx4 v[{TMP}:{TMP+3}], v{vL16}, s[{SWS}:{SWS+3}], s{sT0} offen")
        a(f"s_lshl_b32 s{sT0}, s{sT3}, 3")
        a(f"s_add_u32 s{sT0}, s{sT0}, s{sT2}")
        a(f"s_add_u32 s{sT0}, s{sT0}, 2048")
        a(f"v_mov_b32 v{TMP+8}, 0")
        a(f"v_mov_b32 v{TMP+9}, 0")
        for j in range(4): a(f"v_dot2c_f32_bf16 v{TMP+8}, v{TMP+j}, v{TMP+j}")
        a(f"s_mov_b32 exec_hi, 0")
        a(f"buffer_store_dwordx2 v[{TMP+4}:{TMP+5}], v{vL16}, s[{SWS}:{SWS+3}], s{sT0} offen")
        for j in range(4,6): a(f"v_dot2c_f32_bf16 v{TMP+9}, v{TMP+j}, v{TMP+j}")
        a(f"s_mov_b64 exec, -1")
        a(f"v_add_f32 v{TMP+8}, v{TMP+8}, v{TMP+9}")
        a(f"v_mov_b32 v{TMP+9}, v{TMP+8}")
        a(f"v_permlane32_swap_b32 v{TMP+8}, v{TMP+9}")
        a(f"v_add_f32 v{TMP+8}, v{TMP+8}, v{TMP+9}")
        for sh in (1,2,4,8):
            a(f"v_max_f32_dpp v{TMP+8}, v{TMP+8}, v{TMP+8} row_shr:{sh} row_mask:0xf bank_mask:0xf")
        a(f"v_readlane_b32 s{sT0}, v{TMP+8}, 15")
        a(f"v_readlane_b32 s{sT1}, v{TMP+8}, 31")
        a(f"s_max_u32 s{sT0}, s{sT0}, s{sT1}")
        a(f"v_mov_b32 v{TMP+8}, s{sT0}")
        a(f"s_lshl_b32 s{sT1}, s{sP}, 2")
        a(f"s_add_u32 s{sT1}, s{sT1}, {WS_KN}")
        a(f"v_mov_b32 v{TMP+9}, 0")
        a(f"s_mov_b64 exec, 1")
        a(f"buffer_store_dword v{TMP+8}, v{TMP+9}, s[{SWS}:{SWS+3}], s{sT1} offen")
        a(f"s_mov_b64 exec, -1")
    def v_epi():
        J = JACC
        kv_base()
        for j in range(8): a(f"v_cvt_pk_bf16_f32 v{TMP+j}, v{J+2*j}, v{J+2*j+1}")
        a(f"s_mov_b32 exec_lo, {1<<20}")
        a(f"s_mov_b32 exec_hi, {1<<20}")
        for j in range(8): a(f"v_mov_b32 v{TMP+j}, 0x3f803f80")
        a(f"s_mov_b32 exec_lo, 0")
        a(f"s_mov_b32 exec_hi, {1<<21}")
        for j in range(8): a(f"v_mov_b32 v{TMP+j}, 0")
        a(f"s_mov_b32 exec_lo, {(1<<21)-1}")
        a(f"s_mov_b32 exec_hi, {(1<<22)-1}")
        a(f"v_lshrrev_b32 v{TMP+8}, 5, v{L}")
        a(f"v_mul_u32_u24 v{TMP+8}, 336, v{TMP+8}")
        a(f"v_and_b32 v{TMP+9}, 31, v{L}")
        a(f"v_lshl_add_u32 v{TMP+8}, v{TMP+9}, 4, v{TMP+8}")
        a(f"s_mul_i32 s{sT0}, s{sT3}, 1376")
        a(f"s_add_u32 s{sT0}, s{sT0}, s{sT2}")
        a(f"s_add_u32 s{sT0}, s{sT0}, 2560")
        a(f"buffer_store_dwordx4 v[{TMP}:{TMP+3}], v{TMP+8}, s[{SWS}:{SWS+3}], s{sT0} offen")
        a(f"buffer_store_dwordx4 v[{TMP+4}:{TMP+7}], v{TMP+8}, s[{SWS}:{SWS+3}], s{sT0} offen offset:688")
        a(f"s_mov_b64 exec, -1")
    def g_epi():
        J = JACC
        a(f"v_mul_f32 v{TMP}, {f2u(-math.log2(math.e)):#x}, v{J}")
        a(f"v_exp_f32 v{TMP}, v{TMP}")
        a(f"v_add_f32 v{TMP}, 1.0, v{TMP}")
        a(f"v_rcp_f32 v{TMP}, v{TMP}")
        a(f"v_lshlrev_b32 v{TMP+1}, 2, v{L}")
        a(f"s_lshl_b32 s{sT0}, s{sP}, 7")
        a(f"s_add_u32 s{sT0}, s{sT0}, {WS_G}")
        a(f"s_mov_b32 exec_hi, 0")
        a(f"buffer_store_dword v{TMP}, v{TMP+1}, s[{SWS}:{SWS+3}], s{sT0} offen")
        a(f"s_mov_b64 exec, -1")

    for job, epi in (('K0', k_epi), ('K1', k_epi), ('V0', v_epi), ('V1', v_epi), (None, None)):
        if job != 'K0': a.label(f"{name}_q{job or 'N'}")
        mainloop(vq0.copy(), job, True)
        if epi: epi()
        a(f"s_branch {name}_qepi")
    a.label(f"{name}_qg")
    srd(a, SK, 78, D*2)
    vq1 = VMQ()
    a(f"s_mov_b32 m0, {L_S}")
    a(f"s_mov_b32 s{sT0}, 0")
    a(f"buffer_load_dwordx4 v{vL16}, s[{SK}:{SK+3}], s{sT0} offen lds"); vq1.issue(('c',0))
    a(f"s_mov_b32 m0, {L_S+1024}")
    a(f"s_mov_b32 s{sT0}, 1024")
    a(f"buffer_load_dwordx4 v{vL16}, s[{SK}:{SK+3}], s{sT0} offen lds"); vq1.issue(('c',0))
    for c in range(3): dma_chunk(vq1, c, False)
    a(f"v_lshrrev_b32 v{vKA}, 5, v{L}")
    a(f"v_lshlrev_b32 v{vKA}, 4, v{vKA}")
    a(f"v_add_u32 v{vKA}, {L_S}, v{vKA}")
    a(f"s_lshl_b32 s{sP}, s{sRB}, 3")
    a(f"s_add_u32 s{sP}, s{sP}, s{sW}")
    a(f"s_bitcmp1_b32 s{sW}, 0")
    a(f"s_cbranch_scc1 {name}_qG1")
    mainloop(vq1.copy(), 'G0', False); g_epi()
    a(f"s_branch {name}_qepi")
    a.label(f"{name}_qG1")
    mainloop(vq1.copy(), 'G1', False); g_epi()
    a.label(f"{name}_qepi")
    vH = TMP+16; vPos = TMP+17; vG = TMP+18; vHd = TMP+19; vJ = TMP+20; vA1 = TMP+21; vA2 = TMP+22; vQS = TMP+24
    a(f"v_lshrrev_b32 v{vH}, 5, v{L}")
    a(f"v_and_b32 v{vPos}, 31, v{L}")
    a(f"v_mov_b32 v{vQS}, {f2u(QSCALE):#x}")
    a(f"v_mov_b32 v{vQS+1}, {f2u(QSCALE):#x}")
    a(f"s_lshl_b32 s{sT0}, s{sCQ}, 5")
    a(f"s_and_b32 s{sT1}, s{sW}, 1")
    a(f"s_lshl_b32 s{sT1}, s{sT1}, 3")
    a(f"s_add_u32 s{sT0}, s{sT0}, s{sT1}")
    a(f"v_add_u32 v{vH}, s{sT0}, v{vH}")
    a(f"s_lshl_b32 s{sT2}, s{sRB}, 3")
    a(f"s_and_b32 s{sT1}, s{sW}, 6")
    a(f"s_add_u32 s{sT2}, s{sT2}, s{sT1}")
    a(f"s_mul_i32 s{sT2}, s{sT2}, {32*1280}")
    a(f"s_add_u32 s{sT2}, s{sT2}, {WS_Q}")
    a(f"s_add_u32 s{sT3}, s{sT2}, {32*1280}")
    for p in range(2):
        for aa in range(4):
            a(f"v_add_u32 v{vG}, {p*16 + 2*aa}, v{vH}")
            a(f"v_mul_u32_u24 v{vHd}, 205, v{vG}")
            a(f"v_lshrrev_b32 v{vHd}, 10, v{vHd}")
            a(f"v_mul_u32_u24 v{vJ}, 5, v{vHd}")
            a(f"v_sub_u32 v{vJ}, v{vG}, v{vJ}")
            a(f"v_and_b32 v{vA1}, 1, v{vJ}")
            a(f"v_lshl_add_u32 v{vA1}, v{vA1}, 5, v{vPos}")
            a(f"v_lshlrev_b32 v{vA1}, 4, v{vA1}")
            a(f"v_lshrrev_b32 v{vA2}, 1, v{vJ}")
            a(f"v_lshl_add_u32 v{vA1}, v{vA2}, 3, v{vA1}")
            a(f"v_lshlrev_b32 v{vA2}, 3, v{vPos}")
            a(f"v_add_u32 v{vA2}, 1024, v{vA2}")
            a(f"v_cmp_eq_u32 vcc, 4, v{vJ}")
            a(f"v_mul_u32_u24 v{vHd}, 1280, v{vHd}")
            a(f"v_cndmask_b32 v{vA1}, v{vA1}, v{vA2}, vcc")
            a(f"v_add_u32 v{vA1}, v{vA1}, v{vHd}")
            for t in range(2):
                A = ACC(p,t) + 4*aa
                O = TMP + 2*t
                a(f"v_pk_mul_f32 {P(A)}, {P(A)}, {P(vQS)}")
                a(f"v_pk_mul_f32 {P(A+2)}, {P(A+2)}, {P(vQS)}")
                a(f"v_cvt_pk_bf16_f32 v{O}, v{A}, v{A+1}")
                a(f"v_cvt_pk_bf16_f32 v{O+1}, v{A+2}, v{A+3}")
                a(f"buffer_store_dwordx2 v[{O}:{O+1}], v{vA1}, s[{SWS}:{SWS+3}], s{sT2 if t == 0 else sT3} offen")
    stamp_out()
    a.label(f"{name}_end")
    a("s_endpgm")
    return dict(name=name, vgpr=176, lds=K1_LDS, block=512, grid=256)
```

```python
from asmlib import *
from layout import *
from k1 import srd, VMQ
STAMP = False
L_KV = 0
L_FLAG = 30*DUO
K2_LDS = 163840
THR = 2.0**-24

def gen_k2(a, name='k2_kernel'):
    vLane = 1; vL16 = 2; vKA = 3; vK2A = 4; vVA = 5; vG = 6; vPos = 7; vH = 8
    vT = list(range(9, 16))
    Q1 = lambda t: 16 + 4*t
    Q2 = lambda t: 24 + 6*t
    K1B = lambda b: 36 + 4*b
    K2B = lambda b: 44 + 8*b
    VB = lambda b: 60 + 8*b
    PB = lambda t: 76 + 8*t
    SB = lambda t: 96 + 16*t
    OB = lambda t: 128 + 16*t
    NM = lambda t: 160 + 16*t
    K1S = lambda j: 192 + 4*j
    K2S = lambda d: 208 + 8*d
    VS = lambda j: 224 + 8*j
    sW = 3; sP = 4; sHd = 5; SWS = 8; sT0 = 12; sT1 = 13; sT2 = 14; sT3 = 15; sCnt = 16; sFlag = 17; sOff = 18
    vST = 94
    def stamp(i):
        if not STAMP: return
        a("s_memtime s[92:93]"); a("s_waitcnt lgkmcnt(0)"); a(f"v_writelane_b32 v{vST}, s92, {i}")
    def stamp_out():
        if not STAMP: return
        stamp(63)
        a("s_memrealtime s[92:93]"); a("s_waitcnt lgkmcnt(0)"); a(f"v_writelane_b32 v{vST}, s92, 61")
        a("s_lshl_b32 s92, s2, 3"); a(f"s_add_u32 s92, s92, s{sW}"); a("s_lshl_b32 s92, s92, 8")
        a(f"s_add_u32 s92, s92, {WS_END}")
        a(f"v_lshlrev_b32 v95, 2, v{vLane}")
        a(f"buffer_store_dword v{vST}, v95, s[{SWS}:{SWS+3}], s92 offen")
    a(f".p2align 8\n.globl {name}\n.type {name},@function")
    a.label(name)
    a("s_cmp_ge_u32 s2, 256")
    a(f"s_cbranch_scc1 {name}_end")
    a("s_load_dwordx2 s[6:7], s[0:1], 96")
    if STAMP:
        a("s_memtime s[94:95]"); a("s_memrealtime s[96:97]")
    a(f"v_lshrrev_b32 v{vT[0]}, 6, v0")
    a(f"v_and_b32 v{vLane}, 63, v0")
    a(f"v_readfirstlane_b32 s{sW}, v{vT[0]}")
    a(f"v_lshlrev_b32 v{vL16}, 4, v{vLane}")
    a(f"s_and_b32 s{sP}, s2, 7")
    a(f"s_lshr_b32 s{sT0}, s2, 5")
    a(f"s_lshl_b32 s{sT0}, s{sT0}, 3")
    a(f"s_add_u32 s{sP}, s{sP}, s{sT0}")
    a(f"s_bfe_u32 s{sHd}, s2, 0x20003")
    a(f"s_lshl_b32 s{sHd}, s{sHd}, 3")
    a(f"s_lshl_b32 s{sT0}, s{sW}, 1")
    a(f"s_add_u32 s{sHd}, s{sHd}, s{sT0}")
    a(f"s_cmp_ge_u32 s{sW}, 4")
    a(f"s_cbranch_scc1 {name}_ld")
    a(f"v_and_b32 v{vPos}, 31, v{vLane}")
    a(f"v_lshrrev_b32 v{vH}, 5, v{vLane}")
    a(f"v_lshlrev_b32 v{vK2A}, 4, v{vPos}")
    a(f"v_add_u32 v{vK2A}, 2048, v{vK2A}")
    a(f"v_mul_u32_u24 v{vVA}, 336, v{vH}")
    a(f"v_lshl_add_u32 v{vVA}, v{vPos}, 4, v{vVA}")
    a(f"v_add_u32 v{vVA}, 2560, v{vVA}")
    a(f"s_mov_b32 exec_lo, 0xffe00000")
    a(f"s_mov_b32 exec_hi, 0xffe00000")
    a(f"v_mov_b32 v{vVA}, {2560+672}")
    a(f"s_mov_b32 exec_lo, 0")
    a(f"s_mov_b32 exec_hi, -1")
    a(f"v_mov_b32 v{vK2A}, {2560+672}")
    a(f"s_mov_b64 exec, -1")
    for t in range(2):
        for r in range(6): a(f"v_mov_b32 v{Q2(t)+r}, 0")
    for b in range(2):
        for r in (0,1,6,7):
            a(f"v_mov_b32 v{K2B(b)+r}, 0"); a(f"v_mov_b32 v{K2S(b)+r}, 0")
    a(f"v_lshlrev_b32 v{vT[0]}, 3, v{vPos}")
    a(f"v_lshlrev_b32 v{vT[1]}, 2, v{vLane}")
    a(f"v_lshlrev_b32 v{vT[2]}, 2, v{vPos}")
    a("s_waitcnt lgkmcnt(0)")
    srd(a, SWS, 6, WS_END + (1<<20))
    if STAMP:
        a(f"v_writelane_b32 v{vST}, s94, 0"); a(f"v_writelane_b32 v{vST}, s96, 62")
    vq = VMQ()
    a(f"s_lshl_b32 s{sT0}, s{sP}, 5")
    a(f"s_add_u32 s{sT0}, s{sT0}, s{sHd}")
    a(f"s_mul_i32 s{sT0}, s{sT0}, 1280")
    a(f"s_add_u32 s{sT0}, s{sT0}, {WS_Q}")
    for t in range(2):
        a(f"buffer_load_dwordx4 v[{Q1(t)}:{Q1(t)+3}], v{vL16}, s[{SWS}:{SWS+3}], s{sT0} offen offset:{1280*t}"); vq.issue('q')
    a("s_mov_b32 exec_hi, 0")
    for t in range(2):
        a(f"buffer_load_dwordx2 v[{Q2(t)+2}:{Q2(t)+3}], v{vT[0]}, s[{SWS}:{SWS+3}], s{sT0} offen offset:{1280*t+1024}"); vq.issue('q')
    a("s_mov_b32 exec_hi, -1")
    a(f"s_mov_b32 s{sT1}, {WS_KN}")
    a(f"buffer_load_dword v{vT[3]}, v{vT[1]}, s[{SWS}:{SWS+3}], s{sT1} offen"); vq.issue('q')
    def static_loads(vq):
        a(f"s_mov_b32 s{sT1}, {WS_KV}")
        a(f"s_mov_b32 s{sT2}, {WS_KV + DUO}")
        for d in range(2):
            so = sT1 if d == 0 else sT2
            a(f"buffer_load_dwordx4 v[{K1S(2*d)}:{K1S(2*d)+3}], v{vL16}, s[{SWS}:{SWS+3}], s{so} offen"); vq.issue(('kv', 2*d))
            a(f"buffer_load_dwordx4 v[{K2S(d)+2}:{K2S(d)+5}], v{vK2A}, s[{SWS}:{SWS+3}], s{so} offen"); vq.issue(('kv', 2*d))
            for m in range(2):
                a(f"buffer_load_dwordx4 v[{VS(2*d)+4*m}:{VS(2*d)+4*m+3}], v{vVA}, s[{SWS}:{SWS+3}], s{so} offen offset:{688*m}"); vq.issue(('kv', 2*d))
            a(f"buffer_load_dwordx4 v[{K1S(2*d+1)}:{K1S(2*d+1)+3}], v{vL16}, s[{SWS}:{SWS+3}], s{so} offen offset:1024"); vq.issue(('kv', 2*d+1))
            for m in range(2):
                a(f"buffer_load_dwordx4 v[{VS(2*d+1)+4*m}:{VS(2*d+1)+4*m+3}], v{vVA}, s[{SWS}:{SWS+3}], s{so} offen offset:{1376+688*m}"); vq.issue(('kv', 2*d+1))
    static_loads(vq)
    a(f"s_lshl_b32 s{sT1}, s{sP}, 7")
    a(f"s_add_u32 s{sT1}, s{sT1}, {WS_G}")
    a(f"buffer_load_dword v{vG}, v{vT[2]}, s[{SWS}:{SWS+3}], s{sT1} offen"); vq.issue('g')
    for t in range(2):
        for r in range(16): a(f"v_mov_b32 v{OB(t)+r}, 0")
    a(f"v_mov_b32 v{vKA}, v{vL16}")
    a(f"s_mov_b32 s{sFlag}, 0")
    stamp(1)
    vq.wait(a, 'q')
    stamp(2)
    kn = vT[3]
    for sh in (1,2,4,8):
        a(f"v_max_f32_dpp v{kn}, v{kn}, v{kn} row_shr:{sh} row_mask:0xf bank_mask:0xf")
    for t in range(2):
        n = vT[4+t]
        a(f"v_mov_b32 v{n}, 0")
    for r in range(4):
        for t in range(2): a(f"v_dot2c_f32_bf16 v{vT[4+t]}, v{Q1(t)+r}, v{Q1(t)+r}")
    for r in (2,3):
        for t in range(2): a(f"v_dot2c_f32_bf16 v{vT[4+t]}, v{Q2(t)+r}, v{Q2(t)+r}")
    a(f"v_readlane_b32 s{sT0}, v{kn}, 15")
    a(f"v_readlane_b32 s{sT1}, v{kn}, 31")
    a(f"v_readlane_b32 s{sT2}, v{kn}, 47")
    a(f"v_readlane_b32 s{sT3}, v{kn}, 63")
    a(f"s_max_u32 s{sT0}, s{sT0}, s{sT1}")
    a(f"s_max_u32 s{sT2}, s{sT2}, s{sT3}")
    a(f"s_max_u32 s{sT0}, s{sT0}, s{sT2}")
    for t in range(2):
        a(f"v_mov_b32 v{vT[0+t]}, v{vT[4+t]}")
    for t in range(2):
        a(f"v_permlane32_swap_b32 v{vT[0+t]}, v{vT[4+t]}")
    for t in range(2):
        a(f"v_add_f32 v{vT[4+t]}, v{vT[4+t]}, v{vT[0+t]}")
    for t in range(2):
        a(f"v_mul_f32 v{vT[4+t]}, s{sT0}, v{vT[4+t]}")
    for t in range(2):
        a(f"v_sqrt_f32 v{vT[4+t]}, v{vT[4+t]}")
    for t in range(2):
        for r in range(16): a(f"v_sub_f32 v{NM(t)+r}, 0, v{vT[4+t]}")

    def R(b, n): return f"v[{b}:{b+n-1}]"
    def k1reg(j): return K1S(j) if j < 4 else K1B(j & 1)
    def k2reg(j):
        base = K2S(j >> 1) if j < 4 else K2B((j >> 1) & 1)
        return base if (j & 1) == 0 else base + 4
    def q2reg(t, j): return Q2(t) if (j & 1) == 0 else Q2(t) + 2
    def vreg(j): return VS(j) if j < 4 else VB(j & 1)
    def qk(n):
        j, t = n >> 1, n & 1
        return [f"v_mfma_f32_32x32x16_bf16 {R(SB(t),16)}, {R(k1reg(j),4)}, {R(Q1(t),4)}, {R(NM(t),16)}",
                f"v_mfma_f32_32x32x16_bf16 {R(SB(t),16)}, {R(k2reg(j),4)}, {R(q2reg(t,j),4)}, {R(SB(t),16)}"]
    def pv(n):
        j, t = n >> 1, n & 1
        return [f"v_mfma_f32_32x32x16_bf16 {R(OB(t),16)}, {R(vreg(j)+4*m,4)}, {R(PB(t)+4*m,4)}, {R(OB(t),16)}" for m in range(2)]
    def ldoff(j, base_duo):
        return ((j >> 1) - base_duo) * DUO
    def reads(n, base_duo):
        out = []
        if n & 1:
            j = (n - 1) >> 1
            if 4 <= j + 2 < 64:
                jj = j + 2
                out.append(f"ds_read_b128 {R(K1B(jj&1),4)}, v{vKA} offset:{ldoff(jj, base_duo) + 1024*(jj&1)}")
            if 4 <= j + 1 < 64:
                jj = j + 1
                out.append(f"ds_read_b128 {R(VB(jj&1),4)}, v{vVA} offset:{ldoff(jj, base_duo) + 1376*(jj&1)}")
        else:
            j = (n - 2) >> 1
            if 4 <= j + 1 < 64:
                jj = j + 1
                out.append(f"ds_read_b128 {R(VB(jj&1)+4,4)}, v{vVA} offset:{ldoff(jj, base_duo) + 1376*(jj&1) + 688}")
            jj = j + 2
            if 4 <= jj < 64 and (jj & 1) == 0:
                out.append(f"ds_read_b128 {R(K2B((jj>>1)&1)+2,4)}, v{vK2A} offset:{ldoff(jj, base_duo)}")
        return out
    def step(n, base_duo, pre=None):
        t = n & 1
        S = SB(t); P = PB(t)
        Q = qk(n+1) if n + 1 < 128 else [None, None]
        V = pv(n-1) if n >= 1 else [None, None]
        Rd = reads(n, base_duo)
        e = lambda i: f"v_exp_f32 v{S+i}, v{S+i}"
        c = lambda i: f"v_cvt_pk_bf16_f32 v{P+i}, v{S+2*i}, v{S+2*i+1}"
        if pre: pre()
        if (n & 1) and n >= 7: a("s_waitcnt lgkmcnt(0)")
        if 0 <= n < 128:
            seq = [Q[0], e(0), e(1), e(2), e(3), Q[1], e(4), e(5), c(0), c(1), 'R0', e(6), e(7), V[0], c(2), e(8), c(3), e(9), 'R1', e(10), e(11), V[1], c(4), e(12), c(5), e(13), e(14), e(15), c(6), c(7)]
        else:
            seq = [Q[0], Q[1], V[0], V[1]]
        for x in seq:
            if x is None: continue
            if x == 'R0':
                if len(Rd) > 0: a(Rd[0])
            elif x == 'R1':
                if len(Rd) > 1: a(Rd[1])
            else: a(x)
    stamp(3)
    vq.wait(a, ('kv', 0))
    step(-1, 2)
    for n in range(0, 9):
        pre = None
        if n == 1: pre = lambda: vq.wait(a, ('kv', 1))
        if n == 3: pre = lambda: vq.wait(a, ('kv', 2))
        if n == 5:
            def pre():
                vq.wait(a, ('kv', 3)); stamp(4); a("s_barrier"); stamp(5)
        step(n, 2, pre)
    stamp(6)
    a("s_barrier")
    stamp(7)
    a(f"s_mov_b32 s{sCnt}, 14")
    a.label(f"{name}_loop")
    for n in range(9, 17): step(n, 2)
    a(f"v_add_u32 v{vKA}, {2*DUO}, v{vKA}")
    a(f"v_add_u32 v{vK2A}, {2*DUO}, v{vK2A}")
    a(f"v_add_u32 v{vVA}, {2*DUO}, v{vVA}")
    a(f"s_sub_u32 s{sCnt}, s{sCnt}, 1")
    a(f"s_cmp_lg_u32 s{sCnt}, 0")
    a(f"s_cbranch_scc1 {name}_loop")
    for n in range(121, 129): step(n, 2 + 28)
    stamp(8)
    a.label(f"{name}_fin")
    a("s_waitcnt vmcnt(0)")
    Lr = [vT[0], vT[1]]; X = [vT[2], vT[3]]
    for t in range(2):
        a(f"v_mov_b32 v{Lr[t]}, v{OB(t)+8}")
        a(f"v_mov_b32 v{X[t]}, v{OB(t)+8}")
    for t in range(2):
        a(f"v_permlane32_swap_b32 v{X[t]}, v{Lr[t]}")
    a(f"v_min_f32 v{X[0]}, v{Lr[0]}, v{Lr[1]}")
    a(f"v_mov_b32 v{X[1]}, {f2u(THR):#x}")
    a(f"v_cmp_ngt_f32 vcc, v{X[0]}, v{X[1]}")
    a(f"s_cmp_lg_u32 s{sFlag}, 0")
    a(f"s_cbranch_scc1 {name}_st")
    a(f"s_cbranch_vccnz {name}_slow")
    a.label(f"{name}_st")
    for t in range(2):
        a(f"v_rcp_f32 v{Lr[t]}, v{Lr[t]}")
    for t in range(2):
        a(f"v_mul_f32 v{Lr[t]}, v{Lr[t]}, v{vG}")
    a(f"s_mul_i32 s{sT0}, s{sP}, {40*1024}")
    a(f"s_add_u32 s{sT0}, s{sT0}, {WS_O}")
    a(f"s_mul_i32 s{sT1}, s{sHd}, 5")
    a(f"v_add_u32 v{vT[4]}, s{sT1}, v{vH}")
    for t in range(2):
        O = OB(t)
        for r in range(12): a(f"v_mul_f32 v{O+r}, v{O+r}, v{Lr[t]}")
        for r in range(6): a(f"v_cvt_pk_bf16_f32 v{PB(t)+r}, v{O+2*r}, v{O+2*r+1}")
        for aa in range(3):
            g = vT[5]; ad = vT[6]; tmp = X[0]
            a(f"v_add_u32 v{g}, {5*t + 2*aa}, v{vT[4]}")
            a(f"v_lshrrev_b32 v{ad}, 2, v{g}")
            a(f"v_lshlrev_b32 v{ad}, 10, v{ad}")
            a(f"v_and_b32 v{tmp}, 1, v{g}")
            a(f"v_lshl_add_u32 v{tmp}, v{tmp}, 5, v{vPos}")
            a(f"v_lshl_add_u32 v{ad}, v{tmp}, 4, v{ad}")
            a(f"v_bfe_u32 v{tmp}, v{g}, 1, 1")
            a(f"v_lshl_add_u32 v{ad}, v{tmp}, 3, v{ad}")
            if aa == 2: a("s_mov_b32 exec_hi, 0")
            a(f"buffer_store_dwordx2 v[{PB(t)+2*aa}:{PB(t)+2*aa+1}], v{ad}, s[{SWS}:{SWS+3}], s{sT0} offen")
            if aa == 2: a("s_mov_b32 exec_hi, -1")
    stamp_out()
    a("s_endpgm")
    a.label(f"{name}_slow")
    a(f"s_mov_b32 s{sFlag}, 1")
    a(f"v_subrev_u32 v{vK2A}, {28*DUO}, v{vK2A}")
    a(f"v_subrev_u32 v{vVA}, {28*DUO}, v{vVA}")
    M = [vT[4], vT[5]]
    for t in range(2): a(f"v_mov_b32 v{M[t]}, 0xff7fffff")
    def slow_loads(withv):
        a(f"buffer_load_dwordx4 {R(K1B(0),4)}, v{vL16}, s[{SWS}:{SWS+3}], s{sOff} offen")
        a(f"buffer_load_dwordx4 {R(K1B(1),4)}, v{vL16}, s[{SWS}:{SWS+3}], s{sOff} offen offset:1024")
        a(f"buffer_load_dwordx4 {R(K2B(0)+2,4)}, v{vK2A}, s[{SWS}:{SWS+3}], s{sOff} offen")
        if withv:
            for jj in range(2):
                for m in range(2):
                    a(f"buffer_load_dwordx4 {R(VB(jj)+4*m,4)}, v{vVA}, s[{SWS}:{SWS+3}], s{sOff} offen offset:{1376*jj+688*m}")
        a("s_waitcnt vmcnt(0)")
    a(f"s_mov_b32 s{sOff}, {WS_KV}")
    a(f"s_mov_b32 s{sCnt}, 32")
    a.label(f"{name}_sl1")
    slow_loads(False)
    for jj in range(2):
        for t in range(2):
            a(f"v_mfma_f32_32x32x16_bf16 {R(SB(t),16)}, {R(K1B(jj),4)}, {R(Q1(t),4)}, 0")
            a(f"v_mfma_f32_32x32x16_bf16 {R(SB(t),16)}, {R(K2B(0)+4*jj,4)}, {R(Q2(t)+2*jj,4)}, {R(SB(t),16)}")
        for t in range(2):
            for r in range(0, 16, 2): a(f"v_max3_f32 v{M[t]}, v{SB(t)+r}, v{SB(t)+r+1}, v{M[t]}")
    a(f"s_add_u32 s{sOff}, s{sOff}, {DUO}")
    a(f"s_sub_u32 s{sCnt}, s{sCnt}, 1")
    a(f"s_cmp_lg_u32 s{sCnt}, 0")
    a(f"s_cbranch_scc1 {name}_sl1")
    for t in range(2): a(f"v_mov_b32 v{vT[t]}, v{M[t]}")
    for t in range(2): a(f"v_permlane32_swap_b32 v{vT[t]}, v{M[t]}")
    for t in range(2): a(f"v_max_f32 v{M[t]}, v{M[t]}, v{vT[t]}")
    for t in range(2):
        for r in range(16):
            a(f"v_sub_f32 v{NM(t)+r}, 0, v{M[t]}")
            a(f"v_mov_b32 v{OB(t)+r}, 0")
    a(f"s_mov_b32 s{sOff}, {WS_KV}")
    a(f"s_mov_b32 s{sCnt}, 32")
    a.label(f"{name}_sl2")
    slow_loads(True)
    for jj in range(2):
        for t in range(2):
            a(f"v_mfma_f32_32x32x16_bf16 {R(SB(t),16)}, {R(K1B(jj),4)}, {R(Q1(t),4)}, {R(NM(t),16)}")
            a(f"v_mfma_f32_32x32x16_bf16 {R(SB(t),16)}, {R(K2B(0)+4*jj,4)}, {R(Q2(t)+2*jj,4)}, {R(SB(t),16)}")
        for t in range(2):
            for r in range(16): a(f"v_exp_f32 v{SB(t)+r}, v{SB(t)+r}")
            for r in range(8): a(f"v_cvt_pk_bf16_f32 v{PB(t)+r}, v{SB(t)+2*r}, v{SB(t)+2*r+1}")
            for m in range(2):
                a(f"v_mfma_f32_32x32x16_bf16 {R(OB(t),16)}, {R(VB(jj)+4*m,4)}, {R(PB(t)+4*m,4)}, {R(OB(t),16)}")
    a(f"s_add_u32 s{sOff}, s{sOff}, {DUO}")
    a(f"s_sub_u32 s{sCnt}, s{sCnt}, 1")
    a(f"s_cmp_lg_u32 s{sCnt}, 0")
    a(f"s_cbranch_scc1 {name}_sl2")
    a("s_nop 15")
    a(f"s_branch {name}_fin")
    a.label(f"{name}_ld")
    a("s_waitcnt lgkmcnt(0)")
    srd(a, SWS, 6, WS_KV + 32*DUO)
    a(f"s_sub_u32 s{sT0}, s{sW}, 4")
    a(f"s_lshl_b32 s{sT0}, s{sT0}, 10")
    a(f"s_add_u32 s{sT1}, s{sT0}, {WS_KV + 2*DUO}")
    NB = (30*DUO + 4095)//4096
    P1 = 6
    for r in range(NB):
        a(f"s_add_u32 m0, s{sT0}, {r*4096}")
        a(f"s_add_u32 s{sT2}, s{sT1}, {r*4096}")
        a(f"buffer_load_dwordx4 v{vL16}, s[{SWS}:{SWS+3}], s{sT2} offen lds")
    a(f"s_waitcnt vmcnt({NB-P1})")
    a("s_barrier")
    a("s_waitcnt vmcnt(0)")
    a("s_barrier")
    a.label(f"{name}_end")
    a("s_endpgm")
    return dict(name=name, vgpr=256, lds=K2_LDS, block=512, grid=256)
```

```python
from asmlib import *
from layout import *
from k1 import srd, VMQ
K3_LDS = 163840
def gen_k3(a, name='k3_kernel'):
    vLane = 1; vL16 = 2; vG = 3; vPos = 4; vT = list(range(5, 12))
    FB = lambda b: 16 + 24*b
    ACC = lambda i: 96 + 16*i
    sW = 3; sP = 4; sCG = 5; SWS = 8; SO = 12; sA = 16; sB = 17; sT0 = 18; sT1 = 19; sT2 = 20
    R = lambda b, n: f"v[{b}:{b+n-1}]"
    a(f".p2align 8\n.globl {name}\n.type {name},@function")
    a.label(name)
    a("s_cmp_ge_u32 s2, 256")
    a(f"s_cbranch_scc1 {name}_end")
    a("s_load_dwordx2 s[6:7], s[0:1], 96")
    a("s_load_dwordx2 s[22:23], s[0:1], 80")
    a(f"v_lshrrev_b32 v{vT[0]}, 6, v0")
    a(f"v_and_b32 v{vLane}, 63, v0")
    a(f"v_readfirstlane_b32 s{sW}, v{vT[0]}")
    a(f"v_lshlrev_b32 v{vL16}, 4, v{vLane}")
    a(f"v_and_b32 v{vPos}, 31, v{vLane}")
    a(f"s_and_b32 s{sP}, s2, 7")
    a(f"s_lshr_b32 s{sT0}, s2, 5")
    a(f"s_lshl_b32 s{sT0}, s{sT0}, 3")
    a(f"s_add_u32 s{sP}, s{sP}, s{sT0}")
    a(f"s_bfe_u32 s{sCG}, s2, 0x20003")
    for r in range(96, 176): a(f"v_mov_b32 v{r}, 0")
    a(f"v_lshlrev_b32 v{vT[0]}, 2, v{vPos}")
    a("s_waitcnt lgkmcnt(0)")
    srd(a, SWS, 6, WS_END)
    srd(a, SO, 22, S*D*2)
    a(f"s_lshl_b32 s{sT1}, s{sP}, 7")
    a(f"s_add_u32 s{sT1}, s{sT1}, {WS_G}")
    a(f"buffer_load_dword v{vG}, v{vT[0]}, s[{SWS}:{SWS+3}], s{sT1} offen")
    a(f"s_cmp_ge_u32 s{sW}, 2")
    a(f"s_cbranch_scc1 {name}_h")
    def body(nsteps):
        vq = VMQ(); vq.issue('g')
        def loads(s):
            b = FB(s % 3)
            a(f"buffer_load_dwordx4 {R(b,4)}, v{vL16}, s[{SWS}:{SWS+3}], s{sB} offen"); vq.issue(s)
            for i in range(4):
                a(f"buffer_load_dwordx4 {R(b+4+4*i,4)}, v{vL16}, s[{SWS}:{SWS+3}], s{sA} offen offset:{1024*i}"); vq.issue(s)
            a(f"s_add_u32 s{sT0}, s{sA}, 4096")
            a(f"buffer_load_dwordx4 {R(b+20,4)}, v{vL16}, s[{SWS}:{SWS+3}], s{sT0} offen"); vq.issue(s)
            a(f"s_add_u32 s{sB}, s{sB}, 1024")
            a(f"s_add_u32 s{sA}, s{sA}, 5120")
        for s in range(3): loads(s)
        for s in range(nsteps):
            vq.wait(a, s)
            b = FB(s % 3)
            for i in range(5):
                a(f"v_mfma_f32_32x32x16_bf16 {R(ACC(i),16)}, {R(b+4+4*i,4)}, {R(b,4)}, {R(ACC(i),16)}")
            if s + 3 < nsteps: loads(s+3)
    a(f"s_mul_i32 s{sT0}, s{sW}, 20")
    a(f"s_mul_i32 s{sB}, s{sP}, 40")
    a(f"s_add_u32 s{sB}, s{sB}, s{sT0}")
    a(f"s_lshl_b32 s{sB}, s{sB}, 10")
    a(f"s_add_u32 s{sB}, s{sB}, {WS_O}")
    a(f"s_mul_i32 s{sA}, s{sCG}, 40")
    a(f"s_add_u32 s{sA}, s{sA}, s{sT0}")
    a(f"s_mul_i32 s{sA}, s{sA}, 5120")
    a(f"s_add_u32 s{sA}, s{sA}, {WS_WO}")
    body(20)
    a(f"s_branch {name}_red")
    a.label(f"{name}_h")
    a(f"s_sub_u32 s{sT0}, s{sW}, 2")
    a(f"s_mul_i32 s{sT0}, s{sT0}, 18")
    a(f"s_mul_i32 s{sB}, s{sP}, 108")
    a(f"s_add_u32 s{sB}, s{sB}, s{sT0}")
    a(f"s_lshl_b32 s{sB}, s{sB}, 10")
    a(f"s_add_u32 s{sB}, s{sB}, {WS_H}")
    a(f"s_mul_i32 s{sA}, s{sCG}, 108")
    a(f"s_add_u32 s{sA}, s{sA}, s{sT0}")
    a(f"s_mul_i32 s{sA}, s{sA}, 5120")
    a(f"s_add_u32 s{sA}, s{sA}, {WS_WD}")
    body(18)
    a(f"v_sub_f32 v{vG}, 1.0, v{vG}")
    for r in range(96, 176): a(f"v_mul_f32 v{r}, v{r}, v{vG}")
    a.label(f"{name}_red")
    a("s_nop 15")
    a(f"s_mul_i32 s{sT0}, s{sW}, 20480")
    a(f"v_add_u32 v{vT[0]}, s{sT0}, v{vL16}")
    for gidx in range(20):
        a(f"ds_write_b128 v{vT[0]}, {R(96+4*gidx,4)} offset:{1024*gidx}")
    a("s_waitcnt lgkmcnt(0)")
    a("s_barrier")
    a(f"s_cmp_ge_u32 s{sW}, 5")
    a(f"s_cbranch_scc1 {name}_end")
    a(f"s_lshl_b32 s{sT0}, s{sW}, 12")
    a(f"v_add_u32 v{vT[0]}, s{sT0}, v{vL16}")
    a(f"v_add_u32 v{vT[1]}, {3*20480}, v{vT[0]}")
    a(f"v_add_u32 v{vT[2]}, {6*20480}, v{vT[0]}")
    for src in range(8):
        for aa in range(4):
            if src * 4 + aa >= 12 and (src*4+aa) % 4 == 0: a(f"s_waitcnt lgkmcnt(8)")
            a(f"ds_read_b128 {R(16 + 16*src + 4*aa, 4)}, v{vT[src//3]} offset:{(src%3)*20480 + 1024*aa}")
    a(f"v_mul_u32_u24 v{vT[3]}, 1280, v{vPos}")
    a(f"v_lshrrev_b32 v{vT[4]}, 5, v{vLane}")
    a(f"v_lshl_add_u32 v{vT[3]}, v{vT[4]}, 3, v{vT[3]}")
    a(f"s_mul_i32 s{sT0}, s{sP}, {32*1280}")
    a(f"s_mul_i32 s{sT1}, s{sCG}, 320")
    a(f"s_add_u32 s{sT0}, s{sT0}, s{sT1}")
    a(f"s_lshl_b32 s{sT1}, s{sW}, 6")
    a(f"s_add_u32 s{sT0}, s{sT0}, s{sT1}")
    a("s_waitcnt lgkmcnt(0)")
    P = lambda r: f"v[{r}:{r+1}]"
    for (d, s_) in ((0,1),(2,3),(4,5),(6,7),(0,2),(4,6),(0,4)):
        for r in range(0, 16, 2): a(f"v_pk_add_f32 {P(16+16*d+r)}, {P(16+16*d+r)}, {P(16+16*s_+r)}")
    for r in range(8): a(f"v_cvt_pk_bf16_f32 v{32+r}, v{16+2*r}, v{17+2*r}")
    for aa in range(4):
        a(f"buffer_store_dwordx2 {P(32+2*aa)}, v{vT[3]}, s[{SO}:{SO+3}], s{sT0} offen offset:{16*aa}")
    a.label(f"{name}_end")
    a("s_endpgm")
    return dict(name=name, vgpr=176, lds=K3_LDS, block=512, grid=256)
```

```python
S=2048; D=640; H=32; DH=20; F=1728
WS_H   = 0
WS_Q   = WS_H + 64*108*1024
WS_KV  = WS_Q + 64*32*1280
DUO    = 5312
WS_KN  = WS_KV + 32*DUO
WS_G   = WS_KN + 256
WS_O   = WS_G + 8192
WS_WD  = WS_O + 64*40*1024
WS_WO  = WS_WD + 4*108*5120
WS_B   = WS_WO + 4*40*5120
WS_FLAG = WS_B + 2048*640*4
WS_END = WS_FLAG + 3*256*128
WS_SIZE = 268435456
KA = dict(x=0, wq=8, wk=16, wv=24, wo=32, bx=40, wg=48, wu=56, wd=64, gw=72, out=80, dbg=88, ws=96)
import math
QSCALE = math.log2(math.e)/math.sqrt(20.0)
import struct
def f2u(f): return struct.unpack('<I', struct.pack('<f', f))[0]
```

```python
import sys, importlib
sys.path.insert(0, 'gen')
from asmlib import *
from layout import *
HDR = open('gated_mix__grouped_kv_mqa__geglu_ffn__prompt.s.ref').read().split('; Override')[0]
def build(gens, path):
    a = Asm()
    infos = []
    for g in gens:
        infos.append(g(a))
    a.insert_nops()
    errs = []
    for inf in infos:
        errs += a.verify(inf['name'])
    if errs:
        for e in errs[:40]: print(e)
        raise SystemExit("verification failed: %d errors" % len(errs))
    out = HDR
    for inf in infos:
        out += f"; @launch kernel={inf['name']} grid=({inf['grid']},1,1) block=({inf['block']},1,1) lds={inf['lds']}\n"
    out += '.amdgcn_target "amdgcn-amd-amdhsa--gfx950"\n.text\n'
    out += a.text()
    out += '.section .rodata,"a"\n'
    for inf in infos:
        out += kd(inf['name'], inf['vgpr'])
    open(path, 'w').write(out)
    print("wrote", path, len(out), "bytes;", sum(1 for i in a.ins if i.cls not in ('label','directive')), "instructions")
if __name__ == '__main__':
    import k1
    gens = [k1.gen_k1]
    try:
        import k2; gens.append(k2.gen_k2)
    except ImportError as e:
        print("partial build:", e)
    build(gens, sys.argv[1] if len(sys.argv) > 1 else 'gated_mix__grouped_kv_mqa__geglu_ffn__prompt.s')
```

```python
from asmlib import *
from layout import *

def srd(a, d, base, size):
    a(f"s_mov_b32 s{d}, s{base}")
    a(f"s_and_b32 s{d+1}, s{base+1}, 0xffff")
    a(f"s_mov_b32 s{d+2}, {size}")
    a(f"s_mov_b32 s{d+3}, 0x20000")

class VMQ:
    def __init__(self): self.q = []
    def issue(self, tag): self.q.append(tag)
    def wait(self, a, tag, extra=''):
        last = max(i for i, t in enumerate(self.q) if t == tag)
        n = len(self.q) - 1 - last
        assert n <= 63
        a(f"s_waitcnt vmcnt({n}){extra}")
        self.q = self.q[last+1:]
    def copy(self):
        v = VMQ(); v.q = list(self.q); return v

L_X = 0
L_W = 98304
L_S = 147456
K1_LDS = 163840

STAMP = False
TOUCH = True
def gen_k1(a, name='k1_kernel'):
    vST = 175
    def stamp(i):
        if not STAMP: return
        a("s_memtime s[92:93]")
        a("s_waitcnt lgkmcnt(0)")
        a(f"v_writelane_b32 v{vST}, s92, {i}")
    def stamp_out():
        if not STAMP: return
        stamp(63)
        a("s_memrealtime s[92:93]")
        a("s_waitcnt lgkmcnt(0)")
        a(f"v_writelane_b32 v{vST}, s92, 61")
        a("s_lshl_b32 s92, s2, 3")
        a("s_add_u32 s92, s92, s3")
        a("s_lshl_b32 s92, s92, 8")
        a(f"s_add_u32 s92, s92, {WS_END}")
        a("v_lshlrev_b32 v174, 2, v11")
        a(f"buffer_store_dword v{vST}, v174, s[20:23], s92 offen")
    vXA = [1,2,3,4]; vWA = 5; vKA = 6; vXD = [7,8]; vWD = 9; vL16 = 10; vLane = 11; vT = [12,13,14,15,16,17,18,19]
    FX = lambda b,t: 24 + b*8 + t*4
    FW = lambda b,p: 40 + b*8 + p*4
    FK = lambda b: 56 + b*4
    ACC = lambda p,t: 64 + (p*2+t)*16
    JACC = 128
    TMP = 144
    sW = 3
    sRB = 4; sCT = 5
    SX = 8; SA = 12; SB = 16; SWS = 20; SK = 24; SV = 28; SR = 32
    sXoff = 40; sWoff = 41; sLdw = 42; sM0x = 43; sM0w = 44; sT0 = 45; sT1 = 46; sT2 = 47; sT3=48; sWstep = 49; sP = 50; sKoff = 51; sM0k = 52; sExecK=54
    sWoffB = 56
    a(f".p2align 8\n.globl {name}\n.type {name},@function")
    a.label(name)
    a(f"s_cmp_ge_u32 s2, 256")
    a(f"s_cbranch_scc1 {name}_end")
    a("s_load_dwordx4 s[60:63], s[0:1], 0")
    a("s_load_dwordx4 s[64:67], s[0:1], 16")
    a("s_load_dwordx2 s[68:69], s[0:1], 32")
    a("s_load_dwordx4 s[72:75], s[0:1], 48")
    a("s_load_dwordx4 s[76:79], s[0:1], 64")
    a("s_load_dwordx2 s[80:81], s[0:1], 96")
    if STAMP:
        a("s_memtime s[94:95]")
        a("s_memrealtime s[96:97]")
    a(f"v_lshrrev_b32 v{vT[0]}, 6, v0")
    a(f"v_and_b32 v{vLane}, 63, v0")
    a(f"v_readfirstlane_b32 s{sW}, v{vT[0]}")
    a(f"s_and_b32 s{sT0}, s2, 7")
    a(f"s_lshr_b32 s{sT1}, s2, 3")
    a(f"s_and_b32 s{sRB}, s{sT0}, 1")
    a(f"s_lshl_b32 s{sRB}, s{sRB}, 2")
    a(f"s_and_b32 s{sT2}, s{sT1}, 3")
    a(f"s_add_u32 s{sRB}, s{sRB}, s{sT2}")
    a(f"s_lshr_b32 s{sCT}, s{sT0}, 1")
    a(f"s_lshl_b32 s{sCT}, s{sCT}, 3")
    a(f"s_lshr_b32 s{sT2}, s{sT1}, 2")
    a(f"s_add_u32 s{sCT}, s{sCT}, s{sT2}")
    L = vLane
    t0,t1,t2,t3,t4,t5 = vT[:6]
    a(f"v_lshlrev_b32 v{vL16}, 4, v{L}")
    a(f"v_lshrrev_b32 v{t0}, 3, v{L}")
    a(f"v_and_b32 v{t1}, 7, v{L}")
    a(f"v_lshrrev_b32 v{t2}, 1, v{t0}")
    a(f"v_xor_b32 v{t3}, v{t1}, v{t2}")
    a(f"v_mul_u32_u24 v{t4}, 1280, v{t0}")
    a(f"v_lshl_add_u32 v{vXD[0]}, v{t3}, 4, v{t4}")
    a(f"v_xor_b32 v{t3}, 4, v{t3}")
    a(f"v_lshl_add_u32 v{vXD[1]}, v{t3}, 4, v{t4}")
    a(f"v_add_u32 v{vXD[1]}, {8*1280}, v{vXD[1]}")
    a(f"v_and_b32 v{t3}, 1, v{t2}")
    a(f"v_lshlrev_b32 v{t3}, 2, v{t3}")
    a(f"v_xor_b32 v{t3}, v{t3}, v{t1}")
    a(f"v_lshlrev_b32 v{vWD}, 4, v{t3}")
    a(f"v_and_b32 v{t1}, 31, v{L}")
    a(f"v_lshrrev_b32 v{t2}, 5, v{L}")
    a(f"v_bfe_u32 v{t3}, v{L}, 1, 3")
    a(f"v_xor_b32 v{t3}, v{t3}, v{t2}")
    a(f"v_lshlrev_b32 v{t3}, 4, v{t3}")
    a(f"v_lshl_add_u32 v{t3}, v{t1}, 7, v{t3}")
    a(f"s_lshr_b32 s{sT0}, s{sW}, 1")
    a(f"s_mul_i32 s{sT0}, s{sT0}, 24576")
    a(f"v_add_u32 v{vXA[0]}, s{sT0}, v{t3}")
    for s in range(1,4):
        a(f"v_xor_b32 v{vXA[s]}, {32*s}, v{vXA[0]}")
    a(f"v_bfe_u32 v{t1}, v{L}, 2, 2")
    a(f"v_and_b32 v{t3}, 3, v{L}")
    a(f"v_bfe_u32 v{t4}, v{L}, 4, 1")
    a(f"v_lshlrev_b32 v{t3}, 3, v{t3}")
    a(f"v_lshl_add_u32 v{t3}, v{t4}, 5, v{t3}")
    a(f"v_lshrrev_b32 v{t4}, 1, v{t1}")
    a(f"s_and_b32 s{sT0}, s{sW}, 1")
    a(f"v_xor_b32 v{t4}, s{sT0}, v{t4}")
    a(f"v_lshl_add_u32 v{t4}, v{t4}, 6, v{t3}")
    a(f"v_lshl_add_u32 v{t5}, v{t2}, 3, v{t1}")
    a(f"v_lshl_add_u32 v{vWA}, v{t5}, 7, v{t4}")
    a(f"v_add_u32 v{vWA}, {L_W}, v{vWA}")
    a(f"v_mul_u32_u24 v{vKA}, 40, v{t5}")
    a(f"v_add_u32 v{vKA}, v{vKA}, v{t3}")
    a(f"s_mul_i32 s{sT0}, s{sT0}, 2560")
    a(f"s_add_u32 s{sT0}, s{sT0}, {L_S}")
    a(f"v_add_u32 v{vKA}, s{sT0}, v{vKA}")
    a(f"v_lshl_add_u32 v{t5}, v{t2}, 2, v{t1}")
    a(f"v_lshrrev_b32 v{t4}, 1, v{t1}")
    a(f"v_lshl_add_u32 v{t4}, v{t4}, 6, v{t3}")
    a(f"v_lshl_add_u32 v{vT[6]}, v{t5}, 7, v{t4}")
    a(f"s_lshl_b32 s{sT0}, s{sW}, 11")
    a(f"s_add_u32 s{sT0}, s{sT0}, {L_S}")
    a(f"v_add_u32 v{vT[6]}, s{sT0}, v{vT[6]}")
    a(f"v_xor_b32 v{vT[7]}, 64, v{vT[6]}")
    a(f"s_lshl_b32 s{sT0}, s{sRB}, 8")
    a(f"s_lshl_b32 s{sT1}, s{sW}, 5")
    a(f"s_add_u32 s{sT0}, s{sT0}, s{sT1}")
    a(f"s_mul_i32 s{sXoff}, s{sT0}, 1280")
    a(f"s_lshr_b32 s{sT0}, s{sW}, 1")
    a(f"s_mul_i32 s{sM0x}, s{sT0}, 24576")
    a(f"s_and_b32 s{sT0}, s{sW}, 1")
    a(f"s_lshl_b32 s{sT0}, s{sT0}, 12")
    a(f"s_add_u32 s{sM0x}, s{sM0x}, s{sT0}")
    a(f"s_lshl_b32 s{sM0w}, s{sW}, 10")
    a(f"s_add_u32 s{sM0w}, s{sM0w}, {L_W}")
    a("s_waitcnt lgkmcnt(0)")
    stamp(1)
    if STAMP:
        a(f"v_writelane_b32 v{vST}, s94, 0")
        a(f"v_writelane_b32 v{vST}, s96, 62")
    srd(a, SX, 60, S*D*2)
    srd(a, SWS, 80, WS_END + (1<<20))
    a(f"s_cmp_ge_u32 s{sCT}, 27")
    a(f"s_cbranch_scc1 {name}_q")

    def dma_list(vq, c, kv):
        st = c % 3
        L = []
        def xd(j):
            a(f"s_add_u32 m0, s{sM0x}, {st*8192 + j*1024}")
            a(f"s_add_u32 s{sT0}, s{sXoff}, {c*128 + (j>>1)*16*1280}")
            a(f"buffer_load_dwordx4 v{vXD[j&1]}, s[{SX}:{SX+3}], s{sT0} offen lds")
            vq.issue(('c', c))
        def wd(p):
            a(f"s_add_u32 m0, s{sM0w}, {st*16384 + p*8192}")
            a(f"s_mul_i32 s{sT1}, s{sWstep}, {c}")
            a(f"s_add_u32 s{sT0}, s{sWoffB if p else sWoff}, s{sT1}")
            a(f"buffer_load_dwordx4 v{vWD}, s[{SB if p else SA}:{(SB if p else SA)+3}], s{sT0} offen lds")
            vq.issue(('c', c))
        def kd_():
            a(f"s_add_u32 m0, s{sM0k}, {st*5120}")
            a(f"s_add_u32 s{sT0}, s{sKoff}, {c*2560}")
            a(f"s_mov_b64 exec, s[{sExecK}:{sExecK+1}]")
            a(f"buffer_load_dwordx4 v{vL16}, s[{SK}:{SK+3}], s{sT0} offen lds")
            a(f"s_mov_b64 exec, -1")
            vq.issue(('c', c))
        L = [lambda: wd(0), lambda: wd(1)] + [(lambda j=j: xd(j)) for j in range(4)]
        if kv: L.append(kd_)
        return L
    def dma_chunk(vq, c, kv):
        for f in dma_list(vq, c, kv): f()
    STC = 36; sTch = 57; sTstep = 58; vTch = 20
    def touch_setup(ldw):
        a(f"s_lshr_b32 s{sT2}, s2, 3")
        a(f"s_lshr_b32 s{sT0}, s{sT2}, 2")
        a(f"s_lshl_b32 s{sT0}, s{sT0}, 5")
        a(f"s_lshl_b32 s{sT1}, s{sW}, 3")
        a(f"s_add_u32 s{sT0}, s{sT0}, s{sT1}")
        a(f"s_lshl_b32 s{sT1}, s{sRB}, 8")
        a(f"s_add_u32 s{sT0}, s{sT0}, s{sT1}")
        a(f"s_mul_i32 s{sTch}, s{sT0}, 1280")
        a(f"s_and_b32 s{sT2}, s{sT2}, 3")
        a(f"s_lshl_b32 s{sT2}, s{sT2}, 1")
        a(f"s_and_b32 s{sT0}, s{sW}, 1")
        a(f"s_add_u32 s{sT2}, s{sT2}, s{sT0}")
        a(f"s_sub_u32 s{sT2}, s{sT2}, s{sW}")
        a(f"s_mul_i32 s{sT2}, s{sT2}, {8*ldw}")
        a(f"s_cmp_ge_u32 s{sW}, 6")
        a(f"s_cselect_b32 s{sT0}, s{sWoffB}, s{sWoff}")
        a(f"s_cselect_b32 s{STC}, s{SB}, s{SA}")
        a(f"s_cselect_b32 s{STC+1}, s{SB+1}, s{SA+1}")
        a(f"s_add_u32 s{sT2}, s{sT2}, s{sT0}")
        a(f"s_cmp_ge_u32 s{sW}, 4")
        a(f"s_cselect_b32 s{sTch}, s{sT2}, s{sTch}")
        a(f"s_cselect_b32 s{STC}, s{STC}, s{SX}")
        a(f"s_cselect_b32 s{STC+1}, s{STC+1}, s{SX+1}")
        a(f"s_cselect_b32 s{STC+2}, s{SA+2}, s{SX+2}")
        a(f"s_mov_b32 s{STC+3}, 0x20000")
        a(f"s_mov_b32 s{sTstep}, 128")
        a(f"s_cselect_b32 s{sTstep}, s{sWstep}, s{sTstep}")
        a(f"s_mov_b32 s{sT0}, 1280")
        a(f"s_cselect_b32 s{sT0}, {ldw}, s{sT0}")
        a(f"v_mul_lo_u32 v{vTch}, s{sT0}, v{L}")
    def touch(vq, c):
        a(f"s_mul_i32 s{sT0}, s{sTstep}, {c}")
        a(f"s_add_u32 s{sT0}, s{sT0}, s{sTch}")
        a(f"s_mov_b64 exec, 0xff")
        a(f"buffer_load_dword v{vTch+1}, v{vTch}, s[{STC}:{STC+3}], s{sT0} offen"); vq.issue('t')
        a(f"s_mov_b64 exec, -1")

    def reads(gs, job):
        c, s = divmod(gs, 4); st = c % 3; b = gs & 1
        out = []
        for t in range(2):
            out.append(f"ds_read_b128 v[{FX(b,t)}:{FX(b,t)+3}], v{vXA[s]} offset:{st*8192 + t*4096}")
        for p in range(2):
            for e in range(2):
                out.append(f"ds_read_b64_tr_b16 v[{FW(b,p)+2*e}:{FW(b,p)+2*e+1}], v{vWA} offset:{st*16384 + p*8192 + (16*s+4*e)*128}")
        if job in ('K0','K1','V0','V1'):
            for e in range(2):
                out.append(f"ds_read_b64_tr_b16 v[{FK(b)+2*e}:{FK(b)+2*e+1}], v{vKA} offset:{st*5120 + (16*s+4*e)*40}")
        elif job == 'G':
            out.append(f"ds_read_b128 v[{FK(b)}:{FK(b)+3}], v{vKA} offset:{gs*32}")
        return out

    def mfmas(gs, job):
        b = gs & 1
        out = []
        for p in range(2):
            for t in range(2):
                A = ACC(p,t)
                C = f"v[{A}:{A+15}]" if gs else "0"
                out.append(f"v_mfma_f32_32x32x16_bf16 v[{A}:{A+15}], v[{FW(b,p)}:{FW(b,p)+3}], v[{FX(b,t)}:{FX(b,t)+3}], {C}")
        if job:
            t = {'K0':0,'K1':1,'V0':0,'V1':1,'G0':0,'G1':1}[job]
            fk = f"v[{FK(b)}:{FK(b)+3}]"; fx = f"v[{FX(b,t)}:{FX(b,t)+3}]"
            C = f"v[{JACC}:{JACC+15}]" if gs else "0"
            if job[0] == 'V': out.append(f"v_mfma_f32_32x32x16_bf16 v[{JACC}:{JACC+15}], {fx}, {fk}, {C}")
            else: out.append(f"v_mfma_f32_32x32x16_bf16 v[{JACC}:{JACC+15}], {fk}, {fx}, {C}")
        return out

    def mainloop(vq, job, kv, hook=None):
        rj = 'G' if (job and job[0] == 'G') else job
        stamp(2)
        vq.wait(a, ('c', 0))
        stamp(3)
        a("s_barrier")
        stamp(4)
        for r in reads(0, rj): a(r)
        pend = dma_list(vq, 2, kv) + [lambda: touch(vq, 4)]
        for gs in range(40):
            c, s = divmod(gs, 4)
            a("s_waitcnt lgkmcnt(0)")
            if s == 3 and c < 9:
                assert not pend
                stamp(5+3*c)
                vq.wait(a, ('c', c+1))
                stamp(6+3*c)
                a("s_barrier")
                stamp(7+3*c)
                if c + 3 < 10: pend = dma_list(vq, c+3, kv)
                if TOUCH and c + 5 < 10: pend.append(lambda c=c: touch(vq, c+5))
            M = mfmas(gs, job)
            R = reads(gs+1, rj) if gs < 39 else []
            nd = {3: 2, 0: 2, 1: 2, 2: 3}[s]
            if gs < 3: nd = 3
            if kv and s in (0,1): nd = 3
            ri = 0
            for mi, m in enumerate(M):
                a(m)
                k = 2 if mi < len(M)-1 else len(R)
                for r in R[ri:ri+k]: a(r)
                ri += k
                if mi >= 1 and nd > 0 and pend:
                    pend.pop(0)(); nd -= 1
            if hook: hook(vq, gs)
        stamp(40)

    srd(a, SA, 72, D*F*2)
    srd(a, SB, 74, D*F*2)
    a(f"v_mul_u32_u24 v{t0}, {F*2}, v{t0}")
    a(f"v_add_u32 v{TMP}, v{vWD}, v{t0}")
    a(f"v_lshrrev_b32 v{t0}, 3, v{L}")
    a(f"v_mul_u32_u24 v{t0}, 1280, v{t0}")
    a(f"v_add_u32 v{TMP+1}, v{vWD}, v{t0}")
    a(f"v_mov_b32 v{vWD}, v{TMP}")
    a(f"s_mul_i32 s{sWoff}, s{sW}, {8*F*2}")
    a(f"s_lshl_b32 s{sT0}, s{sCT}, 7")
    a(f"s_add_u32 s{sWoff}, s{sWoff}, s{sT0}")
    a(f"s_mov_b32 s{sWoffB}, s{sWoff}")
    a(f"s_mov_b32 s{sWstep}, {64*F*2}")
    sU = 84; sK16 = 85; sGrp = 86; sNK = 87; sDst = 88; sIsWo = 89
    a(f"s_mul_i32 s{sU}, s{sRB}, 27")
    a(f"s_add_u32 s{sU}, s{sU}, s{sCT}")
    a(f"s_lshl_b32 s{sU}, s{sU}, 3")
    a(f"s_add_u32 s{sU}, s{sU}, s{sW}")
    a(f"s_min_u32 s{sU}, s{sU}, 1479")
    a(f"s_cmp_ge_u32 s{sU}, 1080")
    a(f"s_cselect_b32 s{SR}, s68, s76")
    a(f"s_cselect_b32 s{SR+1}, s69, s77")
    a(f"s_mov_b32 s{SR+2}, {F*D*2}")
    a(f"s_cselect_b32 s{SR+2}, {D*D*2}, s{SR+2}")
    a(f"s_cselect_b32 s{sNK}, 40, 108")
    a(f"s_mov_b32 s{sDst}, {WS_WD}")
    a(f"s_cselect_b32 s{sDst}, {WS_WO}, s{sDst}")
    a(f"s_cselect_b32 s{sT0}, 1080, 0")
    a(f"s_and_b32 s{SR+1}, s{SR+1}, 0xffff")
    a(f"s_mov_b32 s{SR+3}, 0x20000")
    a(f"s_sub_u32 s{sU}, s{sU}, s{sT0}")
    a(f"s_mul_hi_u32 s{sK16}, s{sU}, {(2**32+9)//10}")
    a(f"s_mul_i32 s{sT0}, s{sK16}, 10")
    a(f"s_sub_u32 s{sGrp}, s{sU}, s{sT0}")
    a(f"s_mul_i32 s{sT0}, s{sK16}, {16*1280}")
    a(f"s_lshl_b32 s{sT1}, s{sGrp}, 7")
    a(f"s_add_u32 s{sT0}, s{sT0}, s{sT1}")
    vq = VMQ()
    a(f"s_mov_b32 s{sT3}, s{sT0}")
    dma_chunk(vq, 0, False)
    a("s_barrier")
    dma_chunk(vq, 1, False)
    touch_setup(F*2)
    touch(vq, 2); touch(vq, 3)
    sD = [90, 91]
    for c in range(2):
        a(f"s_lshl_b32 s{sT0}, s{sGrp}, 1")
        if c: a(f"s_add_u32 s{sT0}, s{sT0}, 1")
        a(f"s_mul_hi_u32 s{sT1}, s{sT0}, {(2**32+4)//5}")
        a(f"s_mul_i32 s{sT2}, s{sT1}, 5")
        a(f"s_sub_u32 s{sT2}, s{sT0}, s{sT2}")
        a(f"s_mul_i32 s{sT1}, s{sT1}, s{sNK}")
        a(f"s_add_u32 s{sT1}, s{sT1}, s{sK16}")
        a(f"s_mul_i32 s{sT1}, s{sT1}, 5120")
        a(f"s_lshl_b32 s{sT2}, s{sT2}, 10")
        a(f"s_add_u32 s{sT1}, s{sT1}, s{sT2}")
        a(f"s_add_u32 s{sD[c]}, s{sT1}, s{sDst}")
    def relayout(vq, gs):
        if gs == 21:
            a(f"s_lshl_b32 s{sT2}, s{sW}, 11")
            a(f"s_add_u32 m0, s{sT2}, {L_S}")
            a("s_nop 0")
            a(f"buffer_load_dwordx4 v{TMP+1}, s[{SR}:{SR+3}], s{sT3} offen lds"); vq.issue('rl')
            a(f"s_add_u32 m0, s{sT2}, {L_S+1024}")
            a(f"s_add_u32 s{sT3}, s{sT3}, {8*1280}")
            a(f"buffer_load_dwordx4 v{TMP+1}, s[{SR}:{SR+3}], s{sT3} offen lds"); vq.issue('rl')
        if gs == 32:
            assert 'rl' not in vq.q
            for c in range(2):
                for e in range(2):
                    a(f"ds_read_b64_tr_b16 v[{TMP+8+4*c+2*e}:{TMP+8+4*c+2*e+1}], v{vT[6+c]} offset:{8*e*128}")
        if gs == 33:
            for c in range(2):
                a(f"buffer_store_dwordx4 v[{TMP+8+4*c}:{TMP+8+4*c+3}], v{vL16}, s[{SWS}:{SWS+3}], s{sD[c]} offen"); vq.issue('st')
    mainloop(vq, None, False, relayout)
    c0 = -2.0*math.sqrt(2.0/math.pi)*math.log2(math.e); c1 = c0*0.044715
    vC0 = 24; vC1 = 26; vOne = 28
    for r, val in ((vC0, c0), (vC1, c1), (vOne, 1.0)):
        a(f"v_mov_b32 v{r}, {f2u(val):#x}"); a(f"v_mov_b32 v{r+1}, {f2u(val):#x}")
    a(f"s_lshl_b32 s{sT0}, s{sRB}, 3")
    a(f"s_and_b32 s{sT1}, s{sW}, 6")
    a(f"s_add_u32 s{sT0}, s{sT0}, s{sT1}")
    a(f"s_mul_i32 s{sT0}, s{sT0}, 108")
    a(f"s_lshl_b32 s{sT1}, s{sCT}, 2")
    a(f"s_add_u32 s{sT0}, s{sT0}, s{sT1}")
    a(f"s_and_b32 s{sT1}, s{sW}, 1")
    a(f"s_lshl_b32 s{sT1}, s{sT1}, 1")
    a(f"s_add_u32 s{sT0}, s{sT0}, s{sT1}")
    a(f"s_lshl_b32 s{sT0}, s{sT0}, 10")
    a(f"s_add_u32 s{sT0}, s{sT0}, {WS_H}")
    a(f"s_add_u32 s{sT1}, s{sT0}, {108*1024}")
    P = lambda r: f"v[{r}:{r+1}]"
    for t in range(2):
        G = ACC(0,t); U = ACC(1,t)
        for m in range(2):
            T = TMP + 8*m
            O = 32 + 4*(2*t+m)
            for j in range(4): a(f"v_pk_mul_f32 {P(T+2*j)}, {P(G+8*m+2*j)}, {P(G+8*m+2*j)}")
            for j in range(4): a(f"v_pk_fma_f32 {P(T+2*j)}, {P(T+2*j)}, {P(vC1)}, {P(vC0)}")
            for j in range(4): a(f"v_pk_mul_f32 {P(T+2*j)}, {P(T+2*j)}, {P(G+8*m+2*j)}")
            for j in range(8): a(f"v_exp_f32 v{T+j}, v{T+j}")
            for j in range(4): a(f"v_pk_mul_f32 {P(U+8*m+2*j)}, {P(U+8*m+2*j)}, {P(G+8*m+2*j)}")
            for j in range(4): a(f"v_pk_add_f32 {P(T+2*j)}, {P(T+2*j)}, {P(vOne)}")
            for j in range(8): a(f"v_rcp_f32 v{T+j}, v{T+j}")
            for j in range(4): a(f"v_pk_mul_f32 {P(U+8*m+2*j)}, {P(U+8*m+2*j)}, {P(T+2*j)}")
            for j in range(4): a(f"v_cvt_pk_bf16_f32 v{O+j}, v{U+8*m+2*j}, v{U+8*m+2*j+1}")
            a(f"buffer_store_dwordx4 v[{O}:{O+3}], v{vL16}, s[{SWS}:{SWS+3}], s{sT0 if t == 0 else sT1} offen offset:{m*1024}")
    stamp_out()
    a("s_endpgm")

    QAD = TMP + 16; vQS = TMP + 24
    def qaddr():
        vH = TMP+8; vPos = TMP+9; vG = TMP+10; vHd = TMP+11; vJ = TMP+12; vA1 = TMP+13; vA2 = TMP+14
        a(f"v_lshrrev_b32 v{vH}, 5, v{L}")
        a(f"v_and_b32 v{vPos}, 31, v{L}")
        a(f"v_mov_b32 v{vQS}, {f2u(QSCALE):#x}")
        a(f"v_mov_b32 v{vQS+1}, {f2u(QSCALE):#x}")
        a(f"s_lshl_b32 s{sT0}, s{sCQ}, 5")
        a(f"s_and_b32 s{sT1}, s{sW}, 1")
        a(f"s_lshl_b32 s{sT1}, s{sT1}, 3")
        a(f"s_add_u32 s{sT0}, s{sT0}, s{sT1}")
        a(f"v_add_u32 v{vH}, s{sT0}, v{vH}")
        a(f"v_lshlrev_b32 v{vA2}, 3, v{vPos}")
        a(f"v_add_u32 v{vA2}, 1024, v{vA2}")
        for p in range(2):
            for aa in range(4):
                a(f"v_add_u32 v{vG}, {p*16 + 2*aa}, v{vH}")
                a(f"v_mul_u32_u24 v{vHd}, 205, v{vG}")
                a(f"v_lshrrev_b32 v{vHd}, 10, v{vHd}")
                a(f"v_mul_u32_u24 v{vJ}, 5, v{vHd}")
                a(f"v_sub_u32 v{vJ}, v{vG}, v{vJ}")
                a(f"v_and_b32 v{vA1}, 1, v{vJ}")
                a(f"v_lshl_add_u32 v{vA1}, v{vA1}, 5, v{vPos}")
                a(f"v_lshlrev_b32 v{vA1}, 4, v{vA1}")
                a(f"v_lshrrev_b32 v{vG}, 1, v{vJ}")
                a(f"v_lshl_add_u32 v{vA1}, v{vG}, 3, v{vA1}")
                a(f"v_cmp_eq_u32 vcc, 4, v{vJ}")
                a(f"v_mul_u32_u24 v{vHd}, 1280, v{vHd}")
                a(f"v_cndmask_b32 v{vA1}, v{vA1}, v{vA2}, vcc")
                a(f"v_add_u32 v{QAD+4*p+aa}, v{vA1}, v{vHd}")
    a.label(f"{name}_q")
    sCQ = 84
    a(f"s_sub_u32 s{sCQ}, s{sCT}, 27")
    srd(a, SA, 62, D*D*2)
    srd(a, SB, 62, D*D*2)
    a(f"v_mul_u32_u24 v{t0}, 1280, v{t0}")
    a(f"v_add_u32 v{vWD}, v{vWD}, v{t0}")
    a(f"s_mul_i32 s{sWoff}, s{sW}, {8*1280}")
    a(f"s_lshl_b32 s{sT0}, s{sCQ}, 8")
    a(f"s_add_u32 s{sWoff}, s{sWoff}, s{sT0}")
    a(f"s_add_u32 s{sWoffB}, s{sWoff}, 128")
    a(f"s_mov_b32 s{sWstep}, {64*1280}")
    a(f"s_cmp_eq_u32 s{sCQ}, 4")
    a(f"s_cbranch_scc1 {name}_qg")
    a(f"s_min_u32 s{sT0}, s{sW}, 5")
    a(f"s_cmp_ge_u32 s{sT0}, 3")
    a(f"s_cselect_b32 s{SK}, s66, s64")
    a(f"s_cselect_b32 s{SK+1}, s67, s65")
    a(f"s_cselect_b32 s{sT1}, 3, 0")
    a(f"s_mov_b32 s{sM0k}, {L_S}")
    a(f"s_cselect_b32 s{sM0k}, {L_S+2560}, s{sM0k}")
    a(f"s_and_b32 s{SK+1}, s{SK+1}, 0xffff")
    a(f"s_mov_b32 s{SK+2}, {D*DH*2}")
    a(f"s_mov_b32 s{SK+3}, 0x20000")
    a(f"s_sub_u32 s{sT0}, s{sT0}, s{sT1}")
    a(f"s_lshl_b32 s{sKoff}, s{sT0}, 10")
    a(f"s_add_u32 s{sM0k}, s{sM0k}, s{sKoff}")
    a(f"s_cmp_eq_u32 s{sT0}, 2")
    a(f"s_mov_b32 s{sExecK}, -1")
    a(f"s_cselect_b32 s{sExecK+1}, 0, -1")
    vq0 = VMQ()
    dma_chunk(vq0, 0, True)
    a("s_barrier")
    dma_chunk(vq0, 1, True)
    touch_setup(1280)
    touch(vq0, 2); touch(vq0, 3)
    qaddr()
    a(f"s_lshr_b32 s{sT0}, s{sW}, 2")
    a(f"s_lshr_b32 s{sT1}, s{sCQ}, 1")
    a(f"s_cmp_lg_u32 s{sT0}, s{sT1}")
    a(f"s_cbranch_scc1 {name}_qN")
    a(f"s_and_b32 s{sT0}, s{sCQ}, 1")
    a(f"s_and_b32 s{sT1}, s{sW}, 1")
    a(f"s_lshl_b32 s{sT1}, s{sT1}, 1")
    a(f"s_or_b32 s{sT0}, s{sT0}, s{sT1}")
    a(f"s_lshl_b32 s{sP}, s{sRB}, 3")
    a(f"s_and_b32 s{sT1}, s{sW}, 6")
    a(f"s_add_u32 s{sP}, s{sP}, s{sT1}")
    a(f"s_and_b32 s{sT1}, s{sCQ}, 1")
    a(f"s_add_u32 s{sP}, s{sP}, s{sT1}")
    a(f"s_cmp_eq_u32 s{sT0}, 1"); a(f"s_cbranch_scc1 {name}_qK1")
    a(f"s_cmp_eq_u32 s{sT0}, 2"); a(f"s_cbranch_scc1 {name}_qV0")
    a(f"s_cmp_eq_u32 s{sT0}, 3"); a(f"s_cbranch_scc1 {name}_qV1")

    def kv_base():
        a(f"s_lshr_b32 s{sT2}, s{sP}, 1")
        a(f"s_mul_i32 s{sT2}, s{sT2}, {DUO}")
        a(f"s_add_u32 s{sT2}, s{sT2}, {WS_KV}")
        a(f"s_and_b32 s{sT3}, s{sP}, 1")
    def k_epi():
        J = JACC
        kv_base()
        for j in range(6): a(f"v_cvt_pk_bf16_f32 v{TMP+j}, v{J+2*j}, v{J+2*j+1}")
        a(f"s_lshl_b32 s{sT0}, s{sT3}, 10")
        a(f"s_add_u32 s{sT0}, s{sT0}, s{sT2}")
        a(f"buffer_store_dwordx4 v[{TMP}:{TMP+3}], v{vL16}, s[{SWS}:{SWS+3}], s{sT0} offen")
        a(f"s_lshl_b32 s{sT0}, s{sT3}, 3")
        a(f"s_add_u32 s{sT0}, s{sT0}, s{sT2}")
        a(f"s_add_u32 s{sT0}, s{sT0}, 2048")
        a(f"v_mov_b32 v{TMP+8}, 0")
        a(f"v_mov_b32 v{TMP+9}, 0")
        for j in range(4): a(f"v_dot2c_f32_bf16 v{TMP+8}, v{TMP+j}, v{TMP+j}")
        a(f"s_mov_b32 exec_hi, 0")
        a(f"buffer_store_dwordx2 v[{TMP+4}:{TMP+5}], v{vL16}, s[{SWS}:{SWS+3}], s{sT0} offen")
        for j in range(4,6): a(f"v_dot2c_f32_bf16 v{TMP+9}, v{TMP+j}, v{TMP+j}")
        a(f"s_mov_b64 exec, -1")
        a(f"v_add_f32 v{TMP+8}, v{TMP+8}, v{TMP+9}")
        a(f"v_mov_b32 v{TMP+9}, v{TMP+8}")
        a(f"v_permlane32_swap_b32 v{TMP+8}, v{TMP+9}")
        a(f"v_add_f32 v{TMP+8}, v{TMP+8}, v{TMP+9}")
        for sh in (1,2,4,8):
            a(f"v_max_f32_dpp v{TMP+8}, v{TMP+8}, v{TMP+8} row_shr:{sh} row_mask:0xf bank_mask:0xf")
        a(f"v_readlane_b32 s{sT0}, v{TMP+8}, 15")
        a(f"v_readlane_b32 s{sT1}, v{TMP+8}, 31")
        a(f"s_max_u32 s{sT0}, s{sT0}, s{sT1}")
        a(f"v_mov_b32 v{TMP+8}, s{sT0}")
        a(f"s_lshl_b32 s{sT1}, s{sP}, 2")
        a(f"s_add_u32 s{sT1}, s{sT1}, {WS_KN}")
        a(f"v_mov_b32 v{TMP+9}, 0")
        a(f"s_mov_b64 exec, 1")
        a(f"buffer_store_dword v{TMP+8}, v{TMP+9}, s[{SWS}:{SWS+3}], s{sT1} offen")
        a(f"s_mov_b64 exec, -1")
    def v_epi():
        J = JACC
        kv_base()
        for j in range(8): a(f"v_cvt_pk_bf16_f32 v{TMP+j}, v{J+2*j}, v{J+2*j+1}")
        a(f"s_mov_b32 exec_lo, {1<<20}")
        a(f"s_mov_b32 exec_hi, {1<<20}")
        for j in range(8): a(f"v_mov_b32 v{TMP+j}, 0x3f803f80")
        a(f"s_mov_b32 exec_lo, 0")
        a(f"s_mov_b32 exec_hi, {1<<21}")
        for j in range(8): a(f"v_mov_b32 v{TMP+j}, 0")
        a(f"s_mov_b32 exec_lo, {(1<<21)-1}")
        a(f"s_mov_b32 exec_hi, {(1<<22)-1}")
        a(f"v_lshrrev_b32 v{TMP+8}, 5, v{L}")
        a(f"v_mul_u32_u24 v{TMP+8}, 336, v{TMP+8}")
        a(f"v_and_b32 v{TMP+9}, 31, v{L}")
        a(f"v_lshl_add_u32 v{TMP+8}, v{TMP+9}, 4, v{TMP+8}")
        a(f"s_mul_i32 s{sT0}, s{sT3}, 1376")
        a(f"s_add_u32 s{sT0}, s{sT0}, s{sT2}")
        a(f"s_add_u32 s{sT0}, s{sT0}, 2560")
        a(f"buffer_store_dwordx4 v[{TMP}:{TMP+3}], v{TMP+8}, s[{SWS}:{SWS+3}], s{sT0} offen")
        a(f"buffer_store_dwordx4 v[{TMP+4}:{TMP+7}], v{TMP+8}, s[{SWS}:{SWS+3}], s{sT0} offen offset:688")
        a(f"s_mov_b64 exec, -1")
    def g_epi():
        J = JACC
        a(f"v_mul_f32 v{TMP}, {f2u(-math.log2(math.e)):#x}, v{J}")
        a(f"v_exp_f32 v{TMP}, v{TMP}")
        a(f"v_add_f32 v{TMP}, 1.0, v{TMP}")
        a(f"v_rcp_f32 v{TMP}, v{TMP}")
        a(f"v_lshlrev_b32 v{TMP+1}, 2, v{L}")
        a(f"s_lshl_b32 s{sT0}, s{sP}, 7")
        a(f"s_add_u32 s{sT0}, s{sT0}, {WS_G}")
        a(f"s_mov_b32 exec_hi, 0")
        a(f"buffer_store_dword v{TMP}, v{TMP+1}, s[{SWS}:{SWS+3}], s{sT0} offen")
        a(f"s_mov_b64 exec, -1")

    for job, epi in (('K0', k_epi), ('K1', k_epi), ('V0', v_epi), ('V1', v_epi), (None, None)):
        if job != 'K0': a.label(f"{name}_q{job or 'N'}")
        mainloop(vq0.copy(), job, True)
        if epi: epi()
        a(f"s_branch {name}_qepi")
    a.label(f"{name}_qg")
    srd(a, SK, 78, D*2)
    vq1 = VMQ()
    a(f"s_mov_b32 m0, {L_S}")
    a(f"s_mov_b32 s{sT0}, 0")
    a(f"buffer_load_dwordx4 v{vL16}, s[{SK}:{SK+3}], s{sT0} offen lds"); vq1.issue(('c',0))
    a(f"s_mov_b32 m0, {L_S+1024}")
    a(f"s_mov_b32 s{sT0}, 1024")
    a(f"buffer_load_dwordx4 v{vL16}, s[{SK}:{SK+3}], s{sT0} offen lds"); vq1.issue(('c',0))
    dma_chunk(vq1, 0, False)
    a("s_barrier")
    dma_chunk(vq1, 1, False)
    touch_setup(1280)
    touch(vq1, 2); touch(vq1, 3)
    qaddr()
    a(f"v_lshrrev_b32 v{vKA}, 5, v{L}")
    a(f"v_lshlrev_b32 v{vKA}, 4, v{vKA}")
    a(f"v_add_u32 v{vKA}, {L_S}, v{vKA}")
    a(f"s_lshl_b32 s{sP}, s{sRB}, 3")
    a(f"s_add_u32 s{sP}, s{sP}, s{sW}")
    a(f"s_bitcmp1_b32 s{sW}, 0")
    a(f"s_cbranch_scc1 {name}_qG1")
    mainloop(vq1.copy(), 'G0', False); g_epi()
    a(f"s_branch {name}_qepi")
    a.label(f"{name}_qG1")
    mainloop(vq1.copy(), 'G1', False); g_epi()
    a.label(f"{name}_qepi")
    a("s_nop 3")
    a(f"s_lshl_b32 s{sT2}, s{sRB}, 3")
    a(f"s_and_b32 s{sT1}, s{sW}, 6")
    a(f"s_add_u32 s{sT2}, s{sT2}, s{sT1}")
    a(f"s_mul_i32 s{sT2}, s{sT2}, {32*1280}")
    a(f"s_add_u32 s{sT2}, s{sT2}, {WS_Q}")
    a(f"s_add_u32 s{sT3}, s{sT2}, {32*1280}")
    for p in range(2):
        for aa in range(4):
            for t in range(2):
                A = ACC(p,t) + 4*aa
                O = 24 + 2*((p*8+aa*2+t) % 16)
                a(f"v_pk_mul_f32 {P(A)}, {P(A)}, {P(vQS)}")
                a(f"v_pk_mul_f32 {P(A+2)}, {P(A+2)}, {P(vQS)}")
                a(f"v_cvt_pk_bf16_f32 v{O}, v{A}, v{A+1}")
                a(f"v_cvt_pk_bf16_f32 v{O+1}, v{A+2}, v{A+3}")
                a(f"buffer_store_dwordx2 v[{O}:{O+1}], v{QAD+4*p+aa}, s[{SWS}:{SWS+3}], s{sT2 if t == 0 else sT3} offen")
    stamp_out()
    a.label(f"{name}_end")
    a("s_endpgm")
    return dict(name=name, vgpr=176, lds=K1_LDS, block=512, grid=256)
```

```python
from asmlib import *
from layout import *
from k1 import srd, VMQ
STAMP = False
L_FLAG = 159744
K2_LDS = 163840
THR = 2.0**-24
L_XCH = 86016

def gen_k2(a, name='k2_kernel', sched=0, gwork=True, prio=0, unroll=2):
    vLane = 1; vL16 = 2; vKA = 3; vK2A = 4; vVA = 5; vG = 6; vPos = 7; vH = 8
    vT = list(range(9, 16)); vFl = 92; vPr = 93
    Q1 = lambda t: 16 + 4*t
    Q2 = lambda t: 32 + 6*t
    K1B = 56; K2B = 60; VB = 68
    PB = lambda b: 76 + 8*b
    SB = lambda b: 96 + 16*b
    OB = lambda t: 128 + 16*t
    K1S = 192; VS = 196
    sW = 3; sP = 4; sHd = 5; SWS = 8; sT0 = 12; sT1 = 13; sT2 = 14; sT3 = 15; sCnt = 16; sFlag = 17; sOff = 18; sHf = 23
    vST = 94
    def stamp(i):
        if not STAMP: return
        a("s_memtime s[92:93]"); a("s_waitcnt lgkmcnt(0)"); a(f"v_writelane_b32 v{vST}, s92, {i}")
    def stamp_out():
        if not STAMP: return
        stamp(63)
        a("s_memrealtime s[92:93]"); a("s_waitcnt lgkmcnt(0)"); a(f"v_writelane_b32 v{vST}, s92, 61")
        a("s_lshl_b32 s92, s2, 3"); a(f"s_add_u32 s92, s92, s{sW}"); a("s_lshl_b32 s92, s92, 8")
        a(f"s_add_u32 s92, s92, {WS_END}")
        a(f"v_lshlrev_b32 v95, 2, v{vLane}")
        a(f"buffer_store_dword v{vST}, v95, s[{SWS}:{SWS+3}], s92 offen")
    def R(b, n): return f"v[{b}:{b+n-1}]"
    def spin(lbl, off, need, sleep=0):
        a.label(lbl)
        a(f"ds_read_b32 v{vT[0]}, v{vFl} offset:{off}")
        a("s_waitcnt lgkmcnt(0)")
        a(f"v_readfirstlane_b32 s{sT0}, v{vT[0]}")
        a(f"s_cmp_lt_u32 s{sT0}, {need}")
        a(f"s_cbranch_scc1 {lbl}")
    a(f".p2align 8\n.globl {name}\n.type {name},@function")
    a.label(name)
    a("s_cmp_ge_u32 s2, 256")
    a(f"s_cbranch_scc1 {name}_end")
    a("s_load_dwordx2 s[6:7], s[0:1], 96")
    if STAMP:
        a("s_memtime s[94:95]"); a("s_memrealtime s[96:97]")
    a(f"v_lshrrev_b32 v{vT[0]}, 6, v0")
    a(f"v_and_b32 v{vLane}, 63, v0")
    a(f"v_readfirstlane_b32 s{sW}, v{vT[0]}")
    a(f"v_lshlrev_b32 v{vL16}, 4, v{vLane}")
    a(f"s_and_b32 s{sP}, s2, 7")
    a(f"s_lshr_b32 s{sT0}, s2, 5")
    a(f"s_lshl_b32 s{sT0}, s{sT0}, 3")
    a(f"s_add_u32 s{sP}, s{sP}, s{sT0}")
    a(f"v_and_b32 v{vPos}, 31, v{vLane}")
    a(f"v_mov_b32 v{vFl}, {L_FLAG}")
    a(f"s_cmp_ge_u32 s{sW}, 4")
    a(f"s_cbranch_scc1 {name}_ld")
    a(f"s_bfe_u32 s{sHd}, s2, 0x20003")
    a(f"s_lshl_b32 s{sHd}, s{sHd}, 3")
    a(f"s_and_b32 s{sT0}, s{sW}, 1")
    a(f"s_lshl_b32 s{sT0}, s{sT0}, 2")
    a(f"s_add_u32 s{sHd}, s{sHd}, s{sT0}")
    a(f"s_lshr_b32 s{sHf}, s{sW}, 1")
    a(f"v_lshrrev_b32 v{vH}, 5, v{vLane}")
    a(f"v_lshlrev_b32 v{vK2A}, 4, v{vPos}")
    a(f"v_add_u32 v{vK2A}, 2048, v{vK2A}")
    a(f"v_mul_u32_u24 v{vVA}, 336, v{vH}")
    a(f"v_lshl_add_u32 v{vVA}, v{vPos}, 4, v{vVA}")
    a(f"v_add_u32 v{vVA}, 2560, v{vVA}")
    a(f"v_lshlrev_b32 v{vT[0]}, 3, v{vPos}")
    a(f"v_lshlrev_b32 v{vT[1]}, 2, v{vLane}")
    a(f"v_lshlrev_b32 v{vT[2]}, 2, v{vPos}")
    for t in range(4):
        a(f"v_mov_b32 v{Q2(t)+2}, 0"); a(f"v_mov_b32 v{Q2(t)+3}, 0")
    a(f"s_mov_b32 exec_lo, 0xffe00000")
    a(f"s_mov_b32 exec_hi, 0xffe00000")
    a(f"v_mov_b32 v{vVA}, {2560+672}")
    a(f"s_mov_b32 exec_lo, 0")
    a(f"s_mov_b32 exec_hi, -1")
    a(f"v_mov_b32 v{vK2A}, {2560+672}")
    a(f"s_mov_b64 exec, -1")
    a(f"s_lshl_b32 s{sT0}, s{sP}, 5")
    a(f"s_add_u32 s{sT0}, s{sT0}, s{sHd}")
    a(f"s_mul_i32 s{sT0}, s{sT0}, 1280")
    a(f"s_add_u32 s{sT0}, s{sT0}, {WS_Q}")
    a(f"s_add_u32 s{sT3}, s{sT0}, 2560")
    a(f"s_mul_i32 s{sT2}, s{sHf}, {DUO}")
    a(f"s_add_u32 s{sT2}, s{sT2}, {WS_KV}")
    a(f"s_mov_b32 s{sT1}, {WS_KN}")
    a("s_waitcnt lgkmcnt(0)")
    srd(a, SWS, 6, WS_END + (1<<20))
    vq = VMQ()
    a(f"buffer_load_dword v{vT[3]}, v{vT[1]}, s[{SWS}:{SWS+3}], s{sT1} offen"); vq.issue('q')
    for t in range(4):
        a(f"buffer_load_dwordx4 {R(Q1(t),4)}, v{vL16}, s[{SWS}:{SWS+3}], s{sT0 if t < 2 else sT3} offen offset:{1280*(t&1)}"); vq.issue('q')
    a("s_mov_b32 exec_hi, 0")
    for t in range(4):
        a(f"buffer_load_dwordx2 {R(Q2(t)+2,2)}, v{vT[0]}, s[{SWS}:{SWS+3}], s{sT0 if t < 2 else sT3} offen offset:{1280*(t&1)+1024}"); vq.issue('q')
    a("s_mov_b32 exec_hi, -1")
    a(f"buffer_load_dwordx4 {R(K1B,4)}, v{vL16}, s[{SWS}:{SWS+3}], s{sT2} offen"); vq.issue('k0')
    a(f"buffer_load_dwordx4 {R(K2B+2,4)}, v{vK2A}, s[{SWS}:{SWS+3}], s{sT2} offen"); vq.issue('k0')
    for m in range(2):
        a(f"buffer_load_dwordx4 {R(VB+4*m,4)}, v{vVA}, s[{SWS}:{SWS+3}], s{sT2} offen offset:{688*m}"); vq.issue('v0')
    a(f"buffer_load_dwordx4 {R(K1S,4)}, v{vL16}, s[{SWS}:{SWS+3}], s{sT2} offen offset:1024"); vq.issue('k1')
    for m in range(2):
        a(f"buffer_load_dwordx4 {R(VS+4*m,4)}, v{vVA}, s[{SWS}:{SWS+3}], s{sT2} offen offset:{1376+688*m}"); vq.issue('v1')
    a(f"s_lshl_b32 s{sT1}, s{sP}, 7")
    a(f"s_add_u32 s{sT1}, s{sT1}, {WS_G}")
    a(f"buffer_load_dword v{vG}, v{vT[2]}, s[{SWS}:{SWS+3}], s{sT1} offen"); vq.issue('g')
    if STAMP:
        a(f"v_writelane_b32 v{vST}, s94, 0"); a(f"v_writelane_b32 v{vST}, s96, 62")
    for t in range(4):
        a(f"v_mov_b32 v{Q2(t)+1}, 0"); a(f"v_mov_b32 v{Q2(t)+5}, 0")
        a(f"v_mov_b32 v{Q2(t)}, 0"); a(f"v_mov_b32 v{Q2(t)+4}, 0")
    for r in (0, 1, 6, 7): a(f"v_mov_b32 v{K2B+r}, 0")
    a("s_mov_b32 exec_hi, 0")
    a(f"v_mov_b32 v{K2B}, 0x3f803f80")
    a(f"v_mov_b32 v{K2B+6}, 0x3f803f80")
    a("s_mov_b32 exec_hi, -1")
    a(f"s_mul_i32 s{sT2}, s{sHf}, {DUO}")
    a(f"v_add_u32 v{vKA}, s{sT2}, v{vL16}")
    a(f"v_add_u32 v{vK2A}, s{sT2}, v{vK2A}")
    a(f"v_add_u32 v{vVA}, s{sT2}, v{vVA}")
    a(f"s_lshl_b32 s{sT1}, s{sW}, 8")
    a(f"s_add_u32 s{sT1}, s{sT1}, {L_FLAG + 256}")
    a(f"v_lshl_add_u32 v{vPr}, v{vLane}, 2, s{sT1}")
    if prio: a(f"s_setprio {prio}")
    a(f"s_mov_b32 s{sFlag}, 0")
    N = [vT[0], vT[1], vT[4], vT[5]]; N2 = [vT[2], vT[6], 94 if not STAMP else 95, 95 if not STAMP else 95]
    N2 = [204, 205, 206, 207]
    for t in range(4): a(f"v_mov_b32 v{N[t]}, 0")
    stamp(1)
    vq.wait(a, 'q')
    stamp(2)
    kn = vT[3]
    for sh in (1,2,4,8):
        a(f"v_max_f32_dpp v{kn}, v{kn}, v{kn} row_shr:{sh} row_mask:0xf bank_mask:0xf")
        r = (1,2,4,8).index(sh)
        for t in range(4): a(f"v_dot2c_f32_bf16 v{N[t]}, v{Q1(t)+r}, v{Q1(t)+r}")
    for r in (2,3):
        for t in range(4): a(f"v_dot2c_f32_bf16 v{N[t]}, v{Q2(t)+r}, v{Q2(t)+r}")
    a(f"v_readlane_b32 s{sT0}, v{kn}, 15")
    a(f"v_readlane_b32 s{sT1}, v{kn}, 31")
    a(f"v_readlane_b32 s{sT2}, v{kn}, 47")
    a(f"v_readlane_b32 s{sT3}, v{kn}, 63")
    for t in range(4): a(f"v_mov_b32 v{N2[t]}, v{N[t]}")
    a(f"s_max_u32 s{sT0}, s{sT0}, s{sT1}")
    a(f"s_max_u32 s{sT2}, s{sT2}, s{sT3}")
    a(f"s_max_u32 s{sT0}, s{sT0}, s{sT2}")
    for t in range(4): a(f"v_permlane32_swap_b32 v{N2[t]}, v{N[t]}")
    for t in range(4): a(f"v_add_f32 v{N[t]}, v{N[t]}, v{N2[t]}")
    for t in range(4): a(f"v_mul_f32 v{N[t]}, s{sT0}, v{N[t]}")
    for t in range(4): a(f"v_sqrt_f32 v{N[t]}, v{N[t]}")
    a("s_mov_b32 exec_hi, 0")
    for t in range(4): a(f"v_cvt_pk_bf16_f32 v{Q2(t)}, -v{N[t]}, 0")
    for t in range(4): a(f"v_mov_b32 v{Q2(t)+4}, v{Q2(t)}")
    a("s_mov_b32 exec_hi, -1")

    def k1reg(j): return K1S if j == 1 else K1B
    def vreg(j): return VS if j == 1 else VB
    def qk(n):
        j, t = n >> 2, n & 3
        S = SB(n & 1)
        return [f"v_mfma_f32_32x32x16_bf16 {R(S,16)}, {R(k1reg(j),4)}, {R(Q1(t),4)}, 0",
                f"v_mfma_f32_32x32x16_bf16 {R(S,16)}, {R(K2B + 4*(j&1),4)}, {R(Q2(t) + 2*(j&1),4)}, {R(S,16)}"]
    def pv(n):
        j, t = n >> 2, n & 3
        o = []
        for m in range(2):
            C = R(OB(t),16) if (j > 0 or m > 0) else "0"
            o.append(f"v_mfma_f32_32x32x16_bf16 {R(OB(t),16)}, {R(vreg(j)+4*m,4)}, {R(PB(n&1)+4*m,4)}, {C}")
        return o
    def off(jj, D0): return ((jj >> 1) - D0) * 2 * DUO
    def step(n, D0, pre=None, mid=None):
        S = SB(n & 1); P = PB(n & 1)
        Q = qk(n+1) if n + 1 < 128 else [None, None]
        V = pv(n-1) if n >= 1 else [None, None]
        rK1 = rK2 = rV1 = rV2 = None
        if n % 4 == 2:
            jj = (n >> 2) + 1
            if 2 <= jj < 32:
                rK1 = f"ds_read_b128 {R(K1B,4)}, v{vKA} offset:{off(jj, D0) + 1024*(jj&1)}"
                if (jj & 1) == 0: rK2 = f"ds_read_b128 {R(K2B+2,4)}, v{vK2A} offset:{off(jj, D0)}"
        if n % 4 == 0:
            jj = n >> 2
            if 2 <= jj < 32:
                rV1 = f"ds_read_b128 {R(VB,4)}, v{vVA} offset:{off(jj, D0) + 1376*(jj&1)}"
                rV2 = f"ds_read_b128 {R(VB+4,4)}, v{vVA} offset:{off(jj, D0) + 1376*(jj&1) + 688}"
        wK = "s_waitcnt lgkmcnt(0)" if (n % 4 == 3 and n >= 7 and n < 127) else None
        wV = "s_waitcnt lgkmcnt(0)" if (n % 4 == 1 and n >= 9) else None
        e = lambda i: f"v_exp_f32 v{S+i}, v{S+i}"
        c = lambda i: f"v_cvt_pk_bf16_f32 v{P+i}, v{S+2*i}, v{S+2*i+1}"
        if pre: pre()
        if 0 <= n < 128:
            if sched == 0:
                seq = [wK, Q[0], rK1, e(0), e(1), e(2), e(3), Q[1], rK2, e(4), e(5), c(0), c(1), e(6), e(7), wV, 'mid', V[0], rV1, c(2), e(8), c(3), e(9), e(10), e(11), V[1], rV2, c(4), e(12), c(5), e(13), e(14), e(15), c(6), c(7)]
            elif sched == 3:
                seq = [wK, Q[0], e(0), e(1), e(2), Q[1], e(3), e(4), e(5), wV, 'mid', V[0], e(6), e(7), e(8), V[1], rK1, e(9), c(0), rK2, e(10), c(1), rV1, e(11), c(2), rV2, e(12), c(3), e(13), c(4), e(14), e(15), c(5), c(6), c(7)]
            elif sched == 4:
                seq = [wK, Q[0], e(0), e(1), e(2), e(3), Q[1], rK1, e(4), e(5), c(0), rK2, e(6), c(1), e(7), wV, 'mid', V[0], e(8), c(2), e(9), c(3), e(10), e(11), V[1], rV1, e(12), c(4), e(13), rV2, e(14), c(5), e(15), c(6), c(7)]
        else:
            seq = [Q[0], Q[1], 'mid', V[0], V[1]]
        for x in seq:
            if x is None: continue
            if x == 'mid':
                if mid: mid()
            else: a(x)
    stamp(3)
    vq.wait(a, 'k0')
    step(-1, 1)
    for n in range(0, 9):
        pre = None; mid = None
        if n == 1: mid = lambda: vq.wait(a, 'v0')
        if n == 3: pre = lambda: vq.wait(a, 'k1')
        if n == 5: mid = lambda: vq.wait(a, 'v1')
        if n == 6:
            def pre():
                stamp(4); a("s_barrier"); stamp(5)
        step(n, 1, pre, mid)
    stamp(6)
    spin(f"{name}_w2", 0, 4)
    stamp(7)
    U = 8*unroll
    NIT = 112 // U
    a(f"s_mov_b32 s{sCnt}, {NIT}")
    a.label(f"{name}_loop")
    for n in range(9, 9+U): step(n, 1)
    a(f"v_add_u32 v{vKA}, {unroll*2*DUO}, v{vKA}")
    a(f"ds_write_b32 v{vPr}, v{vKA}")
    a(f"v_add_u32 v{vK2A}, {unroll*2*DUO}, v{vK2A}")
    a(f"v_add_u32 v{vVA}, {unroll*2*DUO}, v{vVA}")
    a(f"s_cmp_eq_u32 s{sCnt}, {NIT - (2 // unroll - 1)}")
    a(f"s_cbranch_scc1 {name}_w3")
    a.label(f"{name}_w3r")
    a(f"s_sub_u32 s{sCnt}, s{sCnt}, 1")
    a(f"s_cmp_lg_u32 s{sCnt}, 0")
    a(f"s_cbranch_scc1 {name}_loop")
    for n in range(121, 129): step(n, 15)
    stamp(8)
    a.label(f"{name}_fin")
    a(f"s_mul_i32 s{sT0}, s{sW}, 6144")
    a(f"s_add_u32 s{sT0}, s{sT0}, {L_XCH}")
    a(f"v_add_u32 v{vT[1]}, s{sT0}, v{vL16}")
    a(f"s_xor_b32 s{sT1}, s{sW}, 2")
    a(f"s_mul_i32 s{sT0}, s{sT1}, 6144")
    a(f"s_add_u32 s{sT0}, s{sT0}, {L_XCH}")
    a(f"v_add_u32 v{vT[2]}, s{sT0}, v{vL16}")
    a(f"v_and_b32 v{vT[3]}, 3, v{vLane}")
    a(f"v_lshlrev_b32 v{vT[3]}, 8, v{vT[3]}")
    a(f"v_add_u32 v{vT[3]}, {L_FLAG+256}, v{vT[3]}")
    a(f"v_mov_b32 v{vT[5]}, {12*2*DUO}")
    a.label(f"{name}_x0")
    a(f"ds_read_b32 v{vT[4]}, v{vT[3]}")
    a("s_waitcnt lgkmcnt(0)")
    a(f"v_cmp_lt_u32 vcc, v{vT[4]}, v{vT[5]}")
    a("s_nop 4")
    a(f"s_cbranch_vccnz {name}_x0")
    a(f"s_lshl_b32 s{sT0}, s{sW}, 2")
    a(f"v_add_u32 v{vT[3]}, s{sT0}, v{vFl}")
    a(f"s_lshl_b32 s{sT0}, s{sT1}, 2")
    a(f"v_add_u32 v{vT[4]}, s{sT0}, v{vFl}")
    a(f"v_mov_b32 v{vT[5]}, 1")
    a(f"s_cmp_eq_u32 s{sHf}, 0")
    a(f"s_cbranch_scc1 {name}_x1")
    for t in range(2):
        for g in range(3): a(f"ds_write_b128 v{vT[1]}, {R(OB(t)+4*g,4)} offset:{(3*t+g)*1024}")
    for t in range(2):
        for r in range(0, 12, 2): a(f"v_pk_mul_f32 {R(OB(t)+r,2)}, {R(OB(t+2)+r,2)}, 1.0 op_sel_hi:[1,0]")
    a(f"s_add_u32 s{sHd}, s{sHd}, 2")
    a(f"s_branch {name}_x2")
    a.label(f"{name}_x1")
    for t in range(2):
        for g in range(3): a(f"ds_write_b128 v{vT[1]}, {R(OB(t+2)+4*g,4)} offset:{(3*t+g)*1024}")
    a.label(f"{name}_x2")
    a("s_waitcnt lgkmcnt(0)")
    a(f"ds_write_b32 v{vT[3]}, v{vT[5]} offset:16")
    a.label(f"{name}_x3")
    a(f"ds_read_b32 v{vT[0]}, v{vT[4]} offset:16")
    a("s_waitcnt lgkmcnt(0)")
    a(f"v_readfirstlane_b32 s{sT0}, v{vT[0]}")
    a(f"s_cmp_eq_u32 s{sT0}, 0")
    a(f"s_cbranch_scc1 {name}_x3")
    for t in range(2):
        for g in range(3): a(f"ds_read_b128 {R(OB(t+2)+4*g,4)}, v{vT[2]} offset:{(3*t+g)*1024}")
    a("s_waitcnt vmcnt(0) lgkmcnt(0)")
    for t in range(2):
        for r in range(0, 12, 2): a(f"v_pk_add_f32 {R(OB(t)+r,2)}, {R(OB(t)+r,2)}, {R(OB(t+2)+r,2)}")
    stamp(9)
    a.label(f"{name}_fin2")
    Lr = [vT[0], vT[1]]; X = [vT[2], vT[3]]
    for t in range(2):
        a(f"v_mov_b32 v{Lr[t]}, v{OB(t)+8}")
        a(f"v_mov_b32 v{X[t]}, v{OB(t)+8}")
    for t in range(2):
        a(f"v_permlane32_swap_b32 v{X[t]}, v{Lr[t]}")
    a(f"v_min_f32 v{X[0]}, v{Lr[0]}, v{Lr[1]}")
    a(f"v_mov_b32 v{X[1]}, {f2u(THR):#x}")
    a(f"v_cmp_ngt_f32 vcc, v{X[0]}, v{X[1]}")
    a(f"s_cmp_lg_u32 s{sFlag}, 0")
    a(f"s_cbranch_scc1 {name}_st")
    a(f"s_cbranch_vccnz {name}_slow")
    a.label(f"{name}_st")
    for t in range(2): a(f"v_rcp_f32 v{Lr[t]}, v{Lr[t]}")
    for t in range(2): a(f"v_mul_f32 v{Lr[t]}, v{Lr[t]}, v{vG}")
    a(f"s_mul_i32 s{sT0}, s{sP}, {40*1024}")
    a(f"s_add_u32 s{sT0}, s{sT0}, {WS_O}")
    a(f"s_mul_i32 s{sT1}, s{sHd}, 5")
    a(f"v_add_u32 v{vT[4]}, s{sT1}, v{vH}")
    for t in range(2):
        O = OB(t)
        for r in range(12): a(f"v_mul_f32 v{O+r}, v{O+r}, v{Lr[t]}")
        for r in range(6): a(f"v_cvt_pk_bf16_f32 v{PB(t)+r}, v{O+2*r}, v{O+2*r+1}")
        for aa in range(3):
            g = vT[5]; ad = vT[6]; tmp = X[0]
            a(f"v_add_u32 v{g}, {5*t + 2*aa}, v{vT[4]}")
            a(f"v_lshrrev_b32 v{ad}, 2, v{g}")
            a(f"v_lshlrev_b32 v{ad}, 10, v{ad}")
            a(f"v_and_b32 v{tmp}, 1, v{g}")
            a(f"v_lshl_add_u32 v{tmp}, v{tmp}, 5, v{vPos}")
            a(f"v_lshl_add_u32 v{ad}, v{tmp}, 4, v{ad}")
            a(f"v_bfe_u32 v{tmp}, v{g}, 1, 1")
            a(f"v_lshl_add_u32 v{ad}, v{tmp}, 3, v{ad}")
            if aa == 2: a("s_mov_b32 exec_hi, 0")
            a(f"buffer_store_dwordx2 v[{PB(t)+2*aa}:{PB(t)+2*aa+1}], v{ad}, s[{SWS}:{SWS+3}], s{sT0} offen")
            if aa == 2: a("s_mov_b32 exec_hi, -1")
    stamp_out()
    a("s_endpgm")
    a.label(f"{name}_w3")
    spin(f"{name}_w3s", 8, 4)
    a(f"s_branch {name}_w3r")
    a.label(f"{name}_slow")
    a(f"s_mov_b32 s{sFlag}, 1")
    a(f"s_cmp_eq_u32 s{sHf}, 0")
    a(f"s_cbranch_scc1 {name}_sl0")
    for t in range(2):
        for r in range(4): a(f"v_mov_b32 v{Q1(t)+r}, v{Q1(t+2)+r}")
        for r in range(6): a(f"v_mov_b32 v{Q2(t)+r}, v{Q2(t+2)+r}")
    a.label(f"{name}_sl0")
    a(f"s_mul_i32 s{sT2}, s{sHf}, {DUO}")
    a(f"s_add_u32 s{sT2}, s{sT2}, {28*DUO}")
    a(f"v_subrev_u32 v{vK2A}, s{sT2}, v{vK2A}")
    a(f"v_subrev_u32 v{vVA}, s{sT2}, v{vVA}")
    M = [vT[4], vT[5]]
    for t in range(2):
        a(f"v_mov_b32 v{M[t]}, 0xff7fffff")
        a(f"v_mov_b32 v{Q2(t)}, 0"); a(f"v_mov_b32 v{Q2(t)+4}, 0")
    def slow_loads(withv):
        a(f"buffer_load_dwordx4 {R(K1B,4)}, v{vL16}, s[{SWS}:{SWS+3}], s{sOff} offen")
        a(f"buffer_load_dwordx4 {R(K1S,4)}, v{vL16}, s[{SWS}:{SWS+3}], s{sOff} offen offset:1024")
        a(f"buffer_load_dwordx4 {R(K2B+2,4)}, v{vK2A}, s[{SWS}:{SWS+3}], s{sOff} offen")
        if withv:
            for jj in range(2):
                for m in range(2):
                    a(f"buffer_load_dwordx4 {R(vreg(jj)+4*m,4)}, v{vVA}, s[{SWS}:{SWS+3}], s{sOff} offen offset:{1376*jj+688*m}")
        a("s_waitcnt vmcnt(0)")
    def slow_qk(jj):
        for t in range(2):
            a(f"v_mfma_f32_32x32x16_bf16 {R(SB(t),16)}, {R(k1reg(jj),4)}, {R(Q1(t),4)}, 0")
            a(f"v_mfma_f32_32x32x16_bf16 {R(SB(t),16)}, {R(K2B+4*jj,4)}, {R(Q2(t)+2*jj,4)}, {R(SB(t),16)}")
    a(f"s_mov_b32 s{sOff}, {WS_KV}")
    a(f"s_mov_b32 s{sCnt}, 32")
    a.label(f"{name}_sl1")
    slow_loads(False)
    for jj in range(2):
        slow_qk(jj)
        for t in range(2):
            for r in range(0, 16, 2): a(f"v_max3_f32 v{M[t]}, v{SB(t)+r}, v{SB(t)+r+1}, v{M[t]}")
    a(f"s_add_u32 s{sOff}, s{sOff}, {DUO}")
    a(f"s_sub_u32 s{sCnt}, s{sCnt}, 1")
    a(f"s_cmp_lg_u32 s{sCnt}, 0")
    a(f"s_cbranch_scc1 {name}_sl1")
    for t in range(2): a(f"v_mov_b32 v{vT[t]}, v{M[t]}")
    for t in range(2): a(f"v_permlane32_swap_b32 v{vT[t]}, v{M[t]}")
    for t in range(2): a(f"v_max_f32 v{M[t]}, v{M[t]}, v{vT[t]}")
    for t in range(2):
        a(f"v_cvt_pk_bf16_f32 v{vT[t]}, -v{M[t]}, 0")
        a(f"v_lshlrev_b32 v{vT[t]}, 16, v{vT[t]}")
        a(f"v_sub_f32 v{vT[2+t]}, -v{M[t]}, v{vT[t]}")
    a("s_mov_b32 exec_hi, 0")
    for t in range(2):
        a(f"v_cvt_pk_bf16_f32 v{Q2(t)}, v{vT[t]}, v{vT[2+t]}")
        a(f"v_mov_b32 v{Q2(t)+4}, v{Q2(t)}")
    a("s_mov_b32 exec_hi, -1")
    for t in range(2):
        for r in range(16): a(f"v_mov_b32 v{OB(t)+r}, 0")
    a(f"s_mov_b32 s{sOff}, {WS_KV}")
    a(f"s_mov_b32 s{sCnt}, 32")
    a.label(f"{name}_sl2")
    slow_loads(True)
    for jj in range(2):
        slow_qk(jj)
        for t in range(2):
            for r in range(16): a(f"v_exp_f32 v{SB(t)+r}, v{SB(t)+r}")
            for r in range(8): a(f"v_cvt_pk_bf16_f32 v{PB(t)+r}, v{SB(t)+2*r}, v{SB(t)+2*r+1}")
            for m in range(2):
                a(f"v_mfma_f32_32x32x16_bf16 {R(OB(t),16)}, {R(vreg(jj)+4*m,4)}, {R(PB(t)+4*m,4)}, {R(OB(t),16)}")
    a(f"s_add_u32 s{sOff}, s{sOff}, {DUO}")
    a(f"s_sub_u32 s{sCnt}, s{sCnt}, 1")
    a(f"s_cmp_lg_u32 s{sCnt}, 0")
    a(f"s_cbranch_scc1 {name}_sl2")
    a("s_nop 15")
    a(f"s_branch {name}_fin2")
    a.label(f"{name}_ld")
    FB = lambda b: 16 + 24*b
    ACC = lambda i: 96 + 16*i
    sGw = 19; sA = 20; sB = 21; sCG = 22; SKV = 24
    a(f"v_lshl_add_u32 v{vT[1]}, v{vLane}, 4, v{vFl}")
    for r in range(12, 16): a(f"v_mov_b32 v{r}, 0")
    a(f"ds_write_b128 v{vT[1]}, v[12:15]")
    a(f"ds_write_b128 v{vT[1]}, v[12:15] offset:1024")
    a(f"s_sub_u32 s{sGw}, s{sW}, 4")
    a(f"s_bfe_u32 s{sCG}, s2, 0x20003")
    a(f"s_lshr_b32 s{sT3}, s2, 3")
    a(f"s_mul_i32 s{sT3}, s{sT3}, {42*128}")
    a(f"s_add_u32 s{sT3}, s{sT3}, {WS_KV}")
    a(f"v_lshlrev_b32 v{vT[2]}, 7, v{vLane}")
    a("s_waitcnt lgkmcnt(0)")
    srd(a, SKV, 6, WS_KV + 32*DUO)
    srd(a, SWS, 6, WS_END + (1<<20))
    if STAMP:
        a(f"v_writelane_b32 v{vST}, s94, 0"); a(f"v_writelane_b32 v{vST}, s96, 62")
    gq = VMQ()
    a(f"buffer_load_dword v{vT[6]}, v{vT[2]}, s[{SKV}:{SKV+3}], s{sT3} offen"); gq.issue('t')
    a(f"s_lshl_b32 s{sT0}, s{sGw}, 10")
    a(f"s_add_u32 s{sT1}, s{sT0}, {WS_KV + 2*DUO}")
    NB = (30*DUO + 4095)//4096
    P1 = 3; P2 = 11
    def kvdma(r):
        a(f"s_add_u32 m0, s{sT0}, {r*4096}")
        a(f"s_add_u32 s{sT2}, s{sT1}, {r*4096}")
        a(f"buffer_load_dwordx4 v{vL16}, s[{SKV}:{SKV+3}], s{sT2} offen lds")
        gq.issue('p1' if r < P1 else ('p2' if r < P2 else 'p3'))
    def signal(offv):
        a(f"v_mov_b32 v{vT[0]}, 1")
        a("s_mov_b64 exec, 1")
        a(f"ds_add_u32 v{vFl}, v{vT[0]} offset:{offv}")
        a("s_mov_b64 exec, -1")
    a("s_sleep 4")
    for r in range(P2): kvdma(r)
    gq.wait(a, 'p1')
    a("s_barrier")
    stamp(1)
    for r in range(P2, P2+8): kvdma(r)
    gq.wait(a, 'p2')
    signal(0)
    for r in range(P2+8, NB): kvdma(r)
    if not gwork:
        gq.wait(a, 'p3')
        signal(8)
        a("s_endpgm")
    else:
        a(f"s_mul_i32 s{sT0}, s{sGw}, 27")
        a(f"s_mul_i32 s{sB}, s{sP}, 108")
        a(f"s_add_u32 s{sB}, s{sB}, s{sT0}")
        a(f"s_lshl_b32 s{sB}, s{sB}, 10")
        a(f"s_add_u32 s{sB}, s{sB}, {WS_H}")
        a(f"s_mul_i32 s{sA}, s{sCG}, 108")
        a(f"s_add_u32 s{sA}, s{sA}, s{sT0}")
        a(f"s_mul_i32 s{sA}, s{sA}, 5120")
        a(f"s_add_u32 s{sA}, s{sA}, {WS_WD}")
        a(f"v_lshlrev_b32 v{vT[1]}, 2, v{vPos}")
        a(f"s_lshl_b32 s{sT1}, s{sP}, 7")
        a(f"s_add_u32 s{sT1}, s{sT1}, {WS_G}")
        a(f"buffer_load_dword v{vG}, v{vT[1]}, s[{SWS}:{SWS+3}], s{sT1} offen"); gq.issue('g')
        def loads(s_):
            b = FB(s_ % 3)
            a(f"buffer_load_dwordx4 {R(b,4)}, v{vL16}, s[{SWS}:{SWS+3}], s{sB} offen"); gq.issue(s_)
            for i in range(4):
                a(f"buffer_load_dwordx4 {R(b+4+4*i,4)}, v{vL16}, s[{SWS}:{SWS+3}], s{sA} offen offset:{1024*i}"); gq.issue(s_)
            a(f"s_add_u32 s{sT0}, s{sA}, 4096")
            a(f"buffer_load_dwordx4 {R(b+20,4)}, v{vL16}, s[{SWS}:{SWS+3}], s{sT0} offen"); gq.issue(s_)
            a(f"s_add_u32 s{sB}, s{sB}, 1024")
            a(f"s_add_u32 s{sA}, s{sA}, 5120")
        for s_ in range(3): loads(s_)
        gq.wait(a, 'p3')
        signal(8)
        stamp(2)
        for s_ in range(27):
            gq.wait(a, s_)
            b = FB(s_ % 3)
            for i in range(5):
                C = R(ACC(i),16) if s_ > 0 else "0"
                a(f"v_mfma_f32_32x32x16_bf16 {R(ACC(i),16)}, {R(b+4+4*i,4)}, {R(b,4)}, {C}")
            if s_ + 3 < 27: loads(s_+3)
        stamp(3)
        a(f"v_and_b32 v{vT[1]}, 3, v{vLane}")
        a(f"v_lshlrev_b32 v{vT[1]}, 8, v{vT[1]}")
        a(f"v_add_u32 v{vT[1]}, {L_FLAG+256}, v{vT[1]}")
        a(f"v_mov_b32 v{vT[3]}, {8*2*DUO}")
        a.label(f"{name}_g3")
        a(f"ds_read_b32 v{vT[2]}, v{vT[1]}")
        a("s_waitcnt lgkmcnt(0)")
        a(f"v_cmp_lt_u32 vcc, v{vT[2]}, v{vT[3]}")
        a("s_nop 4")
        a(f"s_cbranch_vccz {name}_g3d")
        a("s_sleep 8")
        a(f"s_branch {name}_g3")
        a.label(f"{name}_g3d")
        stamp(4)
        a(f"s_mul_i32 s{sT0}, s{sGw}, 20480")
        a(f"v_add_u32 v{vT[1]}, s{sT0}, v{vL16}")
        for gi in range(20):
            a(f"ds_write_b128 v{vT[1]}, {R(96+4*gi,4)} offset:{1024*gi}")
        a("s_waitcnt lgkmcnt(0)")
        signal(4)
        a(f"v_sub_f32 v{vG}, 1.0, v{vG}")
        a(f"s_mul_i32 s{sT0}, s{sGw}, 5120")
        a(f"v_add_u32 v{vT[1]}, s{sT0}, v{vL16}")
        a(f"v_add_u32 v{vT[4]}, 40960, v{vT[1]}")
        a(f"s_lshl_b32 s{sT1}, s{sP}, 2")
        a(f"s_add_u32 s{sT1}, s{sT1}, s{sCG}")
        a(f"s_mul_i32 s{sT1}, s{sT1}, 20480")
        a(f"s_add_u32 s{sT1}, s{sT1}, s{sT0}")
        a(f"s_add_u32 s{sT1}, s{sT1}, {WS_B}")
        a(f"s_add_u32 s{sT2}, s{sT1}, 4096")
        spin(f"{name}_g4", 4, 4)
        for src in range(4):
            for gi in range(5):
                if src*5+gi == 12: a("s_waitcnt lgkmcnt(4)")
                a(f"ds_read_b128 {R(96+20*src+4*gi,4)}, v{vT[1] if src < 2 else vT[4]} offset:{(src&1)*20480 + 1024*gi}")
        a("s_waitcnt lgkmcnt(0)")
        Pp = lambda r: f"v[{r}:{r+1}]"
        for (d, s_) in ((0,1),(2,3),(0,2)):
            for r in range(0, 20, 2): a(f"v_pk_add_f32 {Pp(96+20*d+r)}, {Pp(96+20*d+r)}, {Pp(96+20*s_+r)}")
        for r in range(20): a(f"v_mul_f32 v{96+r}, v{96+r}, v{vG}")
        for gi in range(5):
            if gi < 4: a(f"buffer_store_dwordx4 {R(96+4*gi,4)}, v{vL16}, s[{SWS}:{SWS+3}], s{sT1} offen offset:{1024*gi}")
            else: a(f"buffer_store_dwordx4 {R(96+4*gi,4)}, v{vL16}, s[{SWS}:{SWS+3}], s{sT2} offen")
        stamp_out()
    a.label(f"{name}_end")
    a("s_endpgm")
    return dict(name=name, vgpr=208, lds=K2_LDS, block=512, grid=256)
```

```python
from asmlib import *
from layout import *
from k1 import srd, VMQ
K3_LDS = 163840
def gen_k3(a, name='k3_kernel'):
    vLane = 1; vL16 = 2; vG = 3; vPos = 4; vT = list(range(5, 12))
    FB = lambda b: 16 + 24*b
    ACC = lambda i: 96 + 16*i
    sW = 3; sP = 4; sCG = 5; SWS = 8; SO = 12; sA = 16; sB = 17; sT0 = 18; sT1 = 19; sT2 = 20
    R = lambda b, n: f"v[{b}:{b+n-1}]"
    a(f".p2align 8\n.globl {name}\n.type {name},@function")
    a.label(name)
    a("s_cmp_ge_u32 s2, 256")
    a(f"s_cbranch_scc1 {name}_end")
    a("s_load_dwordx2 s[6:7], s[0:1], 96")
    a("s_load_dwordx2 s[22:23], s[0:1], 80")
    a(f"v_lshrrev_b32 v{vT[0]}, 6, v0")
    a(f"v_and_b32 v{vLane}, 63, v0")
    a(f"v_readfirstlane_b32 s{sW}, v{vT[0]}")
    a(f"v_lshlrev_b32 v{vL16}, 4, v{vLane}")
    a(f"v_and_b32 v{vPos}, 31, v{vLane}")
    a(f"s_and_b32 s{sP}, s2, 7")
    a(f"s_lshr_b32 s{sT0}, s2, 5")
    a(f"s_lshl_b32 s{sT0}, s{sT0}, 3")
    a(f"s_add_u32 s{sP}, s{sP}, s{sT0}")
    a(f"s_bfe_u32 s{sCG}, s2, 0x20003")
    a(f"v_lshlrev_b32 v{vT[0]}, 2, v{vPos}")
    a("s_waitcnt lgkmcnt(0)")
    srd(a, SWS, 6, WS_END)
    srd(a, SO, 22, S*D*2)
    FB = lambda b: 96 + 80 + 0*b
    a(f"s_mul_i32 s{sT0}, s{sW}, 5")
    a(f"s_mul_i32 s{sB}, s{sP}, 40")
    a(f"s_add_u32 s{sB}, s{sB}, s{sT0}")
    a(f"s_lshl_b32 s{sB}, s{sB}, 10")
    a(f"s_add_u32 s{sB}, s{sB}, {WS_O}")
    a(f"s_mul_i32 s{sA}, s{sCG}, 40")
    a(f"s_add_u32 s{sA}, s{sA}, s{sT0}")
    a(f"s_mul_i32 s{sA}, s{sA}, 5120")
    a(f"s_add_u32 s{sA}, s{sA}, {WS_WO}")
    vq = VMQ()
    fb = [16, 40, 64, 176, 200]
    for s_ in range(5):
        b = fb[s_]
        a(f"buffer_load_dwordx4 {R(b,4)}, v{vL16}, s[{SWS}:{SWS+3}], s{sB} offen"); vq.issue(s_)
        for i in range(4):
            a(f"buffer_load_dwordx4 {R(b+4+4*i,4)}, v{vL16}, s[{SWS}:{SWS+3}], s{sA} offen offset:{1024*i}"); vq.issue(s_)
        a(f"s_add_u32 s{sT0}, s{sA}, 4096")
        a(f"buffer_load_dwordx4 {R(b+20,4)}, v{vL16}, s[{SWS}:{SWS+3}], s{sT0} offen"); vq.issue(s_)
        a(f"s_add_u32 s{sB}, s{sB}, 1024")
        a(f"s_add_u32 s{sA}, s{sA}, 5120")
    a(f"s_lshl_b32 s{sT1}, s{sP}, 2")
    a(f"s_add_u32 s{sT1}, s{sT1}, s{sCG}")
    a(f"s_mul_i32 s{sT1}, s{sT1}, 20480")
    a(f"s_min_u32 s{sT2}, s{sW}, 4")
    a(f"s_lshl_b32 s{sT2}, s{sT2}, 12")
    a(f"s_add_u32 s{sT1}, s{sT1}, s{sT2}")
    a(f"s_add_u32 s{sT1}, s{sT1}, {WS_B}")
    for aa in range(4):
        a(f"buffer_load_dwordx4 {R(224+4*aa,4)}, v{vL16}, s[{SWS}:{SWS+3}], s{sT1} offen offset:{1024*aa}"); vq.issue('b')
    for s_ in range(5):
        vq.wait(a, s_)
        b = fb[s_]
        for i in range(5):
            C = R(ACC(i),16) if s_ > 0 else "0"
            a(f"v_mfma_f32_32x32x16_bf16 {R(ACC(i),16)}, {R(b+4+4*i,4)}, {R(b,4)}, {C}")
    a.label(f"{name}_red")
    a("s_nop 15")
    a(f"s_mul_i32 s{sT0}, s{sW}, 20480")
    a(f"v_add_u32 v{vT[0]}, s{sT0}, v{vL16}")
    for gidx in range(20):
        a(f"ds_write_b128 v{vT[0]}, {R(96+4*gidx,4)} offset:{1024*gidx}")
    a("s_waitcnt lgkmcnt(0)")
    a("s_barrier")
    a(f"s_cmp_ge_u32 s{sW}, 5")
    a(f"s_cbranch_scc1 {name}_end")
    a(f"s_lshl_b32 s{sT0}, s{sW}, 12")
    a(f"v_add_u32 v{vT[0]}, s{sT0}, v{vL16}")
    a(f"v_add_u32 v{vT[1]}, {3*20480}, v{vT[0]}")
    a(f"v_add_u32 v{vT[2]}, {6*20480}, v{vT[0]}")
    for src in range(8):
        for aa in range(4):
            if src * 4 + aa >= 12 and (src*4+aa) % 4 == 0: a(f"s_waitcnt lgkmcnt(8)")
            a(f"ds_read_b128 {R(16 + 16*src + 4*aa, 4)}, v{vT[src//3]} offset:{(src%3)*20480 + 1024*aa}")
    a(f"v_mul_u32_u24 v{vT[3]}, 1280, v{vPos}")
    a(f"v_lshrrev_b32 v{vT[4]}, 5, v{vLane}")
    a(f"v_lshl_add_u32 v{vT[3]}, v{vT[4]}, 3, v{vT[3]}")
    a(f"s_mul_i32 s{sT0}, s{sP}, {32*1280}")
    a(f"s_mul_i32 s{sT1}, s{sCG}, 320")
    a(f"s_add_u32 s{sT0}, s{sT0}, s{sT1}")
    a(f"s_lshl_b32 s{sT1}, s{sW}, 6")
    a(f"s_add_u32 s{sT0}, s{sT0}, s{sT1}")
    a("s_waitcnt vmcnt(0) lgkmcnt(0)")
    P = lambda r: f"v[{r}:{r+1}]"
    for r in range(0, 16, 2): a(f"v_pk_add_f32 {P(16+r)}, {P(16+r)}, {P(224+r)}")
    for (d, s_) in ((0,1),(2,3),(4,5),(6,7),(0,2),(4,6),(0,4)):
        for r in range(0, 16, 2): a(f"v_pk_add_f32 {P(16+16*d+r)}, {P(16+16*d+r)}, {P(16+16*s_+r)}")
    for r in range(8): a(f"v_cvt_pk_bf16_f32 v{32+r}, v{16+2*r}, v{17+2*r}")
    for aa in range(4):
        a(f"buffer_store_dwordx2 {P(32+2*aa)}, v{vT[3]}, s[{SO}:{SO+3}], s{sT0} offen offset:{16*aa}")
    a.label(f"{name}_end")
    a("s_endpgm")
    return dict(name=name, vgpr=240, lds=K3_LDS, block=512, grid=256)
```

```python
from asmlib import *
from layout import *

def srd(a, d, base, size):
    a(f"s_mov_b32 s{d}, s{base}")
    a(f"s_and_b32 s{d+1}, s{base+1}, 0xffff")
    a(f"s_mov_b32 s{d+2}, {size}")
    a(f"s_mov_b32 s{d+3}, 0x20000")

class VMQ:
    def __init__(self): self.q = []
    def issue(self, tag): self.q.append(tag)
    def wait(self, a, tag, extra=''):
        last = max(i for i, t in enumerate(self.q) if t == tag)
        n = len(self.q) - 1 - last
        assert n <= 63
        a(f"s_waitcnt vmcnt({n}){extra}")
        self.q = self.q[last+1:]
    def copy(self):
        v = VMQ(); v.q = list(self.q); return v

L_X = 0
L_W = 98304
L_S = 147456
K1_LDS = 163840

STAMP = False
TOUCH = True
def gen_k1(a, name='k1_kernel'):
    vST = 175
    def stamp(i):
        if not STAMP: return
        a("s_memtime s[92:93]")
        a("s_waitcnt lgkmcnt(0)")
        a(f"v_writelane_b32 v{vST}, s92, {i}")
    def stamp_out():
        if not STAMP: return
        stamp(63)
        a("s_memrealtime s[92:93]")
        a("s_waitcnt lgkmcnt(0)")
        a(f"v_writelane_b32 v{vST}, s92, 61")
        a("s_lshl_b32 s92, s2, 3")
        a("s_add_u32 s92, s92, s3")
        a("s_lshl_b32 s92, s92, 8")
        a(f"s_add_u32 s92, s92, {WS_END}")
        a("v_lshlrev_b32 v174, 2, v11")
        a(f"buffer_store_dword v{vST}, v174, s[20:23], s92 offen")
    vXA = [1,2,3,4]; vWA = 5; vKA = 6; vXD = [7,8]; vWD = 9; vL16 = 10; vLane = 11; vT = [12,13,14,15,16,17,18,19]
    FX = lambda b,t: 24 + b*8 + t*4
    FW = lambda b,p: 40 + b*8 + p*4
    FK = lambda b: 56 + b*4
    ACC = lambda p,t: 64 + (p*2+t)*16
    JACC = 128
    TMP = 144
    sW = 3
    sRB = 4; sCT = 5
    SX = 8; SA = 12; SB = 16; SWS = 20; SK = 24; SV = 28; SR = 32
    sXoff = 40; sWoff = 41; sLdw = 42; sM0x = 43; sM0w = 44; sT0 = 45; sT1 = 46; sT2 = 47; sT3=48; sWstep = 49; sP = 50; sKoff = 51; sM0k = 52; sExecK=54
    sWoffB = 56
    a(f".p2align 8\n.globl {name}\n.type {name},@function")
    a.label(name)
    a(f"s_cmp_ge_u32 s2, 256")
    a(f"s_cbranch_scc1 {name}_end")
    a("s_load_dwordx4 s[60:63], s[0:1], 0")
    a("s_load_dwordx4 s[64:67], s[0:1], 16")
    a("s_load_dwordx2 s[68:69], s[0:1], 32")
    a("s_load_dwordx4 s[72:75], s[0:1], 48")
    a("s_load_dwordx4 s[76:79], s[0:1], 64")
    a("s_load_dwordx2 s[80:81], s[0:1], 96")
    if STAMP:
        a("s_memtime s[94:95]")
        a("s_memrealtime s[96:97]")
    a(f"v_lshrrev_b32 v{vT[0]}, 6, v0")
    a(f"v_and_b32 v{vLane}, 63, v0")
    a(f"v_readfirstlane_b32 s{sW}, v{vT[0]}")
    a(f"s_and_b32 s{sT0}, s2, 7")
    a(f"s_lshr_b32 s{sT1}, s2, 3")
    a(f"s_and_b32 s{sRB}, s{sT0}, 1")
    a(f"s_lshl_b32 s{sRB}, s{sRB}, 2")
    a(f"s_and_b32 s{sT2}, s{sT1}, 3")
    a(f"s_add_u32 s{sRB}, s{sRB}, s{sT2}")
    a(f"s_lshr_b32 s{sCT}, s{sT0}, 1")
    a(f"s_lshl_b32 s{sCT}, s{sCT}, 3")
    a(f"s_lshr_b32 s{sT2}, s{sT1}, 2")
    a(f"s_add_u32 s{sCT}, s{sCT}, s{sT2}")
    L = vLane
    t0,t1,t2,t3,t4,t5 = vT[:6]
    a(f"v_lshlrev_b32 v{vL16}, 4, v{L}")
    a(f"v_lshrrev_b32 v{t0}, 3, v{L}")
    a(f"v_and_b32 v{t1}, 7, v{L}")
    a(f"v_lshrrev_b32 v{t2}, 1, v{t0}")
    a(f"v_xor_b32 v{t3}, v{t1}, v{t2}")
    a(f"v_mul_u32_u24 v{t4}, 1280, v{t0}")
    a(f"v_lshl_add_u32 v{vXD[0]}, v{t3}, 4, v{t4}")
    a(f"v_xor_b32 v{t3}, 4, v{t3}")
    a(f"v_lshl_add_u32 v{vXD[1]}, v{t3}, 4, v{t4}")
    a(f"v_add_u32 v{vXD[1]}, {8*1280}, v{vXD[1]}")
    a(f"v_and_b32 v{t3}, 1, v{t2}")
    a(f"v_lshlrev_b32 v{t3}, 2, v{t3}")
    a(f"v_xor_b32 v{t3}, v{t3}, v{t1}")
    a(f"v_lshlrev_b32 v{vWD}, 4, v{t3}")
    a(f"v_and_b32 v{t1}, 31, v{L}")
    a(f"v_lshrrev_b32 v{t2}, 5, v{L}")
    a(f"v_bfe_u32 v{t3}, v{L}, 1, 3")
    a(f"v_xor_b32 v{t3}, v{t3}, v{t2}")
    a(f"v_lshlrev_b32 v{t3}, 4, v{t3}")
    a(f"v_lshl_add_u32 v{t3}, v{t1}, 7, v{t3}")
    a(f"s_lshr_b32 s{sT0}, s{sW}, 1")
    a(f"s_mul_i32 s{sT0}, s{sT0}, 24576")
    a(f"v_add_u32 v{vXA[0]}, s{sT0}, v{t3}")
    for s in range(1,4):
        a(f"v_xor_b32 v{vXA[s]}, {32*s}, v{vXA[0]}")
    a(f"v_bfe_u32 v{t1}, v{L}, 2, 2")
    a(f"v_and_b32 v{t3}, 3, v{L}")
    a(f"v_bfe_u32 v{t4}, v{L}, 4, 1")
    a(f"v_lshlrev_b32 v{t3}, 3, v{t3}")
    a(f"v_lshl_add_u32 v{t3}, v{t4}, 5, v{t3}")
    a(f"v_lshrrev_b32 v{t4}, 1, v{t1}")
    a(f"s_and_b32 s{sT0}, s{sW}, 1")
    a(f"v_xor_b32 v{t4}, s{sT0}, v{t4}")
    a(f"v_lshl_add_u32 v{t4}, v{t4}, 6, v{t3}")
    a(f"v_lshl_add_u32 v{t5}, v{t2}, 3, v{t1}")
    a(f"v_lshl_add_u32 v{vWA}, v{t5}, 7, v{t4}")
    a(f"v_add_u32 v{vWA}, {L_W}, v{vWA}")
    a(f"v_mul_u32_u24 v{vKA}, 40, v{t5}")
    a(f"v_add_u32 v{vKA}, v{vKA}, v{t3}")
    a(f"s_mul_i32 s{sT0}, s{sT0}, 2560")
    a(f"s_add_u32 s{sT0}, s{sT0}, {L_S}")
    a(f"v_add_u32 v{vKA}, s{sT0}, v{vKA}")
    a(f"v_lshl_add_u32 v{t5}, v{t2}, 2, v{t1}")
    a(f"v_lshrrev_b32 v{t4}, 1, v{t1}")
    a(f"v_lshl_add_u32 v{t4}, v{t4}, 6, v{t3}")
    a(f"v_lshl_add_u32 v{vT[6]}, v{t5}, 7, v{t4}")
    a(f"s_lshl_b32 s{sT0}, s{sW}, 11")
    a(f"s_add_u32 s{sT0}, s{sT0}, {L_S}")
    a(f"v_add_u32 v{vT[6]}, s{sT0}, v{vT[6]}")
    a(f"v_xor_b32 v{vT[7]}, 64, v{vT[6]}")
    a(f"s_lshl_b32 s{sT0}, s{sRB}, 8")
    a(f"s_lshl_b32 s{sT1}, s{sW}, 5")
    a(f"s_add_u32 s{sT0}, s{sT0}, s{sT1}")
    a(f"s_mul_i32 s{sXoff}, s{sT0}, 1280")
    a(f"s_lshr_b32 s{sT0}, s{sW}, 1")
    a(f"s_mul_i32 s{sM0x}, s{sT0}, 24576")
    a(f"s_and_b32 s{sT0}, s{sW}, 1")
    a(f"s_lshl_b32 s{sT0}, s{sT0}, 12")
    a(f"s_add_u32 s{sM0x}, s{sM0x}, s{sT0}")
    a(f"s_lshl_b32 s{sM0w}, s{sW}, 10")
    a(f"s_add_u32 s{sM0w}, s{sM0w}, {L_W}")
    a("s_waitcnt lgkmcnt(0)")
    stamp(1)
    if STAMP:
        a(f"v_writelane_b32 v{vST}, s94, 0")
        a(f"v_writelane_b32 v{vST}, s96, 62")
    srd(a, SX, 60, S*D*2)
    srd(a, SWS, 80, WS_END + (1<<20))
    a(f"s_lshl_b32 s{sT0}, s2, 7")
    a(f"s_add_u32 s{sT0}, s{sT0}, {WS_FLAG}")
    a(f"v_mov_b32 v21, 0")
    a(f"s_mov_b64 exec, 1")
    a(f"buffer_store_dword v21, v21, s[{SWS}:{SWS+3}], s{sT0} offen")
    a(f"s_mov_b64 exec, -1")
    a(f"s_cmp_ge_u32 s{sCT}, 27")
    a(f"s_cbranch_scc1 {name}_q")

    def dma_list(vq, c, kv):
        st = c % 3
        L = []
        def xd(j):
            a(f"s_add_u32 m0, s{sM0x}, {st*8192 + j*1024}")
            a(f"s_add_u32 s{sT0}, s{sXoff}, {c*128 + (j>>1)*16*1280}")
            a(f"buffer_load_dwordx4 v{vXD[j&1]}, s[{SX}:{SX+3}], s{sT0} offen lds")
            vq.issue(('c', c))
        def wd(p):
            a(f"s_add_u32 m0, s{sM0w}, {st*16384 + p*8192}")
            a(f"s_mul_i32 s{sT1}, s{sWstep}, {c}")
            a(f"s_add_u32 s{sT0}, s{sWoffB if p else sWoff}, s{sT1}")
            a(f"buffer_load_dwordx4 v{vWD}, s[{SB if p else SA}:{(SB if p else SA)+3}], s{sT0} offen lds")
            vq.issue(('c', c))
        def kd_():
            a(f"s_add_u32 m0, s{sM0k}, {st*5120}")
            a(f"s_add_u32 s{sT0}, s{sKoff}, {c*2560}")
            a(f"s_mov_b64 exec, s[{sExecK}:{sExecK+1}]")
            a(f"buffer_load_dwordx4 v{vL16}, s[{SK}:{SK+3}], s{sT0} offen lds")
            a(f"s_mov_b64 exec, -1")
            vq.issue(('c', c))
        L = [lambda: wd(0), lambda: wd(1)] + [(lambda j=j: xd(j)) for j in range(4)]
        if kv: L.append(kd_)
        return L
    def dma_chunk(vq, c, kv):
        for f in dma_list(vq, c, kv): f()
    STC = 36; sTch = 57; sTstep = 58; vTch = 20
    def touch_setup(ldw):
        a(f"s_lshr_b32 s{sT2}, s2, 3")
        a(f"s_lshr_b32 s{sT0}, s{sT2}, 2")
        a(f"s_lshl_b32 s{sT0}, s{sT0}, 5")
        a(f"s_lshl_b32 s{sT1}, s{sW}, 3")
        a(f"s_add_u32 s{sT0}, s{sT0}, s{sT1}")
        a(f"s_lshl_b32 s{sT1}, s{sRB}, 8")
        a(f"s_add_u32 s{sT0}, s{sT0}, s{sT1}")
        a(f"s_mul_i32 s{sTch}, s{sT0}, 1280")
        a(f"s_and_b32 s{sT2}, s{sT2}, 3")
        a(f"s_lshl_b32 s{sT2}, s{sT2}, 1")
        a(f"s_and_b32 s{sT0}, s{sW}, 1")
        a(f"s_add_u32 s{sT2}, s{sT2}, s{sT0}")
        a(f"s_sub_u32 s{sT2}, s{sT2}, s{sW}")
        a(f"s_mul_i32 s{sT2}, s{sT2}, {8*ldw}")
        a(f"s_cmp_ge_u32 s{sW}, 6")
        a(f"s_cselect_b32 s{sT0}, s{sWoffB}, s{sWoff}")
        a(f"s_cselect_b32 s{STC}, s{SB}, s{SA}")
        a(f"s_cselect_b32 s{STC+1}, s{SB+1}, s{SA+1}")
        a(f"s_add_u32 s{sT2}, s{sT2}, s{sT0}")
        a(f"s_cmp_ge_u32 s{sW}, 4")
        a(f"s_cselect_b32 s{sTch}, s{sT2}, s{sTch}")
        a(f"s_cselect_b32 s{STC}, s{STC}, s{SX}")
        a(f"s_cselect_b32 s{STC+1}, s{STC+1}, s{SX+1}")
        a(f"s_cselect_b32 s{STC+2}, s{SA+2}, s{SX+2}")
        a(f"s_mov_b32 s{STC+3}, 0x20000")
        a(f"s_mov_b32 s{sTstep}, 128")
        a(f"s_cselect_b32 s{sTstep}, s{sWstep}, s{sTstep}")
        a(f"s_mov_b32 s{sT0}, 1280")
        a(f"s_cselect_b32 s{sT0}, {ldw}, s{sT0}")
        a(f"v_mul_lo_u32 v{vTch}, s{sT0}, v{L}")
    def touch(vq, c):
        a(f"s_mul_i32 s{sT0}, s{sTstep}, {c}")
        a(f"s_add_u32 s{sT0}, s{sT0}, s{sTch}")
        a(f"s_mov_b64 exec, 0xff")
        a(f"buffer_load_dword v{vTch+1}, v{vTch}, s[{STC}:{STC+3}], s{sT0} offen"); vq.issue('t')
        a(f"s_mov_b64 exec, -1")

    def reads(gs, job):
        c, s = divmod(gs, 4); st = c % 3; b = gs & 1
        out = []
        for t in range(2):
            out.append(f"ds_read_b128 v[{FX(b,t)}:{FX(b,t)+3}], v{vXA[s]} offset:{st*8192 + t*4096}")
        for p in range(2):
            for e in range(2):
                out.append(f"ds_read_b64_tr_b16 v[{FW(b,p)+2*e}:{FW(b,p)+2*e+1}], v{vWA} offset:{st*16384 + p*8192 + (16*s+4*e)*128}")
        if job in ('K0','K1','V0','V1'):
            for e in range(2):
                out.append(f"ds_read_b64_tr_b16 v[{FK(b)+2*e}:{FK(b)+2*e+1}], v{vKA} offset:{st*5120 + (16*s+4*e)*40}")
        elif job == 'G':
            out.append(f"ds_read_b128 v[{FK(b)}:{FK(b)+3}], v{vKA} offset:{gs*32}")
        return out

    def mfmas(gs, job):
        b = gs & 1
        out = []
        for p in range(2):
            for t in range(2):
                A = ACC(p,t)
                C = f"v[{A}:{A+15}]" if gs else "0"
                out.append(f"v_mfma_f32_32x32x16_bf16 v[{A}:{A+15}], v[{FW(b,p)}:{FW(b,p)+3}], v[{FX(b,t)}:{FX(b,t)+3}], {C}")
        if job:
            t = {'K0':0,'K1':1,'V0':0,'V1':1,'G0':0,'G1':1}[job]
            fk = f"v[{FK(b)}:{FK(b)+3}]"; fx = f"v[{FX(b,t)}:{FX(b,t)+3}]"
            C = f"v[{JACC}:{JACC+15}]" if gs else "0"
            if job[0] == 'V': out.append(f"v_mfma_f32_32x32x16_bf16 v[{JACC}:{JACC+15}], {fx}, {fk}, {C}")
            else: out.append(f"v_mfma_f32_32x32x16_bf16 v[{JACC}:{JACC+15}], {fk}, {fx}, {C}")
        return out

    def mainloop(vq, job, kv, hook=None):
        rj = 'G' if (job and job[0] == 'G') else job
        stamp(2)
        vq.wait(a, ('c', 0))
        stamp(3)
        a("s_barrier")
        stamp(4)
        for r in reads(0, rj): a(r)
        pend = dma_list(vq, 2, kv) + [lambda: touch(vq, 4)]
        for gs in range(40):
            c, s = divmod(gs, 4)
            a("s_waitcnt lgkmcnt(0)")
            if s == 3 and c < 9:
                assert not pend
                stamp(5+3*c)
                vq.wait(a, ('c', c+1))
                stamp(6+3*c)
                a("s_barrier")
                stamp(7+3*c)
                if c + 3 < 10: pend = dma_list(vq, c+3, kv)
                if TOUCH and c + 5 < 10: pend.append(lambda c=c: touch(vq, c+5))
            M = mfmas(gs, job)
            R = reads(gs+1, rj) if gs < 39 else []
            nd = {3: 2, 0: 2, 1: 2, 2: 3}[s]
            if gs < 3: nd = 3
            if kv and s in (0,1): nd = 3
            ri = 0
            for mi, m in enumerate(M):
                a(m)
                k = 2 if mi < len(M)-1 else len(R)
                for r in R[ri:ri+k]: a(r)
                ri += k
                if mi >= 1 and nd > 0 and pend:
                    pend.pop(0)(); nd -= 1
            if hook: hook(vq, gs)
        stamp(40)

    srd(a, SA, 72, D*F*2)
    srd(a, SB, 74, D*F*2)
    a(f"v_mul_u32_u24 v{t0}, {F*2}, v{t0}")
    a(f"v_add_u32 v{TMP}, v{vWD}, v{t0}")
    a(f"v_lshrrev_b32 v{t0}, 3, v{L}")
    a(f"v_mul_u32_u24 v{t0}, 1280, v{t0}")
    a(f"v_add_u32 v{TMP+1}, v{vWD}, v{t0}")
    a(f"v_mov_b32 v{vWD}, v{TMP}")
    a(f"s_mul_i32 s{sWoff}, s{sW}, {8*F*2}")
    a(f"s_lshl_b32 s{sT0}, s{sCT}, 7")
    a(f"s_add_u32 s{sWoff}, s{sWoff}, s{sT0}")
    a(f"s_mov_b32 s{sWoffB}, s{sWoff}")
    a(f"s_mov_b32 s{sWstep}, {64*F*2}")
    sU = 84; sK16 = 85; sGrp = 86; sNK = 87; sDst = 88; sIsWo = 89
    a(f"s_mul_i32 s{sU}, s{sRB}, 27")
    a(f"s_add_u32 s{sU}, s{sU}, s{sCT}")
    a(f"s_lshl_b32 s{sU}, s{sU}, 3")
    a(f"s_add_u32 s{sU}, s{sU}, s{sW}")
    a(f"s_min_u32 s{sU}, s{sU}, 1479")
    a(f"s_cmp_ge_u32 s{sU}, 1080")
    a(f"s_cselect_b32 s{SR}, s68, s76")
    a(f"s_cselect_b32 s{SR+1}, s69, s77")
    a(f"s_mov_b32 s{SR+2}, {F*D*2}")
    a(f"s_cselect_b32 s{SR+2}, {D*D*2}, s{SR+2}")
    a(f"s_cselect_b32 s{sNK}, 40, 108")
    a(f"s_mov_b32 s{sDst}, {WS_WD}")
    a(f"s_cselect_b32 s{sDst}, {WS_WO}, s{sDst}")
    a(f"s_cselect_b32 s{sT0}, 1080, 0")
    a(f"s_and_b32 s{SR+1}, s{SR+1}, 0xffff")
    a(f"s_mov_b32 s{SR+3}, 0x20000")
    a(f"s_sub_u32 s{sU}, s{sU}, s{sT0}")
    a(f"s_mul_hi_u32 s{sK16}, s{sU}, {(2**32+9)//10}")
    a(f"s_mul_i32 s{sT0}, s{sK16}, 10")
    a(f"s_sub_u32 s{sGrp}, s{sU}, s{sT0}")
    a(f"s_mul_i32 s{sT0}, s{sK16}, {16*1280}")
    a(f"s_lshl_b32 s{sT1}, s{sGrp}, 7")
    a(f"s_add_u32 s{sT0}, s{sT0}, s{sT1}")
    vq = VMQ()
    a(f"s_mov_b32 s{sT3}, s{sT0}")
    dma_chunk(vq, 0, False)
    a("s_barrier")
    dma_chunk(vq, 1, False)
    touch_setup(F*2)
    touch(vq, 2); touch(vq, 3)
    sD = [90, 91]
    for c in range(2):
        a(f"s_lshl_b32 s{sT0}, s{sGrp}, 1")
        if c: a(f"s_add_u32 s{sT0}, s{sT0}, 1")
        a(f"s_mul_hi_u32 s{sT1}, s{sT0}, {(2**32+4)//5}")
        a(f"s_mul_i32 s{sT2}, s{sT1}, 5")
        a(f"s_sub_u32 s{sT2}, s{sT0}, s{sT2}")
        a(f"s_mul_i32 s{sT1}, s{sT1}, s{sNK}")
        a(f"s_add_u32 s{sT1}, s{sT1}, s{sK16}")
        a(f"s_mul_i32 s{sT1}, s{sT1}, 5120")
        a(f"s_lshl_b32 s{sT2}, s{sT2}, 10")
        a(f"s_add_u32 s{sT1}, s{sT1}, s{sT2}")
        a(f"s_add_u32 s{sD[c]}, s{sT1}, s{sDst}")
    def relayout(vq, gs):
        if gs == 21:
            a(f"s_lshl_b32 s{sT2}, s{sW}, 11")
            a(f"s_add_u32 m0, s{sT2}, {L_S}")
            a("s_nop 0")
            a(f"buffer_load_dwordx4 v{TMP+1}, s[{SR}:{SR+3}], s{sT3} offen lds"); vq.issue('rl')
            a(f"s_add_u32 m0, s{sT2}, {L_S+1024}")
            a(f"s_add_u32 s{sT3}, s{sT3}, {8*1280}")
            a(f"buffer_load_dwordx4 v{TMP+1}, s[{SR}:{SR+3}], s{sT3} offen lds"); vq.issue('rl')
        if gs == 32:
            assert 'rl' not in vq.q
            for c in range(2):
                for e in range(2):
                    a(f"ds_read_b64_tr_b16 v[{TMP+8+4*c+2*e}:{TMP+8+4*c+2*e+1}], v{vT[6+c]} offset:{8*e*128}")
        if gs == 33:
            for c in range(2):
                a(f"buffer_store_dwordx4 v[{TMP+8+4*c}:{TMP+8+4*c+3}], v{vL16}, s[{SWS}:{SWS+3}], s{sD[c]} offen"); vq.issue('st')
    mainloop(vq, None, False, relayout)
    c0 = -2.0*math.sqrt(2.0/math.pi)*math.log2(math.e); c1 = c0*0.044715
    vC0 = 24; vC1 = 26; vOne = 28
    for r, val in ((vC0, c0), (vC1, c1), (vOne, 1.0)):
        a(f"v_mov_b32 v{r}, {f2u(val):#x}"); a(f"v_mov_b32 v{r+1}, {f2u(val):#x}")
    a(f"s_lshl_b32 s{sT0}, s{sRB}, 3")
    a(f"s_and_b32 s{sT1}, s{sW}, 6")
    a(f"s_add_u32 s{sT0}, s{sT0}, s{sT1}")
    a(f"s_mul_i32 s{sT0}, s{sT0}, 108")
    a(f"s_lshl_b32 s{sT1}, s{sCT}, 2")
    a(f"s_add_u32 s{sT0}, s{sT0}, s{sT1}")
    a(f"s_and_b32 s{sT1}, s{sW}, 1")
    a(f"s_lshl_b32 s{sT1}, s{sT1}, 1")
    a(f"s_add_u32 s{sT0}, s{sT0}, s{sT1}")
    a(f"s_lshl_b32 s{sT0}, s{sT0}, 10")
    a(f"s_add_u32 s{sT0}, s{sT0}, {WS_H}")
    a(f"s_add_u32 s{sT1}, s{sT0}, {108*1024}")
    P = lambda r: f"v[{r}:{r+1}]"
    for t in range(2):
        G = ACC(0,t); U = ACC(1,t)
        for m in range(2):
            T = TMP + 8*m
            O = 32 + 4*(2*t+m)
            for j in range(4): a(f"v_pk_mul_f32 {P(T+2*j)}, {P(G+8*m+2*j)}, {P(G+8*m+2*j)}")
            for j in range(4): a(f"v_pk_fma_f32 {P(T+2*j)}, {P(T+2*j)}, {P(vC1)}, {P(vC0)}")
            for j in range(4): a(f"v_pk_mul_f32 {P(T+2*j)}, {P(T+2*j)}, {P(G+8*m+2*j)}")
            for j in range(8): a(f"v_exp_f32 v{T+j}, v{T+j}")
            for j in range(4): a(f"v_pk_mul_f32 {P(U+8*m+2*j)}, {P(U+8*m+2*j)}, {P(G+8*m+2*j)}")
            for j in range(4): a(f"v_pk_add_f32 {P(T+2*j)}, {P(T+2*j)}, {P(vOne)}")
            for j in range(8): a(f"v_rcp_f32 v{T+j}, v{T+j}")
            for j in range(4): a(f"v_pk_mul_f32 {P(U+8*m+2*j)}, {P(U+8*m+2*j)}, {P(T+2*j)}")
            for j in range(4): a(f"v_cvt_pk_bf16_f32 v{O+j}, v{U+8*m+2*j}, v{U+8*m+2*j+1}")
            a(f"buffer_store_dwordx4 v[{O}:{O+3}], v{vL16}, s[{SWS}:{SWS+3}], s{sT0 if t == 0 else sT1} offen offset:{m*1024}")
    stamp_out()
    a("s_endpgm")

    QAD = TMP + 16; vQS = TMP + 24
    def qaddr():
        vH = TMP+8; vPos = TMP+9; vG = TMP+10; vHd = TMP+11; vJ = TMP+12; vA1 = TMP+13; vA2 = TMP+14
        a(f"v_lshrrev_b32 v{vH}, 5, v{L}")
        a(f"v_and_b32 v{vPos}, 31, v{L}")
        a(f"v_mov_b32 v{vQS}, {f2u(QSCALE):#x}")
        a(f"v_mov_b32 v{vQS+1}, {f2u(QSCALE):#x}")
        a(f"s_lshl_b32 s{sT0}, s{sCQ}, 5")
        a(f"s_and_b32 s{sT1}, s{sW}, 1")
        a(f"s_lshl_b32 s{sT1}, s{sT1}, 3")
        a(f"s_add_u32 s{sT0}, s{sT0}, s{sT1}")
        a(f"v_add_u32 v{vH}, s{sT0}, v{vH}")
        a(f"v_lshlrev_b32 v{vA2}, 3, v{vPos}")
        a(f"v_add_u32 v{vA2}, 1024, v{vA2}")
        for p in range(2):
            for aa in range(4):
                a(f"v_add_u32 v{vG}, {p*16 + 2*aa}, v{vH}")
                a(f"v_mul_u32_u24 v{vHd}, 205, v{vG}")
                a(f"v_lshrrev_b32 v{vHd}, 10, v{vHd}")
                a(f"v_mul_u32_u24 v{vJ}, 5, v{vHd}")
                a(f"v_sub_u32 v{vJ}, v{vG}, v{vJ}")
                a(f"v_and_b32 v{vA1}, 1, v{vJ}")
                a(f"v_lshl_add_u32 v{vA1}, v{vA1}, 5, v{vPos}")
                a(f"v_lshlrev_b32 v{vA1}, 4, v{vA1}")
                a(f"v_lshrrev_b32 v{vG}, 1, v{vJ}")
                a(f"v_lshl_add_u32 v{vA1}, v{vG}, 3, v{vA1}")
                a(f"v_cmp_eq_u32 vcc, 4, v{vJ}")
                a(f"v_mul_u32_u24 v{vHd}, 1280, v{vHd}")
                a(f"v_cndmask_b32 v{vA1}, v{vA1}, v{vA2}, vcc")
                a(f"v_add_u32 v{QAD+4*p+aa}, v{vA1}, v{vHd}")
    a.label(f"{name}_q")
    sCQ = 84
    a(f"s_sub_u32 s{sCQ}, s{sCT}, 27")
    srd(a, SA, 62, D*D*2)
    srd(a, SB, 62, D*D*2)
    a(f"v_mul_u32_u24 v{t0}, 1280, v{t0}")
    a(f"v_add_u32 v{vWD}, v{vWD}, v{t0}")
    a(f"s_mul_i32 s{sWoff}, s{sW}, {8*1280}")
    a(f"s_lshl_b32 s{sT0}, s{sCQ}, 8")
    a(f"s_add_u32 s{sWoff}, s{sWoff}, s{sT0}")
    a(f"s_add_u32 s{sWoffB}, s{sWoff}, 128")
    a(f"s_mov_b32 s{sWstep}, {64*1280}")
    a(f"s_cmp_eq_u32 s{sCQ}, 4")
    a(f"s_cbranch_scc1 {name}_qg")
    a(f"s_min_u32 s{sT0}, s{sW}, 5")
    a(f"s_cmp_ge_u32 s{sT0}, 3")
    a(f"s_cselect_b32 s{SK}, s66, s64")
    a(f"s_cselect_b32 s{SK+1}, s67, s65")
    a(f"s_cselect_b32 s{sT1}, 3, 0")
    a(f"s_mov_b32 s{sM0k}, {L_S}")
    a(f"s_cselect_b32 s{sM0k}, {L_S+2560}, s{sM0k}")
    a(f"s_and_b32 s{SK+1}, s{SK+1}, 0xffff")
    a(f"s_mov_b32 s{SK+2}, {D*DH*2}")
    a(f"s_mov_b32 s{SK+3}, 0x20000")
    a(f"s_sub_u32 s{sT0}, s{sT0}, s{sT1}")
    a(f"s_lshl_b32 s{sKoff}, s{sT0}, 10")
    a(f"s_add_u32 s{sM0k}, s{sM0k}, s{sKoff}")
    a(f"s_cmp_eq_u32 s{sT0}, 2")
    a(f"s_mov_b32 s{sExecK}, -1")
    a(f"s_cselect_b32 s{sExecK+1}, 0, -1")
    vq0 = VMQ()
    dma_chunk(vq0, 0, True)
    a("s_barrier")
    dma_chunk(vq0, 1, True)
    touch_setup(1280)
    touch(vq0, 2); touch(vq0, 3)
    qaddr()
    a(f"s_lshr_b32 s{sT0}, s{sW}, 2")
    a(f"s_lshr_b32 s{sT1}, s{sCQ}, 1")
    a(f"s_cmp_lg_u32 s{sT0}, s{sT1}")
    a(f"s_cbranch_scc1 {name}_qN")
    a(f"s_and_b32 s{sT0}, s{sCQ}, 1")
    a(f"s_and_b32 s{sT1}, s{sW}, 1")
    a(f"s_lshl_b32 s{sT1}, s{sT1}, 1")
    a(f"s_or_b32 s{sT0}, s{sT0}, s{sT1}")
    a(f"s_lshl_b32 s{sP}, s{sRB}, 3")
    a(f"s_and_b32 s{sT1}, s{sW}, 6")
    a(f"s_add_u32 s{sP}, s{sP}, s{sT1}")
    a(f"s_and_b32 s{sT1}, s{sCQ}, 1")
    a(f"s_add_u32 s{sP}, s{sP}, s{sT1}")
    a(f"s_cmp_eq_u32 s{sT0}, 1"); a(f"s_cbranch_scc1 {name}_qK1")
    a(f"s_cmp_eq_u32 s{sT0}, 2"); a(f"s_cbranch_scc1 {name}_qV0")
    a(f"s_cmp_eq_u32 s{sT0}, 3"); a(f"s_cbranch_scc1 {name}_qV1")

    def kv_base():
        a(f"s_lshr_b32 s{sT2}, s{sP}, 1")
        a(f"s_mul_i32 s{sT2}, s{sT2}, {DUO}")
        a(f"s_add_u32 s{sT2}, s{sT2}, {WS_KV}")
        a(f"s_and_b32 s{sT3}, s{sP}, 1")
    def k_epi():
        J = JACC
        kv_base()
        for j in range(6): a(f"v_cvt_pk_bf16_f32 v{TMP+j}, v{J+2*j}, v{J+2*j+1}")
        a(f"s_lshl_b32 s{sT0}, s{sT3}, 10")
        a(f"s_add_u32 s{sT0}, s{sT0}, s{sT2}")
        a(f"buffer_store_dwordx4 v[{TMP}:{TMP+3}], v{vL16}, s[{SWS}:{SWS+3}], s{sT0} offen")
        a(f"s_lshl_b32 s{sT0}, s{sT3}, 3")
        a(f"s_add_u32 s{sT0}, s{sT0}, s{sT2}")
        a(f"s_add_u32 s{sT0}, s{sT0}, 2048")
        a(f"v_mov_b32 v{TMP+8}, 0")
        a(f"v_mov_b32 v{TMP+9}, 0")
        for j in range(4): a(f"v_dot2c_f32_bf16 v{TMP+8}, v{TMP+j}, v{TMP+j}")
        a(f"s_mov_b32 exec_hi, 0")
        a(f"buffer_store_dwordx2 v[{TMP+4}:{TMP+5}], v{vL16}, s[{SWS}:{SWS+3}], s{sT0} offen")
        for j in range(4,6): a(f"v_dot2c_f32_bf16 v{TMP+9}, v{TMP+j}, v{TMP+j}")
        a(f"s_mov_b64 exec, -1")
        a(f"v_add_f32 v{TMP+8}, v{TMP+8}, v{TMP+9}")
        a(f"v_mov_b32 v{TMP+9}, v{TMP+8}")
        a(f"v_permlane32_swap_b32 v{TMP+8}, v{TMP+9}")
        a(f"v_add_f32 v{TMP+8}, v{TMP+8}, v{TMP+9}")
        for sh in (1,2,4,8):
            a(f"v_max_f32_dpp v{TMP+8}, v{TMP+8}, v{TMP+8} row_shr:{sh} row_mask:0xf bank_mask:0xf")
        a(f"v_readlane_b32 s{sT0}, v{TMP+8}, 15")
        a(f"v_readlane_b32 s{sT1}, v{TMP+8}, 31")
        a(f"s_max_u32 s{sT0}, s{sT0}, s{sT1}")
        a(f"v_mov_b32 v{TMP+8}, s{sT0}")
        a(f"s_lshl_b32 s{sT1}, s{sP}, 2")
        a(f"s_add_u32 s{sT1}, s{sT1}, {WS_KN}")
        a(f"v_mov_b32 v{TMP+9}, 0")
        a(f"s_mov_b64 exec, 1")
        a(f"buffer_store_dword v{TMP+8}, v{TMP+9}, s[{SWS}:{SWS+3}], s{sT1} offen")
        a(f"s_mov_b64 exec, -1")
    def v_epi():
        J = JACC
        kv_base()
        for j in range(8): a(f"v_cvt_pk_bf16_f32 v{TMP+j}, v{J+2*j}, v{J+2*j+1}")
        a(f"s_mov_b32 exec_lo, {1<<20}")
        a(f"s_mov_b32 exec_hi, {1<<20}")
        for j in range(8): a(f"v_mov_b32 v{TMP+j}, 0x3f803f80")
        a(f"s_mov_b32 exec_lo, 0")
        a(f"s_mov_b32 exec_hi, {1<<21}")
        for j in range(8): a(f"v_mov_b32 v{TMP+j}, 0")
        a(f"s_mov_b32 exec_lo, {(1<<21)-1}")
        a(f"s_mov_b32 exec_hi, {(1<<22)-1}")
        a(f"v_lshrrev_b32 v{TMP+8}, 5, v{L}")
        a(f"v_mul_u32_u24 v{TMP+8}, 336, v{TMP+8}")
        a(f"v_and_b32 v{TMP+9}, 31, v{L}")
        a(f"v_lshl_add_u32 v{TMP+8}, v{TMP+9}, 4, v{TMP+8}")
        a(f"s_mul_i32 s{sT0}, s{sT3}, 1376")
        a(f"s_add_u32 s{sT0}, s{sT0}, s{sT2}")
        a(f"s_add_u32 s{sT0}, s{sT0}, 2560")
        a(f"buffer_store_dwordx4 v[{TMP}:{TMP+3}], v{TMP+8}, s[{SWS}:{SWS+3}], s{sT0} offen")
        a(f"buffer_store_dwordx4 v[{TMP+4}:{TMP+7}], v{TMP+8}, s[{SWS}:{SWS+3}], s{sT0} offen offset:688")
        a(f"s_mov_b64 exec, -1")
    def g_epi():
        J = JACC
        a(f"v_mul_f32 v{TMP}, {f2u(-math.log2(math.e)):#x}, v{J}")
        a(f"v_exp_f32 v{TMP}, v{TMP}")
        a(f"v_add_f32 v{TMP}, 1.0, v{TMP}")
        a(f"v_rcp_f32 v{TMP}, v{TMP}")
        a(f"v_lshlrev_b32 v{TMP+1}, 2, v{L}")
        a(f"s_lshl_b32 s{sT0}, s{sP}, 7")
        a(f"s_add_u32 s{sT0}, s{sT0}, {WS_G}")
        a(f"s_mov_b32 exec_hi, 0")
        a(f"buffer_store_dword v{TMP}, v{TMP+1}, s[{SWS}:{SWS+3}], s{sT0} offen")
        a(f"s_mov_b64 exec, -1")

    for job, epi in (('K0', k_epi), ('K1', k_epi), ('V0', v_epi), ('V1', v_epi), (None, None)):
        if job != 'K0': a.label(f"{name}_q{job or 'N'}")
        mainloop(vq0.copy(), job, True)
        if epi: epi()
        a(f"s_branch {name}_qepi")
    a.label(f"{name}_qg")
    srd(a, SK, 78, D*2)
    vq1 = VMQ()
    a(f"s_mov_b32 m0, {L_S}")
    a(f"s_mov_b32 s{sT0}, 0")
    a(f"buffer_load_dwordx4 v{vL16}, s[{SK}:{SK+3}], s{sT0} offen lds"); vq1.issue(('c',0))
    a(f"s_mov_b32 m0, {L_S+1024}")
    a(f"s_mov_b32 s{sT0}, 1024")
    a(f"buffer_load_dwordx4 v{vL16}, s[{SK}:{SK+3}], s{sT0} offen lds"); vq1.issue(('c',0))
    dma_chunk(vq1, 0, False)
    a("s_barrier")
    dma_chunk(vq1, 1, False)
    touch_setup(1280)
    touch(vq1, 2); touch(vq1, 3)
    qaddr()
    a(f"v_lshrrev_b32 v{vKA}, 5, v{L}")
    a(f"v_lshlrev_b32 v{vKA}, 4, v{vKA}")
    a(f"v_add_u32 v{vKA}, {L_S}, v{vKA}")
    a(f"s_lshl_b32 s{sP}, s{sRB}, 3")
    a(f"s_add_u32 s{sP}, s{sP}, s{sW}")
    a(f"s_bitcmp1_b32 s{sW}, 0")
    a(f"s_cbranch_scc1 {name}_qG1")
    mainloop(vq1.copy(), 'G0', False); g_epi()
    a(f"s_branch {name}_qepi")
    a.label(f"{name}_qG1")
    mainloop(vq1.copy(), 'G1', False); g_epi()
    a.label(f"{name}_qepi")
    a("s_nop 3")
    a(f"s_lshl_b32 s{sT2}, s{sRB}, 3")
    a(f"s_and_b32 s{sT1}, s{sW}, 6")
    a(f"s_add_u32 s{sT2}, s{sT2}, s{sT1}")
    a(f"s_mul_i32 s{sT2}, s{sT2}, {32*1280}")
    a(f"s_add_u32 s{sT2}, s{sT2}, {WS_Q}")
    a(f"s_add_u32 s{sT3}, s{sT2}, {32*1280}")
    for p in range(2):
        for aa in range(4):
            for t in range(2):
                A = ACC(p,t) + 4*aa
                O = 24 + 2*((p*8+aa*2+t) % 16)
                a(f"v_pk_mul_f32 {P(A)}, {P(A)}, {P(vQS)}")
                a(f"v_pk_mul_f32 {P(A+2)}, {P(A+2)}, {P(vQS)}")
                a(f"v_cvt_pk_bf16_f32 v{O}, v{A}, v{A+1}")
                a(f"v_cvt_pk_bf16_f32 v{O+1}, v{A+2}, v{A+3}")
                a(f"buffer_store_dwordx2 v[{O}:{O+1}], v{QAD+4*p+aa}, s[{SWS}:{SWS+3}], s{sT2 if t == 0 else sT3} offen")
    stamp_out()
    a.label(f"{name}_end")
    a("s_endpgm")
    return dict(name=name, vgpr=176, lds=K1_LDS, block=512, grid=256)
```

```python
from asmlib import *
from layout import *
from k1 import srd, VMQ
STAMP = False
L_FLAG = 159744
K2_LDS = 163840
THR = 2.0**-24
L_OST = 110592
L_XCH = 86016

def gen_k2(a, name='k2_kernel', sched=0, gwork=True, prio=0, unroll=2):
    vLane = 1; vL16 = 2; vKA = 3; vK2A = 8; vVA = 5; vG = 6; vPos = 4; vH = 7
    vT = list(range(9, 16)); vFl = 92; vPr = 93
    Q1 = lambda t: 16 + 4*t
    Q2 = lambda t: 32 + 6*t
    K1B = 56; K2B = 60; VB = 68
    PB = lambda b: 76 + 8*b
    SB = lambda b: 96 + 16*b
    OB = lambda t: 128 + 16*t
    K1S = 192; VS = 196
    sW = 3; sP = 4; sHd = 5; SWS = 8; sT0 = 12; sT1 = 13; sT2 = 14; sT3 = 15; sCnt = 16; sFlag = 17; sOff = 18; sHf = 23
    vST = 94
    def stamp(i):
        if not STAMP: return
        a("s_memtime s[92:93]"); a("s_waitcnt lgkmcnt(0)"); a(f"v_writelane_b32 v{vST}, s92, {i}")
    def stamp_out():
        if not STAMP: return
        stamp(63)
        a("s_memrealtime s[92:93]"); a("s_waitcnt lgkmcnt(0)"); a(f"v_writelane_b32 v{vST}, s92, 61")
        a("s_lshl_b32 s92, s2, 3"); a(f"s_add_u32 s92, s92, s{sW}"); a("s_lshl_b32 s92, s92, 8")
        a(f"s_add_u32 s92, s92, {WS_END}")
        a(f"v_lshlrev_b32 v95, 2, v{vLane}")
        a(f"buffer_store_dword v{vST}, v95, s[{SWS}:{SWS+3}], s92 offen")
    def R(b, n): return f"v[{b}:{b+n-1}]"
    sBud = 28
    def bounded(lbl):
        a(f"s_sub_u32 s{sBud}, s{sBud}, 1")
        a(f"s_cbranch_scc0 {lbl}")
    def spin(lbl, off, need, sleep=0):
        a.label(lbl)
        a(f"ds_read_b32 v{vT[0]}, v{vFl} offset:{off}")
        a("s_waitcnt lgkmcnt(0)")
        a(f"v_readfirstlane_b32 s{sT0}, v{vT[0]}")
        a(f"s_cmp_ge_u32 s{sT0}, {need}")
        a(f"s_cbranch_scc1 {lbl}_d")
        bounded(lbl)
        a.label(lbl + "_d")
    a(f".p2align 8\n.globl {name}\n.type {name},@function")
    a.label(name)
    a("s_cmp_ge_u32 s2, 256")
    a(f"s_cbranch_scc1 {name}_end")
    a("s_load_dwordx2 s[6:7], s[0:1], 96")
    a("s_load_dwordx2 s[30:31], s[0:1], 80")
    if STAMP:
        a("s_memtime s[94:95]"); a("s_memrealtime s[96:97]")
    a(f"v_lshrrev_b32 v{vT[0]}, 6, v0")
    a(f"v_and_b32 v{vLane}, 63, v0")
    a(f"v_readfirstlane_b32 s{sW}, v{vT[0]}")
    a(f"v_lshlrev_b32 v{vL16}, 4, v{vLane}")
    a(f"s_and_b32 s{sP}, s2, 7")
    a(f"s_lshr_b32 s{sT0}, s2, 5")
    a(f"s_lshl_b32 s{sT0}, s{sT0}, 3")
    a(f"s_add_u32 s{sP}, s{sP}, s{sT0}")
    a(f"v_and_b32 v{vPos}, 31, v{vLane}")
    a(f"v_mov_b32 v{vFl}, {L_FLAG}")
    a(f"s_mov_b32 s{sBud}, 0x40000")
    a(f"s_cmp_ge_u32 s{sW}, 4")
    a(f"s_cbranch_scc1 {name}_ld")
    a(f"s_bfe_u32 s{sHd}, s2, 0x20003")
    a(f"s_lshl_b32 s{sHd}, s{sHd}, 3")
    a(f"s_and_b32 s{sT0}, s{sW}, 1")
    a(f"s_lshl_b32 s{sT0}, s{sT0}, 2")
    a(f"s_add_u32 s{sHd}, s{sHd}, s{sT0}")
    a(f"s_lshr_b32 s{sHf}, s{sW}, 1")
    a(f"v_lshrrev_b32 v{vH}, 5, v{vLane}")
    a(f"v_lshlrev_b32 v{vK2A}, 4, v{vPos}")
    a(f"v_add_u32 v{vK2A}, 2048, v{vK2A}")
    a(f"v_mul_u32_u24 v{vVA}, 336, v{vH}")
    a(f"v_lshl_add_u32 v{vVA}, v{vPos}, 4, v{vVA}")
    a(f"v_add_u32 v{vVA}, 2560, v{vVA}")
    a(f"v_lshlrev_b32 v{vT[0]}, 3, v{vPos}")
    a(f"v_lshlrev_b32 v{vT[1]}, 2, v{vLane}")
    a(f"v_lshlrev_b32 v{vT[2]}, 2, v{vPos}")
    for t in range(4):
        a(f"v_mov_b32 v{Q2(t)+2}, 0"); a(f"v_mov_b32 v{Q2(t)+3}, 0")
    a(f"s_mov_b32 exec_lo, 0xffe00000")
    a(f"s_mov_b32 exec_hi, 0xffe00000")
    a(f"v_mov_b32 v{vVA}, {2560+672}")
    a(f"s_mov_b32 exec_lo, 0")
    a(f"s_mov_b32 exec_hi, -1")
    a(f"v_mov_b32 v{vK2A}, {2560+672}")
    a(f"s_mov_b64 exec, -1")
    a(f"s_lshl_b32 s{sT0}, s{sP}, 5")
    a(f"s_add_u32 s{sT0}, s{sT0}, s{sHd}")
    a(f"s_mul_i32 s{sT0}, s{sT0}, 1280")
    a(f"s_add_u32 s{sT0}, s{sT0}, {WS_Q}")
    a(f"s_add_u32 s{sT3}, s{sT0}, 2560")
    a(f"s_mul_i32 s{sT2}, s{sHf}, {DUO}")
    a(f"s_add_u32 s{sT2}, s{sT2}, {WS_KV}")
    a(f"s_mov_b32 s{sT1}, {WS_KN}")
    a("s_waitcnt lgkmcnt(0)")
    srd(a, SWS, 6, WS_END + (1<<20))
    vq = VMQ()
    a(f"buffer_load_dword v{vT[3]}, v{vT[1]}, s[{SWS}:{SWS+3}], s{sT1} offen"); vq.issue('q')
    for t in range(4):
        a(f"buffer_load_dwordx4 {R(Q1(t),4)}, v{vL16}, s[{SWS}:{SWS+3}], s{sT0 if t < 2 else sT3} offen offset:{1280*(t&1)}"); vq.issue('q')
    a("s_mov_b32 exec_hi, 0")
    for t in range(4):
        a(f"buffer_load_dwordx2 {R(Q2(t)+2,2)}, v{vT[0]}, s[{SWS}:{SWS+3}], s{sT0 if t < 2 else sT3} offen offset:{1280*(t&1)+1024}"); vq.issue('q')
    a("s_mov_b32 exec_hi, -1")
    a(f"buffer_load_dwordx4 {R(K1B,4)}, v{vL16}, s[{SWS}:{SWS+3}], s{sT2} offen"); vq.issue('k0')
    a(f"buffer_load_dwordx4 {R(K2B+2,4)}, v{vK2A}, s[{SWS}:{SWS+3}], s{sT2} offen"); vq.issue('k0')
    for m in range(2):
        a(f"buffer_load_dwordx4 {R(VB+4*m,4)}, v{vVA}, s[{SWS}:{SWS+3}], s{sT2} offen offset:{688*m}"); vq.issue('v0')
    a(f"buffer_load_dwordx4 {R(K1S,4)}, v{vL16}, s[{SWS}:{SWS+3}], s{sT2} offen offset:1024"); vq.issue('k1')
    for m in range(2):
        a(f"buffer_load_dwordx4 {R(VS+4*m,4)}, v{vVA}, s[{SWS}:{SWS+3}], s{sT2} offen offset:{1376+688*m}"); vq.issue('v1')
    a(f"s_lshl_b32 s{sT1}, s{sP}, 7")
    a(f"s_add_u32 s{sT1}, s{sT1}, {WS_G}")
    a(f"buffer_load_dword v{vG}, v{vT[2]}, s[{SWS}:{SWS+3}], s{sT1} offen"); vq.issue('g')
    if STAMP:
        a(f"v_writelane_b32 v{vST}, s94, 0"); a(f"v_writelane_b32 v{vST}, s96, 62")
    for t in range(4):
        a(f"v_mov_b32 v{Q2(t)+1}, 0"); a(f"v_mov_b32 v{Q2(t)+5}, 0")
        a(f"v_mov_b32 v{Q2(t)}, 0"); a(f"v_mov_b32 v{Q2(t)+4}, 0")
    for r in (0, 1, 6, 7): a(f"v_mov_b32 v{K2B+r}, 0")
    a("s_mov_b32 exec_hi, 0")
    a(f"v_mov_b32 v{K2B}, 0x3f803f80")
    a(f"v_mov_b32 v{K2B+6}, 0x3f803f80")
    a("s_mov_b32 exec_hi, -1")
    a(f"s_mul_i32 s{sT2}, s{sHf}, {DUO}")
    a(f"v_add_u32 v{vKA}, s{sT2}, v{vL16}")
    a(f"v_add_u32 v{vK2A}, s{sT2}, v{vK2A}")
    a(f"v_add_u32 v{vVA}, s{sT2}, v{vVA}")
    a(f"s_lshl_b32 s{sT1}, s{sW}, 8")
    a(f"s_add_u32 s{sT1}, s{sT1}, {L_FLAG + 256}")
    a(f"v_lshl_add_u32 v{vPr}, v{vLane}, 2, s{sT1}")
    if prio: a(f"s_setprio {prio}")
    a(f"s_mov_b32 s{sFlag}, 0")
    N = [vT[0], vT[1], vT[4], vT[5]]; N2 = [vT[2], vT[6], 94 if not STAMP else 95, 95 if not STAMP else 95]
    N2 = [204, 205, 206, 207]
    for t in range(4): a(f"v_mov_b32 v{N[t]}, 0")
    stamp(1)
    vq.wait(a, 'q')
    stamp(2)
    kn = vT[3]
    for sh in (1,2,4,8):
        a(f"v_max_f32_dpp v{kn}, v{kn}, v{kn} row_shr:{sh} row_mask:0xf bank_mask:0xf")
        r = (1,2,4,8).index(sh)
        for t in range(4): a(f"v_dot2c_f32_bf16 v{N[t]}, v{Q1(t)+r}, v{Q1(t)+r}")
    for r in (2,3):
        for t in range(4): a(f"v_dot2c_f32_bf16 v{N[t]}, v{Q2(t)+r}, v{Q2(t)+r}")
    a(f"v_readlane_b32 s{sT0}, v{kn}, 15")
    a(f"v_readlane_b32 s{sT1}, v{kn}, 31")
    a(f"v_readlane_b32 s{sT2}, v{kn}, 47")
    a(f"v_readlane_b32 s{sT3}, v{kn}, 63")
    for t in range(4): a(f"v_mov_b32 v{N2[t]}, v{N[t]}")
    a(f"s_max_u32 s{sT0}, s{sT0}, s{sT1}")
    a(f"s_max_u32 s{sT2}, s{sT2}, s{sT3}")
    a(f"s_max_u32 s{sT0}, s{sT0}, s{sT2}")
    for t in range(4): a(f"v_permlane32_swap_b32 v{N2[t]}, v{N[t]}")
    for t in range(4): a(f"v_add_f32 v{N[t]}, v{N[t]}, v{N2[t]}")
    for t in range(4): a(f"v_mul_f32 v{N[t]}, s{sT0}, v{N[t]}")
    for t in range(4): a(f"v_sqrt_f32 v{N[t]}, v{N[t]}")
    a("s_mov_b32 exec_hi, 0")
    for t in range(4): a(f"v_cvt_pk_bf16_f32 v{Q2(t)}, -v{N[t]}, 0")
    for t in range(4): a(f"v_mov_b32 v{Q2(t)+4}, v{Q2(t)}")
    a("s_mov_b32 exec_hi, -1")

    def k1reg(j): return K1S if j == 1 else K1B
    def vreg(j): return VS if j == 1 else VB
    def qk(n):
        j, t = n >> 2, n & 3
        S = SB(n & 1)
        return [f"v_mfma_f32_32x32x16_bf16 {R(S,16)}, {R(k1reg(j),4)}, {R(Q1(t),4)}, 0",
                f"v_mfma_f32_32x32x16_bf16 {R(S,16)}, {R(K2B + 4*(j&1),4)}, {R(Q2(t) + 2*(j&1),4)}, {R(S,16)}"]
    def pv(n):
        j, t = n >> 2, n & 3
        o = []
        for m in range(2):
            C = R(OB(t),16) if (j > 0 or m > 0) else "0"
            o.append(f"v_mfma_f32_32x32x16_bf16 {R(OB(t),16)}, {R(vreg(j)+4*m,4)}, {R(PB(n&1)+4*m,4)}, {C}")
        return o
    def off(jj, D0): return ((jj >> 1) - D0) * 2 * DUO
    def step(n, D0, pre=None, mid=None):
        S = SB(n & 1); P = PB(n & 1)
        Q = qk(n+1) if n + 1 < 128 else [None, None]
        V = pv(n-1) if n >= 1 else [None, None]
        rK1 = rK2 = rV1 = rV2 = None
        if n % 4 == 2:
            jj = (n >> 2) + 1
            if 2 <= jj < 32:
                rK1 = f"ds_read_b128 {R(K1B,4)}, v{vKA} offset:{off(jj, D0) + 1024*(jj&1)}"
                if (jj & 1) == 0: rK2 = f"ds_read_b128 {R(K2B+2,4)}, v{vK2A} offset:{off(jj, D0)}"
        if n % 4 == 0:
            jj = n >> 2
            if 2 <= jj < 32:
                rV1 = f"ds_read_b128 {R(VB,4)}, v{vVA} offset:{off(jj, D0) + 1376*(jj&1)}"
                rV2 = f"ds_read_b128 {R(VB+4,4)}, v{vVA} offset:{off(jj, D0) + 1376*(jj&1) + 688}"
        wK = "s_waitcnt lgkmcnt(0)" if (n % 4 == 3 and n >= 7 and n < 127) else None
        wV = "s_waitcnt lgkmcnt(0)" if (n % 4 == 1 and n >= 9) else None
        e = lambda i: f"v_exp_f32 v{S+i}, v{S+i}"
        c = lambda i: f"v_cvt_pk_bf16_f32 v{P+i}, v{S+2*i}, v{S+2*i+1}"
        if pre: pre()
        if 0 <= n < 128:
            if sched == 0:
                seq = [wK, Q[0], rK1, e(0), e(1), e(2), e(3), Q[1], rK2, e(4), e(5), c(0), c(1), e(6), e(7), wV, 'mid', V[0], rV1, c(2), e(8), c(3), e(9), e(10), e(11), V[1], rV2, c(4), e(12), c(5), e(13), e(14), e(15), c(6), c(7)]
            elif sched == 3:
                seq = [wK, Q[0], e(0), e(1), e(2), Q[1], e(3), e(4), e(5), wV, 'mid', V[0], e(6), e(7), e(8), V[1], rK1, e(9), c(0), rK2, e(10), c(1), rV1, e(11), c(2), rV2, e(12), c(3), e(13), c(4), e(14), e(15), c(5), c(6), c(7)]
            elif sched == 4:
                seq = [wK, Q[0], e(0), e(1), e(2), e(3), Q[1], rK1, e(4), e(5), c(0), rK2, e(6), c(1), e(7), wV, 'mid', V[0], e(8), c(2), e(9), c(3), e(10), e(11), V[1], rV1, e(12), c(4), e(13), rV2, e(14), c(5), e(15), c(6), c(7)]
        else:
            seq = [Q[0], Q[1], 'mid', V[0], V[1]]
        for x in seq:
            if x is None: continue
            if x == 'mid':
                if mid: mid()
            else: a(x)
    stamp(3)
    vq.wait(a, 'k0')
    step(-1, 1)
    for n in range(0, 9):
        pre = None; mid = None
        if n == 1: mid = lambda: vq.wait(a, 'v0')
        if n == 3: pre = lambda: vq.wait(a, 'k1')
        if n == 5: mid = lambda: vq.wait(a, 'v1')
        if n == 6:
            def pre():
                stamp(4); a("s_barrier"); stamp(5)
        step(n, 1, pre, mid)
    stamp(6)
    spin(f"{name}_w2", 0, 4)
    stamp(7)
    U = 8*unroll
    NIT = 112 // U
    a(f"s_mov_b32 s{sCnt}, {NIT}")
    a.label(f"{name}_loop")
    for n in range(9, 9+U): step(n, 1)
    a(f"v_add_u32 v{vKA}, {unroll*2*DUO}, v{vKA}")
    a(f"ds_write_b32 v{vPr}, v{vKA}")
    a(f"v_add_u32 v{vK2A}, {unroll*2*DUO}, v{vK2A}")
    a(f"v_add_u32 v{vVA}, {unroll*2*DUO}, v{vVA}")
    a(f"s_cmp_eq_u32 s{sCnt}, {NIT - (2 // unroll - 1)}")
    a(f"s_cbranch_scc1 {name}_w3")
    a.label(f"{name}_w3r")
    a(f"s_sub_u32 s{sCnt}, s{sCnt}, 1")
    a(f"s_cmp_lg_u32 s{sCnt}, 0")
    a(f"s_cbranch_scc1 {name}_loop")
    for n in range(121, 129): step(n, 15)
    stamp(8)
    a.label(f"{name}_fin")
    a(f"s_mul_i32 s{sT0}, s{sW}, 6144")
    a(f"s_add_u32 s{sT0}, s{sT0}, {L_XCH}")
    a(f"v_add_u32 v{vT[1]}, s{sT0}, v{vL16}")
    a(f"s_xor_b32 s{sT1}, s{sW}, 2")
    a(f"s_mul_i32 s{sT0}, s{sT1}, 6144")
    a(f"s_add_u32 s{sT0}, s{sT0}, {L_XCH}")
    a(f"v_add_u32 v{vT[2]}, s{sT0}, v{vL16}")
    a(f"v_and_b32 v{vT[3]}, 3, v{vLane}")
    a(f"v_lshlrev_b32 v{vT[3]}, 8, v{vT[3]}")
    a(f"v_add_u32 v{vT[3]}, {L_FLAG+256}, v{vT[3]}")
    a(f"v_mov_b32 v{vT[5]}, {12*2*DUO}")
    a.label(f"{name}_x0")
    a(f"ds_read_b32 v{vT[4]}, v{vT[3]}")
    a("s_waitcnt lgkmcnt(0)")
    a(f"v_cmp_lt_u32 vcc, v{vT[4]}, v{vT[5]}")
    a("s_nop 4")
    a(f"s_cbranch_vccz {name}_x0d")
    bounded(f"{name}_x0")
    a.label(f"{name}_x0d")
    a(f"s_lshl_b32 s{sT0}, s{sW}, 2")
    a(f"v_add_u32 v{vT[3]}, s{sT0}, v{vFl}")
    a(f"s_lshl_b32 s{sT0}, s{sT1}, 2")
    a(f"v_add_u32 v{vT[4]}, s{sT0}, v{vFl}")
    a(f"v_mov_b32 v{vT[5]}, 1")
    a(f"s_cmp_eq_u32 s{sHf}, 0")
    a(f"s_cbranch_scc1 {name}_x1")
    for t in range(2):
        for g in range(3): a(f"ds_write_b128 v{vT[1]}, {R(OB(t)+4*g,4)} offset:{(3*t+g)*1024}")
    for t in range(2):
        for r in range(0, 12, 2): a(f"v_pk_mul_f32 {R(OB(t)+r,2)}, {R(OB(t+2)+r,2)}, 1.0 op_sel_hi:[1,0]")
    a(f"s_add_u32 s{sHd}, s{sHd}, 2")
    a(f"s_branch {name}_x2")
    a.label(f"{name}_x1")
    for t in range(2):
        for g in range(3): a(f"ds_write_b128 v{vT[1]}, {R(OB(t+2)+4*g,4)} offset:{(3*t+g)*1024}")
    a.label(f"{name}_x2")
    a("s_waitcnt lgkmcnt(0)")
    a(f"ds_write_b32 v{vT[3]}, v{vT[5]} offset:16")
    a.label(f"{name}_x3")
    a(f"ds_read_b32 v{vT[0]}, v{vT[4]} offset:16")
    a("s_waitcnt lgkmcnt(0)")
    a(f"v_readfirstlane_b32 s{sT0}, v{vT[0]}")
    a(f"s_cmp_lg_u32 s{sT0}, 0")
    a(f"s_cbranch_scc1 {name}_x3d")
    bounded(f"{name}_x3")
    a.label(f"{name}_x3d")
    for t in range(2):
        for g in range(3): a(f"ds_read_b128 {R(OB(t+2)+4*g,4)}, v{vT[2]} offset:{(3*t+g)*1024}")
    a("s_waitcnt vmcnt(0) lgkmcnt(0)")
    for t in range(2):
        for r in range(0, 12, 2): a(f"v_pk_add_f32 {R(OB(t)+r,2)}, {R(OB(t)+r,2)}, {R(OB(t+2)+r,2)}")
    stamp(9)
    a.label(f"{name}_fin2")
    Lr = [vT[0], vT[1]]; X = [vT[2], vT[3]]
    for t in range(2):
        a(f"v_mov_b32 v{Lr[t]}, v{OB(t)+8}")
        a(f"v_mov_b32 v{X[t]}, v{OB(t)+8}")
    for t in range(2):
        a(f"v_permlane32_swap_b32 v{X[t]}, v{Lr[t]}")
    a(f"v_min_f32 v{X[0]}, v{Lr[0]}, v{Lr[1]}")
    a(f"v_mov_b32 v{X[1]}, {f2u(THR):#x}")
    a(f"v_cmp_ngt_f32 vcc, v{X[0]}, v{X[1]}")
    a(f"s_cmp_lg_u32 s{sFlag}, 0")
    a(f"s_cbranch_scc1 {name}_st")
    a(f"s_cbranch_vccnz {name}_slow")
    a.label(f"{name}_st")
    for t in range(2): a(f"v_rcp_f32 v{Lr[t]}, v{Lr[t]}")
    for t in range(2): a(f"v_mul_f32 v{Lr[t]}, v{Lr[t]}, v{vG}")
    a(f"s_and_b32 s{sT1}, s{sHd}, 7")
    a(f"s_mul_i32 s{sT1}, s{sT1}, 5")
    a(f"v_add_u32 v{vT[4]}, s{sT1}, v{vH}")
    for t in range(2):
        O = OB(t)
        for r in range(12): a(f"v_mul_f32 v{O+r}, v{O+r}, v{Lr[t]}")
        for r in range(6): a(f"v_cvt_pk_bf16_f32 v{PB(t)+r}, v{O+2*r}, v{O+2*r+1}")
        for aa in range(3):
            g = vT[5]; ad = vT[6]; tmp = X[0]
            a(f"v_add_u32 v{g}, {5*t + 2*aa}, v{vT[4]}")
            a(f"v_lshrrev_b32 v{ad}, 2, v{g}")
            a(f"v_lshlrev_b32 v{ad}, 10, v{ad}")
            a(f"v_and_b32 v{tmp}, 1, v{g}")
            a(f"v_lshl_add_u32 v{tmp}, v{tmp}, 5, v{vPos}")
            a(f"v_lshl_add_u32 v{ad}, v{tmp}, 4, v{ad}")
            a(f"v_bfe_u32 v{tmp}, v{g}, 1, 1")
            a(f"v_lshl_add_u32 v{ad}, v{tmp}, 3, v{ad}")
            a(f"v_add_u32 v{ad}, {L_OST}, v{ad}")
            if aa == 2: a("s_mov_b32 exec_hi, 0")
            a(f"ds_write_b64 v{ad}, v[{PB(t)+2*aa}:{PB(t)+2*aa+1}]")
            if aa == 2: a("s_mov_b32 exec_hi, -1")
    a(f"v_mov_b32 v{vT[0]}, 1")
    a("s_waitcnt lgkmcnt(0)")
    a("s_mov_b64 exec, 1")
    a(f"ds_add_rtn_u32 v{vT[1]}, v{vFl}, v{vT[0]} offset:12")
    a("s_mov_b64 exec, -1")
    a(f"v_add_u32 v{vT[2]}, {L_OST}, v{vL16}")
    a(f"s_bfe_u32 s{sT1}, s2, 0x20003")
    a(f"s_mul_i32 s{sT1}, s{sT1}, 10")
    a(f"s_mul_i32 s{sT0}, s{sP}, 40")
    a(f"s_add_u32 s{sT0}, s{sT0}, s{sT1}")
    a(f"s_lshl_b32 s{sT0}, s{sT0}, 10")
    a(f"s_add_u32 s{sT0}, s{sT0}, {WS_O}")
    a(f"s_add_u32 s{sT1}, s{sT0}, 4096")
    a(f"s_add_u32 s{sT2}, s{sT0}, 8192")
    a("s_waitcnt lgkmcnt(0)")
    a(f"v_readfirstlane_b32 s{sT3}, v{vT[1]}")
    a(f"s_cmp_lg_u32 s{sT3}, 3")
    a(f"s_cbranch_scc1 {name}_adone")
    for k in range(10): a(f"ds_read_b128 {R(96+4*k,4)}, v{vT[2]} offset:{1024*k}")
    for k in range(10):
        a(f"s_waitcnt lgkmcnt({9-k})")
        a(f"buffer_store_dwordx4 {R(96+4*k,4)}, v{vL16}, s[{SWS}:{SWS+3}], s{(sT0,sT1,sT2)[k//4]} offen offset:{1024*(k%4)} sc1")
    a(f"s_lshl_b32 s{sT0}, s2, 7")
    a(f"s_add_u32 s{sT0}, s{sT0}, {WS_FLAG}")
    a(f"v_mov_b32 v{vT[1]}, 0")
    stamp(10)
    a("s_waitcnt vmcnt(0)")
    a("s_mov_b64 exec, 1")
    a(f"buffer_store_dword v{vT[0]}, v{vT[1]}, s[{SWS}:{SWS+3}], s{sT0} offen sc1")
    a("s_mov_b64 exec, -1")
    a.label(f"{name}_adone")
    stamp_out()
    a("s_endpgm")
    a.label(f"{name}_w3")
    spin(f"{name}_w3s", 8, 4)
    a(f"s_branch {name}_w3r")
    a.label(f"{name}_slow")
    a(f"s_mov_b32 s{sFlag}, 1")
    a(f"s_cmp_eq_u32 s{sHf}, 0")
    a(f"s_cbranch_scc1 {name}_sl0")
    for t in range(2):
        for r in range(4): a(f"v_mov_b32 v{Q1(t)+r}, v{Q1(t+2)+r}")
        for r in range(6): a(f"v_mov_b32 v{Q2(t)+r}, v{Q2(t+2)+r}")
    a.label(f"{name}_sl0")
    a(f"s_mul_i32 s{sT2}, s{sHf}, {DUO}")
    a(f"s_add_u32 s{sT2}, s{sT2}, {28*DUO}")
    a(f"v_subrev_u32 v{vK2A}, s{sT2}, v{vK2A}")
    a(f"v_subrev_u32 v{vVA}, s{sT2}, v{vVA}")
    M = [vT[4], vT[5]]
    for t in range(2):
        a(f"v_mov_b32 v{M[t]}, 0xff7fffff")
        a(f"v_mov_b32 v{Q2(t)}, 0"); a(f"v_mov_b32 v{Q2(t)+4}, 0")
    def slow_loads(withv):
        a(f"buffer_load_dwordx4 {R(K1B,4)}, v{vL16}, s[{SWS}:{SWS+3}], s{sOff} offen")
        a(f"buffer_load_dwordx4 {R(K1S,4)}, v{vL16}, s[{SWS}:{SWS+3}], s{sOff} offen offset:1024")
        a(f"buffer_load_dwordx4 {R(K2B+2,4)}, v{vK2A}, s[{SWS}:{SWS+3}], s{sOff} offen")
        if withv:
            for jj in range(2):
                for m in range(2):
                    a(f"buffer_load_dwordx4 {R(vreg(jj)+4*m,4)}, v{vVA}, s[{SWS}:{SWS+3}], s{sOff} offen offset:{1376*jj+688*m}")
        a("s_waitcnt vmcnt(0)")
    def slow_qk(jj):
        for t in range(2):
            a(f"v_mfma_f32_32x32x16_bf16 {R(SB(t),16)}, {R(k1reg(jj),4)}, {R(Q1(t),4)}, 0")
            a(f"v_mfma_f32_32x32x16_bf16 {R(SB(t),16)}, {R(K2B+4*jj,4)}, {R(Q2(t)+2*jj,4)}, {R(SB(t),16)}")
    a(f"s_mov_b32 s{sOff}, {WS_KV}")
    a(f"s_mov_b32 s{sCnt}, 32")
    a.label(f"{name}_sl1")
    slow_loads(False)
    for jj in range(2):
        slow_qk(jj)
        for t in range(2):
            for r in range(0, 16, 2): a(f"v_max3_f32 v{M[t]}, v{SB(t)+r}, v{SB(t)+r+1}, v{M[t]}")
    a(f"s_add_u32 s{sOff}, s{sOff}, {DUO}")
    a(f"s_sub_u32 s{sCnt}, s{sCnt}, 1")
    a(f"s_cmp_lg_u32 s{sCnt}, 0")
    a(f"s_cbranch_scc1 {name}_sl1")
    for t in range(2): a(f"v_mov_b32 v{vT[t]}, v{M[t]}")
    for t in range(2): a(f"v_permlane32_swap_b32 v{vT[t]}, v{M[t]}")
    for t in range(2): a(f"v_max_f32 v{M[t]}, v{M[t]}, v{vT[t]}")
    for t in range(2):
        a(f"v_cvt_pk_bf16_f32 v{vT[t]}, -v{M[t]}, 0")
        a(f"v_lshlrev_b32 v{vT[t]}, 16, v{vT[t]}")
        a(f"v_sub_f32 v{vT[2+t]}, -v{M[t]}, v{vT[t]}")
    a("s_mov_b32 exec_hi, 0")
    for t in range(2):
        a(f"v_cvt_pk_bf16_f32 v{Q2(t)}, v{vT[t]}, v{vT[2+t]}")
        a(f"v_mov_b32 v{Q2(t)+4}, v{Q2(t)}")
    a("s_mov_b32 exec_hi, -1")
    for t in range(2):
        for r in range(16): a(f"v_mov_b32 v{OB(t)+r}, 0")
    a(f"s_mov_b32 s{sOff}, {WS_KV}")
    a(f"s_mov_b32 s{sCnt}, 32")
    a.label(f"{name}_sl2")
    slow_loads(True)
    for jj in range(2):
        slow_qk(jj)
        for t in range(2):
            for r in range(16): a(f"v_exp_f32 v{SB(t)+r}, v{SB(t)+r}")
            for r in range(8): a(f"v_cvt_pk_bf16_f32 v{PB(t)+r}, v{SB(t)+2*r}, v{SB(t)+2*r+1}")
            for m in range(2):
                a(f"v_mfma_f32_32x32x16_bf16 {R(OB(t),16)}, {R(vreg(jj)+4*m,4)}, {R(PB(t)+4*m,4)}, {R(OB(t),16)}")
    a(f"s_add_u32 s{sOff}, s{sOff}, {DUO}")
    a(f"s_sub_u32 s{sCnt}, s{sCnt}, 1")
    a(f"s_cmp_lg_u32 s{sCnt}, 0")
    a(f"s_cbranch_scc1 {name}_sl2")
    a("s_nop 15")
    a(f"s_branch {name}_fin2")
    a.label(f"{name}_ld")
    FB = lambda b: 16 + 24*b
    ACC = lambda i: 96 + 16*i
    sGw = 19; sA = 20; sB = 21; sCG = 22; SKV = 24
    a(f"v_lshl_add_u32 v{vT[1]}, v{vLane}, 4, v{vFl}")
    for r in range(12, 16): a(f"v_mov_b32 v{r}, 0")
    a(f"ds_write_b128 v{vT[1]}, v[12:15]")
    a(f"ds_write_b128 v{vT[1]}, v[12:15] offset:1024")
    a(f"s_sub_u32 s{sGw}, s{sW}, 4")
    a(f"s_bfe_u32 s{sCG}, s2, 0x20003")
    a(f"s_lshr_b32 s{sT3}, s2, 3")
    a(f"s_mul_i32 s{sT3}, s{sT3}, {42*128}")
    a(f"s_add_u32 s{sT3}, s{sT3}, {WS_KV}")
    a(f"v_lshlrev_b32 v{vT[2]}, 7, v{vLane}")
    a("s_waitcnt lgkmcnt(0)")
    SO = 32
    srd(a, SO, 30, S*D*2)
    srd(a, SKV, 6, WS_KV + 32*DUO)
    srd(a, SWS, 6, WS_END + (1<<20))
    if STAMP:
        a(f"v_writelane_b32 v{vST}, s94, 0"); a(f"v_writelane_b32 v{vST}, s96, 62")
    gq = VMQ()
    a(f"buffer_load_dword v{vT[6]}, v{vT[2]}, s[{SKV}:{SKV+3}], s{sT3} offen"); gq.issue('t')
    a(f"s_lshl_b32 s{sT0}, s{sGw}, 10")
    a(f"s_add_u32 s{sT1}, s{sT0}, {WS_KV + 2*DUO}")
    NB = (30*DUO + 4095)//4096
    P1 = 3; P2 = 11
    def kvdma(r):
        a(f"s_add_u32 m0, s{sT0}, {r*4096}")
        a(f"s_add_u32 s{sT2}, s{sT1}, {r*4096}")
        a(f"buffer_load_dwordx4 v{vL16}, s[{SKV}:{SKV+3}], s{sT2} offen lds")
        gq.issue('p1' if r < P1 else ('p2' if r < P2 else 'p3'))
    def signal(offv):
        a(f"v_mov_b32 v{vT[0]}, 1")
        a("s_mov_b64 exec, 1")
        a(f"ds_add_u32 v{vFl}, v{vT[0]} offset:{offv}")
        a("s_mov_b64 exec, -1")
    a("s_sleep 4")
    for r in range(P2): kvdma(r)
    gq.wait(a, 'p1')
    a("s_barrier")
    stamp(1)
    for r in range(P2, P2+8): kvdma(r)
    gq.wait(a, 'p2')
    signal(0)
    for r in range(P2+8, NB): kvdma(r)
    if not gwork:
        gq.wait(a, 'p3')
        signal(8)
        a("s_endpgm")
    else:
        a(f"s_mul_i32 s{sT0}, s{sGw}, 27")
        a(f"s_mul_i32 s{sB}, s{sP}, 108")
        a(f"s_add_u32 s{sB}, s{sB}, s{sT0}")
        a(f"s_lshl_b32 s{sB}, s{sB}, 10")
        a(f"s_add_u32 s{sB}, s{sB}, {WS_H}")
        a(f"s_mul_i32 s{sA}, s{sCG}, 108")
        a(f"s_add_u32 s{sA}, s{sA}, s{sT0}")
        a(f"s_mul_i32 s{sA}, s{sA}, 5120")
        a(f"s_add_u32 s{sA}, s{sA}, {WS_WD}")
        a(f"v_lshlrev_b32 v{vT[1]}, 2, v{vPos}")
        a(f"s_lshl_b32 s{sT1}, s{sP}, 7")
        a(f"s_add_u32 s{sT1}, s{sT1}, {WS_G}")
        a(f"buffer_load_dword v{vG}, v{vT[1]}, s[{SWS}:{SWS+3}], s{sT1} offen"); gq.issue('g')
        def loads(s_):
            b = FB(s_ % 3)
            a(f"buffer_load_dwordx4 {R(b,4)}, v{vL16}, s[{SWS}:{SWS+3}], s{sB} offen"); gq.issue(s_)
            for i in range(4):
                a(f"buffer_load_dwordx4 {R(b+4+4*i,4)}, v{vL16}, s[{SWS}:{SWS+3}], s{sA} offen offset:{1024*i}"); gq.issue(s_)
            a(f"s_add_u32 s{sT0}, s{sA}, 4096")
            a(f"buffer_load_dwordx4 {R(b+20,4)}, v{vL16}, s[{SWS}:{SWS+3}], s{sT0} offen"); gq.issue(s_)
            a(f"s_add_u32 s{sB}, s{sB}, 1024")
            a(f"s_add_u32 s{sA}, s{sA}, 5120")
        for s_ in range(3): loads(s_)
        gq.wait(a, 'p3')
        signal(8)
        stamp(2)
        for s_ in range(27):
            gq.wait(a, s_)
            b = FB(s_ % 3)
            for i in range(5):
                C = R(ACC(i),16) if s_ > 0 else "0"
                a(f"v_mfma_f32_32x32x16_bf16 {R(ACC(i),16)}, {R(b+4+4*i,4)}, {R(b,4)}, {C}")
            if s_ + 3 < 27: loads(s_+3)
        stamp(3)
        WR = [16, 36, 56, 76, 176, 196]
        OR = lambda s_: 216 + 4*s_
        a(f"s_mul_i32 s{sT0}, s{sGw}, 10")
        a(f"s_mul_i32 s{sA}, s{sCG}, 40")
        a(f"s_add_u32 s{sA}, s{sA}, s{sT0}")
        a(f"s_mul_i32 s{sA}, s{sA}, 5120")
        a(f"s_add_u32 s{sA}, s{sA}, {WS_WO}")
        a(f"s_mul_i32 s{sB}, s{sP}, 40")
        a(f"s_add_u32 s{sB}, s{sB}, s{sT0}")
        a(f"s_lshl_b32 s{sB}, s{sB}, 10")
        a(f"s_add_u32 s{sB}, s{sB}, {WS_O}")
        def wloads(s_):
            b = WR[s_ % 6]
            for i in range(4):
                a(f"buffer_load_dwordx4 {R(b+4*i,4)}, v{vL16}, s[{SWS}:{SWS+3}], s{sA} offen offset:{1024*i}"); gq.issue(('w', s_))
            a(f"s_add_u32 s{sT0}, s{sA}, 4096")
            a(f"buffer_load_dwordx4 {R(b+16,4)}, v{vL16}, s[{SWS}:{SWS+3}], s{sT0} offen"); gq.issue(('w', s_))
            a(f"s_add_u32 s{sA}, s{sA}, 5120")
        vSTs = vST
        if STAMP: a(f"v_mov_b32 v14, v{vST}")
        for s_ in range(6): wloads(s_)
        a(f"v_lshlrev_b32 v{vT[2]}, 7, v{vLane}")
        for i in range(3):
            a(f"s_add_u32 s{sT0}, s{sA}, {8192*i}")
            a(f"buffer_load_dword v{vT[6]}, v{vT[2]}, s[{SWS}:{SWS+3}], s{sT0} offen"); gq.issue('t')
        a(f"v_sub_f32 v{vG}, 1.0, v{vG}")
        a(f"v_mov_b32 v{vG+1}, v{vG}")
        for r in range(96, 176, 2): a(f"v_pk_mul_f32 {R(r,2)}, {R(r,2)}, {R(vG,2)}")
        a(f"v_and_b32 v{vT[1]}, 3, v{vLane}")
        a(f"v_lshlrev_b32 v{vT[1]}, 8, v{vT[1]}")
        a(f"v_add_u32 v{vT[1]}, {L_FLAG+256}, v{vT[1]}")
        a(f"v_mov_b32 v{vT[3]}, {14*2*DUO}")
        a.label(f"{name}_g3")
        a(f"ds_read_b32 v{vT[2]}, v{vT[1]}")
        a("s_waitcnt lgkmcnt(0)")
        a(f"v_cmp_lt_u32 vcc, v{vT[2]}, v{vT[3]}")
        a("s_nop 4")
        a(f"s_cbranch_vccz {name}_g3d")
        a("s_sleep 8")
        bounded(f"{name}_g3")
        a.label(f"{name}_g3d")
        a(f"s_andn2_b32 s{sT1}, s2, 0x18")
        a(f"s_lshl_b32 s{sT0}, s{sGw}, 3")
        a(f"s_or_b32 s{sT1}, s{sT1}, s{sT0}")
        a(f"s_lshl_b32 s{sT1}, s{sT1}, 7")
        a(f"s_add_u32 s{sT1}, s{sT1}, {WS_FLAG}")
        a(f"v_mov_b32 v{vT[1]}, 0")
        a("s_waitcnt vmcnt(0)"); gq.q = []
        a.label(f"{name}_g5")
        a(f"buffer_load_dword v{vT[2]}, v{vT[1]}, s[{SWS}:{SWS+3}], s{sT1} offen sc1")
        a("s_waitcnt vmcnt(0)")
        a(f"v_readfirstlane_b32 s{sT0}, v{vT[2]}")
        a(f"s_cmp_eq_u32 s{sT0}, 1")
        a(f"s_cbranch_scc1 {name}_g5d")
        a("s_sleep 1")
        bounded(f"{name}_g5")
        a.label(f"{name}_g5d")
        a(f"s_add_u32 s{sT1}, s{sB}, 4096")
        a(f"s_add_u32 s{sT2}, s{sB}, 8192")
        for s_ in range(10):
            a(f"buffer_load_dwordx4 {R(OR(s_),4)}, v{vL16}, s[{SWS}:{SWS+3}], s{(sB,sT1,sT2)[s_//4]} offen offset:{1024*(s_%4)} sc1"); gq.issue(('o', s_))
        if STAMP:
            a("s_memtime s[92:93]"); a("s_waitcnt lgkmcnt(0)"); a(f"v_writelane_b32 v14, s92, 4")
        for s_ in range(10):
            gq.wait(a, ('o', s_) if s_ < 6 else ('w', s_))
            b = WR[s_ % 6]
            for i in range(5):
                a(f"v_mfma_f32_32x32x16_bf16 {R(ACC(i),16)}, {R(b+4*i,4)}, {R(OR(s_),4)}, {R(ACC(i),16)}")
            if s_ + 6 < 10: wloads(s_ + 6)
        if STAMP:
            a(f"v_mov_b32 v{vST}, v14")
        stamp(5)
        a(f"v_mov_b32 v{vFl}, {L_FLAG}")
        a(f"s_mul_i32 s{sT0}, s{sGw}, 20480")
        a(f"v_add_u32 v{vT[1]}, s{sT0}, v{vL16}")
        for gi in range(20):
            a(f"ds_write_b128 v{vT[1]}, {R(96+4*gi,4)} offset:{1024*gi}")
        a("s_waitcnt lgkmcnt(0)")
        signal(4)
        a(f"s_mul_i32 s{sT0}, s{sGw}, 5120")
        a(f"v_add_u32 v{vT[1]}, s{sT0}, v{vL16}")
        a(f"v_add_u32 v{vT[4]}, 40960, v{vT[1]}")
        a(f"v_mul_u32_u24 v{vT[3]}, 1280, v{vPos}")
        a(f"v_lshrrev_b32 v{vT[5]}, 5, v{vLane}")
        a(f"v_lshl_add_u32 v{vT[3]}, v{vT[5]}, 3, v{vT[3]}")
        a(f"s_mul_i32 s{sT1}, s{sP}, {32*1280}")
        a(f"s_mul_i32 s{sT2}, s{sCG}, 320")
        a(f"s_add_u32 s{sT1}, s{sT1}, s{sT2}")
        a(f"s_mul_i32 s{sT2}, s{sGw}, 80")
        a(f"s_add_u32 s{sT1}, s{sT1}, s{sT2}")
        spin(f"{name}_g4", 4, 4)
        for src in range(4):
            for gi in range(5):
                if src*5+gi == 12: a("s_waitcnt lgkmcnt(4)")
                a(f"ds_read_b128 {R(96+20*src+4*gi,4)}, v{vT[1] if src < 2 else vT[4]} offset:{(src&1)*20480 + 1024*gi}")
        a("s_waitcnt lgkmcnt(0)")
        Pp = lambda r: f"v[{r}:{r+1}]"
        for (d, s_) in ((0,1),(2,3),(0,2)):
            for r in range(0, 20, 2): a(f"v_pk_add_f32 {Pp(96+20*d+r)}, {Pp(96+20*d+r)}, {Pp(96+20*s_+r)}")
        for r in range(10): a(f"v_cvt_pk_bf16_f32 v{120+r}, v{96+2*r}, v{97+2*r}")
        for gi in range(5):
            a(f"buffer_store_dwordx2 {Pp(120+2*gi)}, v{vT[3]}, s[{SO}:{SO+3}], s{sT1} offen offset:{16*gi}")
        stamp_out()
    a.label(f"{name}_end")
    a("s_endpgm")
    return dict(name=name, vgpr=256, lds=K2_LDS, block=512, grid=256)
```

```python
from asmlib import *
from layout import *

def srd(a, d, base, size):
    a(f"s_mov_b32 s{d}, s{base}")
    a(f"s_and_b32 s{d+1}, s{base+1}, 0xffff")
    a(f"s_mov_b32 s{d+2}, {size}")
    a(f"s_mov_b32 s{d+3}, 0x20000")

class VMQ:
    def __init__(self): self.q = []
    def issue(self, tag): self.q.append(tag)
    def wait(self, a, tag, extra=''):
        if tag not in self.q: return
        last = max(i for i, t in enumerate(self.q) if t == tag)
        n = len(self.q) - 1 - last
        assert n <= 63
        a(f"s_waitcnt vmcnt({n}){extra}")
        self.q = self.q[last+1:]
    def copy(self):
        v = VMQ(); v.q = list(self.q); return v

L_X = 0
L_W = 98304
L_S = 147456
K1_LDS = 163840

STAMP = False
TOUCH = True
SKIP_H = False
def gen_k1(a, name='k1_kernel'):
    vST = 175
    def stamp(i):
        if not STAMP: return
        a("s_memtime s[92:93]")
        a("s_waitcnt lgkmcnt(0)")
        a(f"v_writelane_b32 v{vST}, s92, {i}")
    def stamp_out():
        if not STAMP: return
        stamp(63)
        a("s_memrealtime s[92:93]")
        a("s_waitcnt lgkmcnt(0)")
        a(f"v_writelane_b32 v{vST}, s92, 61")
        a("s_lshl_b32 s92, s2, 3")
        a("s_add_u32 s92, s92, s3")
        a("s_lshl_b32 s92, s92, 8")
        a(f"s_add_u32 s92, s92, {WS_END}")
        a("v_lshlrev_b32 v174, 2, v11")
        a(f"buffer_store_dword v{vST}, v174, s[20:23], s92 offen")
    vXA = [1,2,3,4]; vWA = 5; vKA = 6; vXD = [7,8]; vWD = 9; vL16 = 10; vLane = 11; vT = [12,13,14,15,16,17,18,19]
    FX = lambda b,t: 24 + b*8 + t*4
    FW = lambda b,p: 40 + b*8 + p*4
    FK = lambda b: 56 + b*4
    ACC = lambda p,t: 64 + (p*2+t)*16
    JACC = 128
    TMP = 144
    sW = 3
    sRB = 4; sCT = 5
    SX = 8; SA = 12; SB = 16; SWS = 20; SK = 24; SV = 28; SR = 32
    sXoff = 40; sWoff = 41; sLdw = 42; sM0x = 43; sM0w = 44; sT0 = 45; sT1 = 46; sT2 = 47; sT3=48; sWstep = 49; sP = 50; sKoff = 51; sM0k = 52; sExecK=54
    sWoffB = 56
    a(f".p2align 8\n.globl {name}\n.type {name},@function")
    a.label(name)
    a(f"s_cmp_ge_u32 s2, 256")
    a(f"s_cbranch_scc1 {name}_end")
    a("s_load_dwordx4 s[60:63], s[0:1], 0")
    a("s_load_dwordx4 s[64:67], s[0:1], 16")
    a("s_load_dwordx2 s[68:69], s[0:1], 32")
    a("s_load_dwordx4 s[72:75], s[0:1], 48")
    a("s_load_dwordx4 s[76:79], s[0:1], 64")
    a("s_load_dwordx2 s[80:81], s[0:1], 96")
    if STAMP:
        a("s_memtime s[94:95]")
        a("s_memrealtime s[96:97]")
    a(f"v_lshrrev_b32 v{vT[0]}, 6, v0")
    a(f"v_and_b32 v{vLane}, 63, v0")
    a(f"v_readfirstlane_b32 s{sW}, v{vT[0]}")
    a(f"s_and_b32 s{sT0}, s2, 7")
    a(f"s_lshr_b32 s{sT1}, s2, 3")
    a(f"s_and_b32 s{sRB}, s{sT0}, 1")
    a(f"s_lshl_b32 s{sRB}, s{sRB}, 2")
    a(f"s_and_b32 s{sT2}, s{sT1}, 3")
    a(f"s_add_u32 s{sRB}, s{sRB}, s{sT2}")
    a(f"s_lshr_b32 s{sCT}, s{sT0}, 1")
    a(f"s_lshl_b32 s{sCT}, s{sCT}, 3")
    a(f"s_lshr_b32 s{sT2}, s{sT1}, 2")
    a(f"s_add_u32 s{sCT}, s{sCT}, s{sT2}")
    L = vLane
    t0,t1,t2,t3,t4,t5 = vT[:6]
    a(f"v_lshlrev_b32 v{vL16}, 4, v{L}")
    a(f"v_lshrrev_b32 v{t0}, 3, v{L}")
    a(f"v_and_b32 v{t1}, 7, v{L}")
    a(f"v_lshrrev_b32 v{t2}, 1, v{t0}")
    a(f"v_xor_b32 v{t3}, v{t1}, v{t2}")
    a(f"v_mul_u32_u24 v{t4}, 1280, v{t0}")
    a(f"v_lshl_add_u32 v{vXD[0]}, v{t3}, 4, v{t4}")
    a(f"v_xor_b32 v{t3}, 4, v{t3}")
    a(f"v_lshl_add_u32 v{vXD[1]}, v{t3}, 4, v{t4}")
    a(f"v_add_u32 v{vXD[1]}, {8*1280}, v{vXD[1]}")
    a(f"v_and_b32 v{t3}, 1, v{t2}")
    a(f"v_lshlrev_b32 v{t3}, 2, v{t3}")
    a(f"v_xor_b32 v{t3}, v{t3}, v{t1}")
    a(f"v_lshlrev_b32 v{vWD}, 4, v{t3}")
    a(f"v_and_b32 v{t1}, 31, v{L}")
    a(f"v_lshrrev_b32 v{t2}, 5, v{L}")
    a(f"v_bfe_u32 v{t3}, v{L}, 1, 3")
    a(f"v_xor_b32 v{t3}, v{t3}, v{t2}")
    a(f"v_lshlrev_b32 v{t3}, 4, v{t3}")
    a(f"v_lshl_add_u32 v{t3}, v{t1}, 7, v{t3}")
    a(f"s_lshr_b32 s{sT0}, s{sW}, 1")
    a(f"s_mul_i32 s{sT0}, s{sT0}, 24576")
    a(f"v_add_u32 v{vXA[0]}, s{sT0}, v{t3}")
    for s in range(1,4):
        a(f"v_xor_b32 v{vXA[s]}, {32*s}, v{vXA[0]}")
    a(f"v_bfe_u32 v{t1}, v{L}, 2, 2")
    a(f"v_and_b32 v{t3}, 3, v{L}")
    a(f"v_bfe_u32 v{t4}, v{L}, 4, 1")
    a(f"v_lshlrev_b32 v{t3}, 3, v{t3}")
    a(f"v_lshl_add_u32 v{t3}, v{t4}, 5, v{t3}")
    a(f"v_lshrrev_b32 v{t4}, 1, v{t1}")
    a(f"s_and_b32 s{sT0}, s{sW}, 1")
    a(f"v_xor_b32 v{t4}, s{sT0}, v{t4}")
    a(f"v_lshl_add_u32 v{t4}, v{t4}, 6, v{t3}")
    a(f"v_lshl_add_u32 v{t5}, v{t2}, 3, v{t1}")
    a(f"v_lshl_add_u32 v{vWA}, v{t5}, 7, v{t4}")
    a(f"v_add_u32 v{vWA}, {L_W}, v{vWA}")
    a(f"v_mul_u32_u24 v{vKA}, 40, v{t5}")
    a(f"v_add_u32 v{vKA}, v{vKA}, v{t3}")
    a(f"s_mul_i32 s{sT0}, s{sT0}, 2560")
    a(f"s_add_u32 s{sT0}, s{sT0}, {L_S}")
    a(f"v_add_u32 v{vKA}, s{sT0}, v{vKA}")
    a(f"v_lshl_add_u32 v{t5}, v{t2}, 2, v{t1}")
    a(f"v_lshrrev_b32 v{t4}, 1, v{t1}")
    a(f"v_lshl_add_u32 v{t4}, v{t4}, 6, v{t3}")
    a(f"v_lshl_add_u32 v{vT[6]}, v{t5}, 7, v{t4}")
    a(f"s_lshl_b32 s{sT0}, s{sW}, 11")
    a(f"s_add_u32 s{sT0}, s{sT0}, {L_S}")
    a(f"v_add_u32 v{vT[6]}, s{sT0}, v{vT[6]}")
    a(f"v_xor_b32 v{vT[7]}, 64, v{vT[6]}")
    a(f"s_lshl_b32 s{sT0}, s{sRB}, 8")
    a(f"s_lshl_b32 s{sT1}, s{sW}, 5")
    a(f"s_add_u32 s{sT0}, s{sT0}, s{sT1}")
    a(f"s_mul_i32 s{sXoff}, s{sT0}, 1280")
    a(f"s_lshr_b32 s{sT0}, s{sW}, 1")
    a(f"s_mul_i32 s{sM0x}, s{sT0}, 24576")
    a(f"s_and_b32 s{sT0}, s{sW}, 1")
    a(f"s_lshl_b32 s{sT0}, s{sT0}, 12")
    a(f"s_add_u32 s{sM0x}, s{sM0x}, s{sT0}")
    a(f"s_lshl_b32 s{sM0w}, s{sW}, 10")
    a(f"s_add_u32 s{sM0w}, s{sM0w}, {L_W}")
    a("s_waitcnt lgkmcnt(0)")
    stamp(1)
    if STAMP:
        a(f"v_writelane_b32 v{vST}, s94, 0")
        a(f"v_writelane_b32 v{vST}, s96, 62")
    srd(a, SX, 60, S*D*2)
    srd(a, SWS, 80, WS_END + (1<<20))
    a(f"s_lshl_b32 s{sT0}, s2, 7")
    a(f"s_add_u32 s{sT0}, s{sT0}, {WS_FLAG}")
    a(f"v_mov_b32 v21, 0")
    a(f"s_mov_b64 exec, 1")
    a(f"buffer_store_dword v21, v21, s[{SWS}:{SWS+3}], s{sT0} offen")
    a(f"s_lshl_b32 s{sT0}, s2, 2")
    a(f"s_add_u32 s{sT0}, s{sT0}, {WS_FLH}")
    a(f"buffer_store_dword v21, v21, s[{SWS}:{SWS+3}], s{sT0} offen")
    a(f"s_mov_b64 exec, -1")
    a(f"s_cmp_ge_u32 s{sCT}, 27")
    a(f"s_cbranch_scc1 {name}_q")

    def dma_list(vq, c, kv):
        st = c % 3
        L = []
        def xd(j):
            a(f"s_add_u32 m0, s{sM0x}, {st*8192 + j*1024}")
            a(f"s_add_u32 s{sT0}, s{sXoff}, {c*128 + (j>>1)*16*1280}")
            a(f"buffer_load_dwordx4 v{vXD[j&1]}, s[{SX}:{SX+3}], s{sT0} offen lds")
            vq.issue(('c', c))
        def wd(p):
            a(f"s_add_u32 m0, s{sM0w}, {st*16384 + p*8192}")
            a(f"s_mul_i32 s{sT1}, s{sWstep}, {c}")
            a(f"s_add_u32 s{sT0}, s{sWoffB if p else sWoff}, s{sT1}")
            a(f"buffer_load_dwordx4 v{vWD}, s[{SB if p else SA}:{(SB if p else SA)+3}], s{sT0} offen lds")
            vq.issue(('c', c))
        def kd_():
            a(f"s_add_u32 m0, s{sM0k}, {st*5120}")
            a(f"s_add_u32 s{sT0}, s{sKoff}, {c*2560}")
            a(f"s_mov_b64 exec, s[{sExecK}:{sExecK+1}]")
            a(f"buffer_load_dwordx4 v{vL16}, s[{SK}:{SK+3}], s{sT0} offen lds")
            a(f"s_mov_b64 exec, -1")
            vq.issue(('c', c))
        L = [lambda: wd(0), lambda: wd(1)] + [(lambda j=j: xd(j)) for j in range(4)]
        if kv: L.append(kd_)
        return L
    def dma_chunk(vq, c, kv):
        for f in dma_list(vq, c, kv): f()
    STC = 36; sTch = 57; sTstep = 58; vTch = 20
    def touch_setup(ldw):
        a(f"s_lshr_b32 s{sT2}, s2, 3")
        a(f"s_lshr_b32 s{sT0}, s{sT2}, 2")
        a(f"s_lshl_b32 s{sT0}, s{sT0}, 5")
        a(f"s_lshl_b32 s{sT1}, s{sW}, 3")
        a(f"s_add_u32 s{sT0}, s{sT0}, s{sT1}")
        a(f"s_lshl_b32 s{sT1}, s{sRB}, 8")
        a(f"s_add_u32 s{sT0}, s{sT0}, s{sT1}")
        a(f"s_mul_i32 s{sTch}, s{sT0}, 1280")
        a(f"s_and_b32 s{sT2}, s{sT2}, 3")
        a(f"s_lshl_b32 s{sT2}, s{sT2}, 1")
        a(f"s_and_b32 s{sT0}, s{sW}, 1")
        a(f"s_add_u32 s{sT2}, s{sT2}, s{sT0}")
        a(f"s_sub_u32 s{sT2}, s{sT2}, s{sW}")
        a(f"s_mul_i32 s{sT2}, s{sT2}, {8*ldw}")
        a(f"s_cmp_ge_u32 s{sW}, 6")
        a(f"s_cselect_b32 s{sT0}, s{sWoffB}, s{sWoff}")
        a(f"s_cselect_b32 s{STC}, s{SB}, s{SA}")
        a(f"s_cselect_b32 s{STC+1}, s{SB+1}, s{SA+1}")
        a(f"s_add_u32 s{sT2}, s{sT2}, s{sT0}")
        a(f"s_cmp_ge_u32 s{sW}, 4")
        a(f"s_cselect_b32 s{sTch}, s{sT2}, s{sTch}")
        a(f"s_cselect_b32 s{STC}, s{STC}, s{SX}")
        a(f"s_cselect_b32 s{STC+1}, s{STC+1}, s{SX+1}")
        a(f"s_cselect_b32 s{STC+2}, s{SA+2}, s{SX+2}")
        a(f"s_mov_b32 s{STC+3}, 0x20000")
        a(f"s_mov_b32 s{sTstep}, 128")
        a(f"s_cselect_b32 s{sTstep}, s{sWstep}, s{sTstep}")
        a(f"s_mov_b32 s{sT0}, 1280")
        a(f"s_cselect_b32 s{sT0}, {ldw}, s{sT0}")
        a(f"v_mul_lo_u32 v{vTch}, s{sT0}, v{L}")
    def touch(vq, c):
        a(f"s_mul_i32 s{sT0}, s{sTstep}, {c}")
        a(f"s_add_u32 s{sT0}, s{sT0}, s{sTch}")
        a(f"s_mov_b64 exec, 0xff")
        a(f"buffer_load_dword v{vTch+1}, v{vTch}, s[{STC}:{STC+3}], s{sT0} offen"); vq.issue('t')
        a(f"s_mov_b64 exec, -1")

    def reads(gs, job):
        c, s = divmod(gs, 4); st = c % 3; b = gs & 1
        out = []
        for t in range(2):
            out.append(f"ds_read_b128 v[{FX(b,t)}:{FX(b,t)+3}], v{vXA[s]} offset:{st*8192 + t*4096}")
        for p in range(2):
            for e in range(2):
                out.append(f"ds_read_b64_tr_b16 v[{FW(b,p)+2*e}:{FW(b,p)+2*e+1}], v{vWA} offset:{st*16384 + p*8192 + (16*s+4*e)*128}")
        if job in ('K0','K1','V0','V1'):
            for e in range(2):
                out.append(f"ds_read_b64_tr_b16 v[{FK(b)+2*e}:{FK(b)+2*e+1}], v{vKA} offset:{st*5120 + (16*s+4*e)*40}")
        elif job == 'G':
            out.append(f"ds_read_b128 v[{FK(b)}:{FK(b)+3}], v{vKA} offset:{gs*32}")
        return out

    def mfmas(gs, job):
        b = gs & 1
        out = []
        for p in range(2):
            for t in range(2):
                A = ACC(p,t)
                C = f"v[{A}:{A+15}]" if gs else "0"
                out.append(f"v_mfma_f32_32x32x16_bf16 v[{A}:{A+15}], v[{FW(b,p)}:{FW(b,p)+3}], v[{FX(b,t)}:{FX(b,t)+3}], {C}")
        if job:
            t = {'K0':0,'K1':1,'V0':0,'V1':1,'G0':0,'G1':1}[job]
            fk = f"v[{FK(b)}:{FK(b)+3}]"; fx = f"v[{FX(b,t)}:{FX(b,t)+3}]"
            C = f"v[{JACC}:{JACC+15}]" if gs else "0"
            if job[0] == 'V': out.append(f"v_mfma_f32_32x32x16_bf16 v[{JACC}:{JACC+15}], {fx}, {fk}, {C}")
            else: out.append(f"v_mfma_f32_32x32x16_bf16 v[{JACC}:{JACC+15}], {fk}, {fx}, {C}")
        return out

    def mainloop(vq, job, kv, hook=None):
        rj = 'G' if (job and job[0] == 'G') else job
        stamp(2)
        vq.wait(a, ('c', 0))
        stamp(3)
        a("s_barrier")
        stamp(4)
        for r in reads(0, rj): a(r)
        pend = dma_list(vq, 2, kv) + [lambda: touch(vq, 4)]
        for gs in range(40):
            c, s = divmod(gs, 4)
            a("s_waitcnt lgkmcnt(0)")
            if s == 3 and c < 9:
                assert not pend
                stamp(5+3*c)
                vq.wait(a, ('c', c+1))
                stamp(6+3*c)
                a("s_barrier")
                stamp(7+3*c)
                if c + 3 < 10: pend = dma_list(vq, c+3, kv)
                if TOUCH and c + 5 < 10: pend.append(lambda c=c: touch(vq, c+5))
            M = mfmas(gs, job)
            R = reads(gs+1, rj) if gs < 39 else []
            nd = {3: 2, 0: 2, 1: 2, 2: 3}[s]
            if gs < 3: nd = 3
            if kv and s in (0,1): nd = 3
            ri = 0
            for mi, m in enumerate(M):
                a(m)
                k = 2 if mi < len(M)-1 else len(R)
                for r in R[ri:ri+k]: a(r)
                ri += k
                if mi >= 1 and nd > 0 and pend:
                    pend.pop(0)(); nd -= 1
            if hook: hook(vq, gs)
        stamp(40)

    srd(a, SA, 72, D*F*2)
    srd(a, SB, 74, D*F*2)
    a(f"v_mul_u32_u24 v{t0}, {F*2}, v{t0}")
    a(f"v_add_u32 v{TMP}, v{vWD}, v{t0}")
    a(f"v_lshrrev_b32 v{t0}, 3, v{L}")
    a(f"v_mul_u32_u24 v{t0}, 1280, v{t0}")
    a(f"v_add_u32 v{TMP+1}, v{vWD}, v{t0}")
    a(f"v_mov_b32 v{vWD}, v{TMP}")
    a(f"s_mul_i32 s{sWoff}, s{sW}, {8*F*2}")
    a(f"s_lshl_b32 s{sT0}, s{sCT}, 7")
    a(f"s_add_u32 s{sWoff}, s{sWoff}, s{sT0}")
    a(f"s_mov_b32 s{sWoffB}, s{sWoff}")
    a(f"s_mov_b32 s{sWstep}, {64*F*2}")
    sU = 84; sK16 = 85; sGrp = 86; sNK = 87; sDst = 88; sIsWo = 89
    a(f"s_mul_i32 s{sU}, s{sRB}, 27")
    a(f"s_add_u32 s{sU}, s{sU}, s{sCT}")
    a(f"s_lshl_b32 s{sU}, s{sU}, 3")
    a(f"s_add_u32 s{sU}, s{sU}, s{sW}")
    a(f"s_min_u32 s{sU}, s{sU}, 1479")
    a(f"s_cmp_ge_u32 s{sU}, 1080")
    a(f"s_cselect_b32 s{SR}, s68, s76")
    a(f"s_cselect_b32 s{SR+1}, s69, s77")
    a(f"s_mov_b32 s{SR+2}, {F*D*2}")
    a(f"s_cselect_b32 s{SR+2}, {D*D*2}, s{SR+2}")
    a(f"s_cselect_b32 s{sNK}, 40, 108")
    a(f"s_mov_b32 s{sDst}, {WS_WD}")
    a(f"s_cselect_b32 s{sDst}, {WS_WO}, s{sDst}")
    a(f"s_cselect_b32 s{sT0}, 1080, 0")
    a(f"s_and_b32 s{SR+1}, s{SR+1}, 0xffff")
    a(f"s_mov_b32 s{SR+3}, 0x20000")
    a(f"s_sub_u32 s{sU}, s{sU}, s{sT0}")
    a(f"s_mul_hi_u32 s{sK16}, s{sU}, {(2**32+9)//10}")
    a(f"s_mul_i32 s{sT0}, s{sK16}, 10")
    a(f"s_sub_u32 s{sGrp}, s{sU}, s{sT0}")
    a(f"s_mul_i32 s{sT0}, s{sK16}, {16*1280}")
    a(f"s_lshl_b32 s{sT1}, s{sGrp}, 7")
    a(f"s_add_u32 s{sT0}, s{sT0}, s{sT1}")
    vq = VMQ()
    a(f"s_mov_b32 s{sT3}, s{sT0}")
    dma_chunk(vq, 0, False)
    a("s_barrier")
    dma_chunk(vq, 1, False)
    touch_setup(F*2)
    touch(vq, 2); touch(vq, 3)
    sD = [90, 91]
    for c in range(2):
        a(f"s_lshl_b32 s{sT0}, s{sGrp}, 1")
        if c: a(f"s_add_u32 s{sT0}, s{sT0}, 1")
        a(f"s_mul_hi_u32 s{sT1}, s{sT0}, {(2**32+4)//5}")
        a(f"s_mul_i32 s{sT2}, s{sT1}, 5")
        a(f"s_sub_u32 s{sT2}, s{sT0}, s{sT2}")
        a(f"s_mul_i32 s{sT1}, s{sT1}, s{sNK}")
        a(f"s_add_u32 s{sT1}, s{sT1}, s{sK16}")
        a(f"s_mul_i32 s{sT1}, s{sT1}, 5120")
        a(f"s_lshl_b32 s{sT2}, s{sT2}, 10")
        a(f"s_add_u32 s{sT1}, s{sT1}, s{sT2}")
        a(f"s_add_u32 s{sD[c]}, s{sT1}, s{sDst}")
    def relayout(vq, gs):
        if gs == 21:
            a(f"s_lshl_b32 s{sT2}, s{sW}, 11")
            a(f"s_add_u32 m0, s{sT2}, {L_S}")
            a("s_nop 0")
            a(f"buffer_load_dwordx4 v{TMP+1}, s[{SR}:{SR+3}], s{sT3} offen lds"); vq.issue('rl')
            a(f"s_add_u32 m0, s{sT2}, {L_S+1024}")
            a(f"s_add_u32 s{sT3}, s{sT3}, {8*1280}")
            a(f"buffer_load_dwordx4 v{TMP+1}, s[{SR}:{SR+3}], s{sT3} offen lds"); vq.issue('rl')
        if gs == 32:
            assert 'rl' not in vq.q
            for c in range(2):
                for e in range(2):
                    a(f"ds_read_b64_tr_b16 v[{TMP+8+4*c+2*e}:{TMP+8+4*c+2*e+1}], v{vT[6+c]} offset:{8*e*128}")
        if gs == 33:
            for c in range(2):
                a(f"buffer_store_dwordx4 v[{TMP+8+4*c}:{TMP+8+4*c+3}], v{vL16}, s[{SWS}:{SWS+3}], s{sD[c]} offen"); vq.issue('st')
    mainloop(vq, None, False, relayout)
    c0 = -2.0*math.sqrt(2.0/math.pi)*math.log2(math.e); c1 = c0*0.044715
    vC0 = 24; vC1 = 26; vOne = 28
    for r, val in ((vC0, c0), (vC1, c1), (vOne, 1.0)):
        a(f"v_mov_b32 v{r}, {f2u(val):#x}"); a(f"v_mov_b32 v{r+1}, {f2u(val):#x}")
    a(f"s_lshl_b32 s{sT0}, s{sRB}, 3")
    a(f"s_and_b32 s{sT1}, s{sW}, 6")
    a(f"s_add_u32 s{sT0}, s{sT0}, s{sT1}")
    a(f"s_mul_i32 s{sT0}, s{sT0}, 108")
    a(f"s_lshl_b32 s{sT1}, s{sCT}, 2")
    a(f"s_add_u32 s{sT0}, s{sT0}, s{sT1}")
    a(f"s_and_b32 s{sT1}, s{sW}, 1")
    a(f"s_lshl_b32 s{sT1}, s{sT1}, 1")
    a(f"s_add_u32 s{sT0}, s{sT0}, s{sT1}")
    a(f"s_lshl_b32 s{sT0}, s{sT0}, 10")
    a(f"s_add_u32 s{sT0}, s{sT0}, {WS_H}")
    a(f"s_add_u32 s{sT1}, s{sT0}, {108*1024}")
    P = lambda r: f"v[{r}:{r+1}]"
    for t in range(2):
        G = ACC(0,t); U = ACC(1,t)
        for m in range(2):
            T = TMP + 8*m
            O = 32 + 4*(2*t+m)
            for j in range(4): a(f"v_pk_mul_f32 {P(T+2*j)}, {P(G+8*m+2*j)}, {P(G+8*m+2*j)}")
            for j in range(4): a(f"v_pk_fma_f32 {P(T+2*j)}, {P(T+2*j)}, {P(vC1)}, {P(vC0)}")
            for j in range(4): a(f"v_pk_mul_f32 {P(T+2*j)}, {P(T+2*j)}, {P(G+8*m+2*j)}")
            for j in range(8): a(f"v_exp_f32 v{T+j}, v{T+j}")
            for j in range(4): a(f"v_pk_mul_f32 {P(U+8*m+2*j)}, {P(U+8*m+2*j)}, {P(G+8*m+2*j)}")
            for j in range(4): a(f"v_pk_add_f32 {P(T+2*j)}, {P(T+2*j)}, {P(vOne)}")
            for j in range(8): a(f"v_rcp_f32 v{T+j}, v{T+j}")
            for j in range(4): a(f"v_pk_mul_f32 {P(U+8*m+2*j)}, {P(U+8*m+2*j)}, {P(T+2*j)}")
            for j in range(4): a(f"v_cvt_pk_bf16_f32 v{O+j}, v{U+8*m+2*j}, v{U+8*m+2*j+1}")
            if not SKIP_H: a(f"buffer_store_dwordx4 v[{O}:{O+3}], v{vL16}, s[{SWS}:{SWS+3}], s{sT0 if t == 0 else sT1} offen offset:{m*1024}")
    stamp_out()
    a("s_endpgm")

    QAD = TMP + 16; vQS = TMP + 24
    def qaddr():
        vH = TMP+8; vPos = TMP+9; vG = TMP+10; vHd = TMP+11; vJ = TMP+12; vA1 = TMP+13; vA2 = TMP+14
        a(f"v_lshrrev_b32 v{vH}, 5, v{L}")
        a(f"v_and_b32 v{vPos}, 31, v{L}")
        a(f"v_mov_b32 v{vQS}, {f2u(QSCALE):#x}")
        a(f"v_mov_b32 v{vQS+1}, {f2u(QSCALE):#x}")
        a(f"s_lshl_b32 s{sT0}, s{sCQ}, 5")
        a(f"s_and_b32 s{sT1}, s{sW}, 1")
        a(f"s_lshl_b32 s{sT1}, s{sT1}, 3")
        a(f"s_add_u32 s{sT0}, s{sT0}, s{sT1}")
        a(f"v_add_u32 v{vH}, s{sT0}, v{vH}")
        a(f"v_lshlrev_b32 v{vA2}, 3, v{vPos}")
        a(f"v_add_u32 v{vA2}, 1024, v{vA2}")
        for p in range(2):
            for aa in range(4):
                a(f"v_add_u32 v{vG}, {p*16 + 2*aa}, v{vH}")
                a(f"v_mul_u32_u24 v{vHd}, 205, v{vG}")
                a(f"v_lshrrev_b32 v{vHd}, 10, v{vHd}")
                a(f"v_mul_u32_u24 v{vJ}, 5, v{vHd}")
                a(f"v_sub_u32 v{vJ}, v{vG}, v{vJ}")
                a(f"v_and_b32 v{vA1}, 1, v{vJ}")
                a(f"v_lshl_add_u32 v{vA1}, v{vA1}, 5, v{vPos}")
                a(f"v_lshlrev_b32 v{vA1}, 4, v{vA1}")
                a(f"v_lshrrev_b32 v{vG}, 1, v{vJ}")
                a(f"v_lshl_add_u32 v{vA1}, v{vG}, 3, v{vA1}")
                a(f"v_cmp_eq_u32 vcc, 4, v{vJ}")
                a(f"v_mul_u32_u24 v{vHd}, 1280, v{vHd}")
                a(f"v_cndmask_b32 v{vA1}, v{vA1}, v{vA2}, vcc")
                a(f"v_add_u32 v{QAD+4*p+aa}, v{vA1}, v{vHd}")
    a.label(f"{name}_q")
    sCQ = 84
    a(f"s_sub_u32 s{sCQ}, s{sCT}, 27")
    srd(a, SA, 62, D*D*2)
    srd(a, SB, 62, D*D*2)
    a(f"v_mul_u32_u24 v{t0}, 1280, v{t0}")
    a(f"v_add_u32 v{vWD}, v{vWD}, v{t0}")
    a(f"s_mul_i32 s{sWoff}, s{sW}, {8*1280}")
    a(f"s_lshl_b32 s{sT0}, s{sCQ}, 8")
    a(f"s_add_u32 s{sWoff}, s{sWoff}, s{sT0}")
    a(f"s_add_u32 s{sWoffB}, s{sWoff}, 128")
    a(f"s_mov_b32 s{sWstep}, {64*1280}")
    a(f"s_cmp_eq_u32 s{sCQ}, 4")
    a(f"s_cbranch_scc1 {name}_qg")
    a(f"s_min_u32 s{sT0}, s{sW}, 5")
    a(f"s_cmp_ge_u32 s{sT0}, 3")
    a(f"s_cselect_b32 s{SK}, s66, s64")
    a(f"s_cselect_b32 s{SK+1}, s67, s65")
    a(f"s_cselect_b32 s{sT1}, 3, 0")
    a(f"s_mov_b32 s{sM0k}, {L_S}")
    a(f"s_cselect_b32 s{sM0k}, {L_S+2560}, s{sM0k}")
    a(f"s_and_b32 s{SK+1}, s{SK+1}, 0xffff")
    a(f"s_mov_b32 s{SK+2}, {D*DH*2}")
    a(f"s_mov_b32 s{SK+3}, 0x20000")
    a(f"s_sub_u32 s{sT0}, s{sT0}, s{sT1}")
    a(f"s_lshl_b32 s{sKoff}, s{sT0}, 10")
    a(f"s_add_u32 s{sM0k}, s{sM0k}, s{sKoff}")
    a(f"s_cmp_eq_u32 s{sT0}, 2")
    a(f"s_mov_b32 s{sExecK}, -1")
    a(f"s_cselect_b32 s{sExecK+1}, 0, -1")
    vq0 = VMQ()
    dma_chunk(vq0, 0, True)
    a("s_barrier")
    dma_chunk(vq0, 1, True)
    touch_setup(1280)
    touch(vq0, 2); touch(vq0, 3)
    qaddr()
    a(f"s_lshr_b32 s{sT0}, s{sW}, 2")
    a(f"s_lshr_b32 s{sT1}, s{sCQ}, 1")
    a(f"s_cmp_lg_u32 s{sT0}, s{sT1}")
    a(f"s_cbranch_scc1 {name}_qN")
    a(f"s_and_b32 s{sT0}, s{sCQ}, 1")
    a(f"s_and_b32 s{sT1}, s{sW}, 1")
    a(f"s_lshl_b32 s{sT1}, s{sT1}, 1")
    a(f"s_or_b32 s{sT0}, s{sT0}, s{sT1}")
    a(f"s_lshl_b32 s{sP}, s{sRB}, 3")
    a(f"s_and_b32 s{sT1}, s{sW}, 6")
    a(f"s_add_u32 s{sP}, s{sP}, s{sT1}")
    a(f"s_and_b32 s{sT1}, s{sCQ}, 1")
    a(f"s_add_u32 s{sP}, s{sP}, s{sT1}")
    a(f"s_cmp_eq_u32 s{sT0}, 1"); a(f"s_cbranch_scc1 {name}_qK1")
    a(f"s_cmp_eq_u32 s{sT0}, 2"); a(f"s_cbranch_scc1 {name}_qV0")
    a(f"s_cmp_eq_u32 s{sT0}, 3"); a(f"s_cbranch_scc1 {name}_qV1")

    def kv_base():
        a(f"s_lshr_b32 s{sT2}, s{sP}, 1")
        a(f"s_mul_i32 s{sT2}, s{sT2}, {DUO}")
        a(f"s_add_u32 s{sT2}, s{sT2}, {WS_KV}")
        a(f"s_and_b32 s{sT3}, s{sP}, 1")
    def k_epi():
        J = JACC
        kv_base()
        for j in range(6): a(f"v_cvt_pk_bf16_f32 v{TMP+j}, v{J+2*j}, v{J+2*j+1}")
        a(f"s_lshl_b32 s{sT0}, s{sT3}, 10")
        a(f"s_add_u32 s{sT0}, s{sT0}, s{sT2}")
        a(f"buffer_store_dwordx4 v[{TMP}:{TMP+3}], v{vL16}, s[{SWS}:{SWS+3}], s{sT0} offen")
        a(f"s_lshl_b32 s{sT0}, s{sT3}, 3")
        a(f"s_add_u32 s{sT0}, s{sT0}, s{sT2}")
        a(f"s_add_u32 s{sT0}, s{sT0}, 2048")
        a(f"v_mov_b32 v{TMP+8}, 0")
        a(f"v_mov_b32 v{TMP+9}, 0")
        for j in range(4): a(f"v_dot2c_f32_bf16 v{TMP+8}, v{TMP+j}, v{TMP+j}")
        a(f"s_mov_b32 exec_hi, 0")
        a(f"buffer_store_dwordx2 v[{TMP+4}:{TMP+5}], v{vL16}, s[{SWS}:{SWS+3}], s{sT0} offen")
        for j in range(4,6): a(f"v_dot2c_f32_bf16 v{TMP+9}, v{TMP+j}, v{TMP+j}")
        a(f"s_mov_b64 exec, -1")
        a(f"v_add_f32 v{TMP+8}, v{TMP+8}, v{TMP+9}")
        a(f"v_mov_b32 v{TMP+9}, v{TMP+8}")
        a(f"v_permlane32_swap_b32 v{TMP+8}, v{TMP+9}")
        a(f"v_add_f32 v{TMP+8}, v{TMP+8}, v{TMP+9}")
        for sh in (1,2,4,8):
            a(f"v_max_f32_dpp v{TMP+8}, v{TMP+8}, v{TMP+8} row_shr:{sh} row_mask:0xf bank_mask:0xf")
        a(f"v_readlane_b32 s{sT0}, v{TMP+8}, 15")
        a(f"v_readlane_b32 s{sT1}, v{TMP+8}, 31")
        a(f"s_max_u32 s{sT0}, s{sT0}, s{sT1}")
        a(f"v_mov_b32 v{TMP+8}, s{sT0}")
        a(f"s_lshl_b32 s{sT1}, s{sP}, 2")
        a(f"s_add_u32 s{sT1}, s{sT1}, {WS_KN}")
        a(f"v_mov_b32 v{TMP+9}, 0")
        a(f"s_mov_b64 exec, 1")
        a(f"buffer_store_dword v{TMP+8}, v{TMP+9}, s[{SWS}:{SWS+3}], s{sT1} offen")
        a(f"s_mov_b64 exec, -1")
    def v_epi():
        J = JACC
        kv_base()
        for j in range(8): a(f"v_cvt_pk_bf16_f32 v{TMP+j}, v{J+2*j}, v{J+2*j+1}")
        a(f"s_mov_b32 exec_lo, {1<<20}")
        a(f"s_mov_b32 exec_hi, {1<<20}")
        for j in range(8): a(f"v_mov_b32 v{TMP+j}, 0x3f803f80")
        a(f"s_mov_b32 exec_lo, 0")
        a(f"s_mov_b32 exec_hi, {1<<21}")
        for j in range(8): a(f"v_mov_b32 v{TMP+j}, 0")
        a(f"s_mov_b32 exec_lo, {(1<<21)-1}")
        a(f"s_mov_b32 exec_hi, {(1<<22)-1}")
        a(f"v_lshrrev_b32 v{TMP+8}, 5, v{L}")
        a(f"v_mul_u32_u24 v{TMP+8}, 336, v{TMP+8}")
        a(f"v_and_b32 v{TMP+9}, 31, v{L}")
        a(f"v_lshl_add_u32 v{TMP+8}, v{TMP+9}, 4, v{TMP+8}")
        a(f"s_mul_i32 s{sT0}, s{sT3}, 1376")
        a(f"s_add_u32 s{sT0}, s{sT0}, s{sT2}")
        a(f"s_add_u32 s{sT0}, s{sT0}, 2560")
        a(f"buffer_store_dwordx4 v[{TMP}:{TMP+3}], v{TMP+8}, s[{SWS}:{SWS+3}], s{sT0} offen")
        a(f"buffer_store_dwordx4 v[{TMP+4}:{TMP+7}], v{TMP+8}, s[{SWS}:{SWS+3}], s{sT0} offen offset:688")
        a(f"s_mov_b64 exec, -1")
    def g_epi():
        J = JACC
        a(f"v_mul_f32 v{TMP}, {f2u(-math.log2(math.e)):#x}, v{J}")
        a(f"v_exp_f32 v{TMP}, v{TMP}")
        a(f"v_add_f32 v{TMP}, 1.0, v{TMP}")
        a(f"v_rcp_f32 v{TMP}, v{TMP}")
        a(f"v_lshlrev_b32 v{TMP+1}, 2, v{L}")
        a(f"s_lshl_b32 s{sT0}, s{sP}, 7")
        a(f"s_add_u32 s{sT0}, s{sT0}, {WS_G}")
        a(f"s_mov_b32 exec_hi, 0")
        a(f"buffer_store_dword v{TMP}, v{TMP+1}, s[{SWS}:{SWS+3}], s{sT0} offen")
        a(f"s_mov_b64 exec, -1")

    for job, epi in (('K0', k_epi), ('K1', k_epi), ('V0', v_epi), ('V1', v_epi), (None, None)):
        if job != 'K0': a.label(f"{name}_q{job or 'N'}")
        mainloop(vq0.copy(), job, True)
        if epi: epi()
        a(f"s_branch {name}_qepi")
    a.label(f"{name}_qg")
    srd(a, SK, 78, D*2)
    vq1 = VMQ()
    a(f"s_mov_b32 m0, {L_S}")
    a(f"s_mov_b32 s{sT0}, 0")
    a(f"buffer_load_dwordx4 v{vL16}, s[{SK}:{SK+3}], s{sT0} offen lds"); vq1.issue(('c',0))
    a(f"s_mov_b32 m0, {L_S+1024}")
    a(f"s_mov_b32 s{sT0}, 1024")
    a(f"buffer_load_dwordx4 v{vL16}, s[{SK}:{SK+3}], s{sT0} offen lds"); vq1.issue(('c',0))
    dma_chunk(vq1, 0, False)
    a("s_barrier")
    dma_chunk(vq1, 1, False)
    touch_setup(1280)
    touch(vq1, 2); touch(vq1, 3)
    qaddr()
    a(f"v_lshrrev_b32 v{vKA}, 5, v{L}")
    a(f"v_lshlrev_b32 v{vKA}, 4, v{vKA}")
    a(f"v_add_u32 v{vKA}, {L_S}, v{vKA}")
    a(f"s_lshl_b32 s{sP}, s{sRB}, 3")
    a(f"s_add_u32 s{sP}, s{sP}, s{sW}")
    a(f"s_bitcmp1_b32 s{sW}, 0")
    a(f"s_cbranch_scc1 {name}_qG1")
    mainloop(vq1.copy(), 'G0', False); g_epi()
    a(f"s_branch {name}_qepi")
    a.label(f"{name}_qG1")
    mainloop(vq1.copy(), 'G1', False); g_epi()
    a.label(f"{name}_qepi")
    a("s_nop 3")
    a(f"s_lshl_b32 s{sT2}, s{sRB}, 3")
    a(f"s_and_b32 s{sT1}, s{sW}, 6")
    a(f"s_add_u32 s{sT2}, s{sT2}, s{sT1}")
    a(f"s_mul_i32 s{sT2}, s{sT2}, {32*1280}")
    a(f"s_add_u32 s{sT2}, s{sT2}, {WS_Q}")
    a(f"s_add_u32 s{sT3}, s{sT2}, {32*1280}")
    for p in range(2):
        for aa in range(4):
            for t in range(2):
                A = ACC(p,t) + 4*aa
                O = 24 + 2*((p*8+aa*2+t) % 16)
                a(f"v_pk_mul_f32 {P(A)}, {P(A)}, {P(vQS)}")
                a(f"v_pk_mul_f32 {P(A+2)}, {P(A+2)}, {P(vQS)}")
                a(f"v_cvt_pk_bf16_f32 v{O}, v{A}, v{A+1}")
                a(f"v_cvt_pk_bf16_f32 v{O+1}, v{A+2}, v{A+3}")
                a(f"buffer_store_dwordx2 v[{O}:{O+1}], v{QAD+4*p+aa}, s[{SWS}:{SWS+3}], s{sT2 if t == 0 else sT3} offen")
    stamp_out()
    a.label(f"{name}_end")
    a("s_endpgm")
    return dict(name=name, vgpr=176, lds=K1_LDS, block=512, grid=256)
```

```python
from asmlib import *
from layout import *
from k1 import srd, VMQ
STAMP = False
L_FLAG = 163712
F_P1, F_P2, F_P3, F_P4 = 0, 4, 8, 12
F_XCH = 16
F_OST, F_RED, F_G1, F_HST, F_KVR, F_TAG, F_QX = 32, 36, 40, 44, 48, 52, 56
F_P5 = 60
F_QF = 80
F_PROG = 64
LDS_SIZE = 163840
THR = 2.0**-24
L_XCH = 86016; L_OST = 110592
LG = 73088; LGX = LG; LGW = LG + 65536
P0_X = 0; P0_WKV = 40960; P0_GW = 66560; P0_JR = 68608; P0_WQ = 80896
NQS = 4

def gen_kf(a, name='kf_kernel', sched=0, phase0=True, unroll=2, g1prio=0, g1hi=10, g2depth=6, adelay=0, ntouch=0):
    vLane = 1; vL16 = 2; vKA = 3; vPos = 4; vVA = 5; vG = 6; vH = 7; vK2A = 8
    vT = list(range(9, 16)); vFl = 92; vPr = 93; vST = 94
    sW = 3; sP = 4; sHd = 5; SWS = 8; sT0 = 12; sT1 = 13; sT2 = 14; sT3 = 15; sCnt = 16; sFlag = 17; sOff = 18
    sGw = 19; sA = 20; sB = 21; sCG = 22; sHf = 23; SKV = 24; sBud = 28; sTag = 29; SO = 32
    SX = 36; SA = 40; SB = 44; SK = 48; STC = 52; SR = 56; SDB = 84; sRB = 88; sCT = 89
    def R(b, n): return f"v[{b}:{b+n-1}]"
    def P(b): return f"v[{b}:{b+1}]"
    def stamp(i, v=None):
        if not STAMP: return
        a("s_memtime s[92:93]"); a("s_waitcnt lgkmcnt(0)"); a(f"v_writelane_b32 v{v or vST}, s92, {i}")
    def stamp_out():
        if not STAMP: return
        stamp(63)
        a("s_memrealtime s[92:93]"); a("s_waitcnt lgkmcnt(0)"); a(f"v_writelane_b32 v{vST}, s92, 61")
        a("s_lshl_b32 s92, s2, 3"); a(f"s_add_u32 s92, s92, s{sW}"); a("s_lshl_b32 s92, s92, 8")
        a(f"s_add_u32 s92, s92, {WS_END}")
        a(f"v_lshlrev_b32 v93, 2, v{vLane}")
        a(f"buffer_store_dword v{vST}, v93, s[{SWS}:{SWS+3}], s92 offen")
    def bounded(lbl):
        a(f"s_sub_u32 s{sBud}, s{sBud}, 1")
        a(f"s_cbranch_scc0 {lbl}")
    def spin(off, need, sleep=0, tmp=None):
        lbl = a.newlabel(name + "_sp")
        tmp = tmp or vT[0]
        a.label(lbl)
        a(f"ds_read_b32 v{tmp}, v{vFl} offset:{off}")
        a("s_waitcnt lgkmcnt(0)")
        a(f"v_readfirstlane_b32 s{sT0}, v{tmp}")
        a(f"s_cmp_ge_u32 s{sT0}, {need}")
        a(f"s_cbranch_scc1 {lbl}_d")
        if sleep: a(f"s_sleep {sleep}")
        bounded(lbl)
        a.label(lbl + "_d")
    def signal(off, one):
        a("s_mov_b64 exec, 1")
        a(f"ds_add_u32 v{vFl}, v{one} offset:{off}")
        a("s_mov_b64 exec, -1")
    def progress_wait(thr, t1, t2, t3, sleep):
        lbl = a.newlabel(name + "_pw")
        a(f"v_and_b32 v{t1}, 3, v{vLane}")
        a(f"v_lshlrev_b32 v{t1}, 2, v{t1}")
        a(f"v_add_u32 v{t1}, {L_FLAG+F_PROG}, v{t1}")
        a(f"v_mov_b32 v{t3}, {thr}")
        a.label(lbl)
        a(f"ds_read_b32 v{t2}, v{t1}")
        a("s_waitcnt lgkmcnt(0)")
        a(f"v_cmp_lt_u32 vcc, v{t2}, v{t3}")
        a("s_nop 4")
        a(f"s_cbranch_vccz {lbl}_d")
        if sleep: a(f"s_sleep {sleep}")
        bounded(lbl)
        a.label(lbl + "_d")
    def get_tag(tmp):
        if phase0:
            a(f"ds_read_b32 v{tmp}, v{vFl} offset:{F_TAG}")
            a("s_waitcnt lgkmcnt(0)")
            a(f"v_readfirstlane_b32 s{sTag}, v{tmp}")
        else:
            a(f"s_mov_b32 s{sTag}, 1")

    sTch = 100; sTstep = 101
    def tile_decode():
        a(f"s_and_b32 s{sT0}, s2, 7")
        a(f"s_lshr_b32 s{sT1}, s2, 3")
        a(f"s_and_b32 s{sRB}, s{sT0}, 1")
        a(f"s_lshl_b32 s{sRB}, s{sRB}, 2")
        a(f"s_and_b32 s{sT2}, s{sT1}, 3")
        a(f"s_add_u32 s{sRB}, s{sRB}, s{sT2}")
        a(f"s_lshr_b32 s{sCT}, s{sT0}, 1")
        a(f"s_lshl_b32 s{sCT}, s{sCT}, 3")
        a(f"s_lshr_b32 s{sT2}, s{sT1}, 2")
        a(f"s_add_u32 s{sCT}, s{sCT}, s{sT2}")
    def touch_setup(sw, vt):
        a(f"s_lshr_b32 s{sT2}, s2, 3")
        a(f"s_lshr_b32 s{sT0}, s{sT2}, 2")
        a(f"s_lshl_b32 s{sT0}, s{sT0}, 5")
        a(f"s_lshl_b32 s{sT1}, s{sw}, 4")
        a(f"s_add_u32 s{sT0}, s{sT0}, s{sT1}")
        a(f"s_lshl_b32 s{sT1}, s{sRB}, 8")
        a(f"s_add_u32 s{sT0}, s{sT0}, s{sT1}")
        a(f"s_mul_i32 s{sTch}, s{sT0}, 1280")
        a(f"s_and_b32 s{sT2}, s{sT2}, 3")
        a(f"s_mul_i32 s{sT2}, s{sT2}, {16*F*2}")
        a(f"s_min_u32 s{sT0}, s{sCT}, 26")
        a(f"s_lshl_b32 s{sT0}, s{sT0}, 7")
        a(f"s_add_u32 s{sT2}, s{sT2}, s{sT0}")
        a(f"s_cmp_eq_u32 s{sw}, 3")
        a(f"s_cselect_b32 s{STC}, s74, s72")
        a(f"s_cselect_b32 s{STC+1}, s75, s73")
        a(f"s_cmp_ge_u32 s{sw}, 2")
        a(f"s_cselect_b32 s{sTch}, s{sT2}, s{sTch}")
        a(f"s_cselect_b32 s{STC}, s{STC}, s60")
        a(f"s_cselect_b32 s{STC+1}, s{STC+1}, s61")
        a(f"s_mov_b32 s{STC+2}, {S*D*2}")
        a(f"s_cselect_b32 s{STC+2}, {D*F*2}, s{STC+2}")
        a(f"s_mov_b32 s{sTstep}, 128")
        a(f"s_cselect_b32 s{sTstep}, {64*F*2}, s{sTstep}")
        a(f"s_mov_b32 s{sT0}, 1280")
        a(f"s_cselect_b32 s{sT0}, {F*2}, s{sT0}")
        a(f"s_and_b32 s{STC+1}, s{STC+1}, 0xffff")
        a(f"s_mov_b32 s{STC+3}, 0x20000")
        a(f"v_mul_lo_u32 v{vt}, s{sT0}, v{vLane}")
    def touch(q, c, vt):
        a(f"s_mul_i32 s{sT0}, s{sTstep}, {c}")
        a(f"s_add_u32 s{sT0}, s{sT0}, s{sTch}")
        a(f"s_mov_b64 exec, 0xffff")
        a(f"buffer_load_dword v{vt-1}, v{vt}, s[{STC}:{STC+3}], s{sT0} offen")
        if q: q.issue('t')
        a(f"s_mov_b64 exec, -1")

    a(f".p2align 8\n.globl {name}\n.type {name},@function")
    a.label(name)
    a("s_cmp_ge_u32 s2, 256")
    a(f"s_cbranch_scc1 {name}_end")
    a("s_load_dwordx4 s[60:63], s[0:1], 0")
    a("s_load_dwordx4 s[64:67], s[0:1], 16")
    a("s_load_dwordx2 s[68:69], s[0:1], 32")
    a("s_load_dwordx4 s[72:75], s[0:1], 48")
    a("s_load_dwordx4 s[76:79], s[0:1], 64")
    a("s_load_dwordx4 s[80:83], s[0:1], 80")
    a("s_load_dwordx2 s[6:7], s[0:1], 96")
    if STAMP:
        a("s_memtime s[94:95]"); a("s_memrealtime s[96:97]")
    a(f"v_lshrrev_b32 v{vT[0]}, 6, v0")
    a(f"v_and_b32 v{vLane}, 63, v0")
    a(f"v_readfirstlane_b32 s{sW}, v{vT[0]}")
    a(f"v_lshlrev_b32 v{vL16}, 4, v{vLane}")
    a(f"s_and_b32 s{sP}, s2, 7")
    a(f"s_lshr_b32 s{sT0}, s2, 5")
    a(f"s_lshl_b32 s{sT0}, s{sT0}, 3")
    a(f"s_add_u32 s{sP}, s{sP}, s{sT0}")
    a(f"s_bfe_u32 s{sCG}, s2, 0x20003")
    a(f"v_and_b32 v{vPos}, 31, v{vLane}")
    a(f"v_lshrrev_b32 v{vH}, 5, v{vLane}")
    a(f"v_mov_b32 v{vFl}, {L_FLAG}")
    a(f"s_mov_b32 s{sBud}, 0x40000")
    a(f"s_cmp_ge_u32 s{sW}, 4")
    a(f"s_cbranch_scc1 {name}_G")

    Q1 = lambda t: 16 + 4*t
    Q2 = lambda t: 32 + 6*t
    K1B = 56; K2B = 60; VB = 68
    PB = lambda b: 76 + 8*b
    SBf = lambda b: 96 + 16*b
    OB = lambda t: 128 + 16*t
    K1S = 240; VS = 244
    N2 = [204, 205, 206, 207]
    OAD = 224
    vX1 = 230; vX2 = 231; vXf1 = 232; vXf2 = 233
    a(f"s_lshl_b32 s{sHd}, s{sCG}, 3")
    a(f"s_and_b32 s{sT0}, s{sW}, 1")
    a(f"s_lshl_b32 s{sT0}, s{sT0}, 2")
    a(f"s_add_u32 s{sHd}, s{sHd}, s{sT0}")
    a(f"s_lshr_b32 s{sHf}, s{sW}, 1")
    a(f"v_lshlrev_b32 v{vK2A}, 4, v{vPos}")
    a(f"v_add_u32 v{vK2A}, 2048, v{vK2A}")
    a(f"v_mul_u32_u24 v{vVA}, 336, v{vH}")
    a(f"v_lshl_add_u32 v{vVA}, v{vPos}, 4, v{vVA}")
    a(f"v_add_u32 v{vVA}, 2560, v{vVA}")
    a(f"s_mov_b32 exec_lo, 0xffe00000")
    a(f"s_mov_b32 exec_hi, 0xffe00000")
    a(f"v_mov_b32 v{vVA}, {2560+672}")
    a(f"s_mov_b32 exec_lo, 0")
    a(f"s_mov_b32 exec_hi, -1")
    a(f"v_mov_b32 v{vK2A}, {2560+672}")
    a(f"s_mov_b64 exec, -1")
    for t in range(4):
        for r in range(6): a(f"v_mov_b32 v{Q2(t)+r}, 0")
    for r in (0, 1, 6, 7): a(f"v_mov_b32 v{K2B+r}, 0")
    a("s_mov_b32 exec_hi, 0")
    a(f"v_mov_b32 v{K2B}, 0x3f803f80")
    a(f"v_mov_b32 v{K2B+6}, 0x3f803f80")
    a("s_mov_b32 exec_hi, -1")
    a(f"s_lshl_b32 s{sT1}, s{sW}, 2")
    a(f"s_add_u32 s{sT1}, s{sT1}, {L_FLAG + F_PROG}")
    a(f"v_mov_b32 v{vPr}, s{sT1}")
    a(f"s_mov_b32 s{sFlag}, 0")
    a(f"s_mul_i32 s{sT0}, s{sW}, 6144")
    a(f"s_add_u32 s{sT0}, s{sT0}, {L_XCH}")
    a(f"v_add_u32 v{vX1}, s{sT0}, v{vL16}")
    a(f"s_xor_b32 s{sT1}, s{sW}, 2")
    a(f"s_mul_i32 s{sT0}, s{sT1}, 6144")
    a(f"s_add_u32 s{sT0}, s{sT0}, {L_XCH}")
    a(f"v_add_u32 v{vX2}, s{sT0}, v{vL16}")
    a(f"s_lshl_b32 s{sT0}, s{sW}, 2")
    a(f"v_add_u32 v{vXf1}, s{sT0}, v{vFl}")
    a(f"s_lshl_b32 s{sT0}, s{sT1}, 2")
    a(f"v_add_u32 v{vXf2}, s{sT0}, v{vFl}")
    a("s_waitcnt lgkmcnt(0)")
    srd(a, SWS, 6, WS_END + (1<<20))
    if STAMP:
        a(f"s_add_u32 s92, s94, 0x70000000"); a(f"v_mov_b32 v{vST}, s92"); a("s_nop 1")
        a(f"v_writelane_b32 v{vST}, s94, 0"); a(f"v_writelane_b32 v{vST}, s96, 62")
    vq = VMQ()
    N = [vT[0], vT[1], vT[4], vT[5]]
    def static_loads():
        kn = 239
        a(f"buffer_load_dword v{kn}, v{vT[6]}, s[{SWS}:{SWS+3}], s{sT1} offen sc1"); vq.issue('kn')
        a(f"buffer_load_dwordx4 {R(K1B,4)}, v{vL16}, s[{SWS}:{SWS+3}], s{sT2} offen sc1"); vq.issue('k0')
        a(f"buffer_load_dwordx4 {R(K2B+2,4)}, v{vK2A}, s[{SWS}:{SWS+3}], s{sT2} offen sc1"); vq.issue('k0')
        for m in range(2):
            a(f"buffer_load_dwordx4 {R(VB+4*m,4)}, v{vVA}, s[{SWS}:{SWS+3}], s{sT2} offen offset:{688*m} sc1"); vq.issue('v0')
        a(f"buffer_load_dwordx4 {R(K1S,4)}, v{vL16}, s[{SWS}:{SWS+3}], s{sT2} offen offset:1024 sc1"); vq.issue('k1')
        for m in range(2):
            a(f"buffer_load_dwordx4 {R(VS+4*m,4)}, v{vVA}, s[{SWS}:{SWS+3}], s{sT2} offen offset:{1376+688*m} sc1"); vq.issue('v1')
        a(f"buffer_load_dword v{vG}, v{238}, s[{SWS}:{SWS+3}], s{sOff} offen sc1"); vq.issue('g')
    def static_setup():
        a(f"v_lshlrev_b32 v{vT[6]}, 2, v{vLane}")
        a(f"v_lshlrev_b32 v238, 2, v{vPos}")
        a(f"s_mul_i32 s{sT3}, s{sHf}, {DUO}")
        a(f"s_add_u32 s{sT2}, s{sT3}, {WS_KV}")
        a(f"s_lshl_b32 s{sOff}, s{sP}, 7")
        a(f"s_add_u32 s{sOff}, s{sOff}, {WS_G}")
        a(f"s_mov_b32 s{sT1}, {WS_KN}")
    if phase0:
        srd(a, SA, 62, D*D*2)
        a(f"s_cmp_lt_u32 s{sCG}, 2")
        a(f"s_cbranch_scc1 {name}_ntq")
        a(f"s_lshr_b32 s{sT0}, s2, 5")
        a(f"s_lshl_b32 s{sT0}, s{sT0}, 1")
        a(f"s_add_u32 s{sT0}, s{sT0}, s{sCG}")
        a(f"s_sub_u32 s{sT0}, s{sT0}, 2")
        a(f"s_lshl_b32 s{sT0}, s{sT0}, 2")
        a(f"s_add_u32 s{sT0}, s{sT0}, s{sW}")
        a(f"s_mul_i32 s{sT0}, s{sT0}, 1280")
        a(f"v_mul_u32_u24 v{vT[0]}, 205, v{vLane}")
        a(f"v_lshrrev_b32 v{vT[0]}, 11, v{vT[0]}")
        a(f"v_mul_u32_u24 v{vT[2]}, 10, v{vT[0]}")
        a(f"v_sub_u32 v{vT[2]}, v{vLane}, v{vT[2]}")
        a(f"v_mul_u32_u24 v{vT[0]}, {64*1280}, v{vT[0]}")
        a(f"v_lshl_add_u32 v{vT[0]}, v{vT[2]}, 7, v{vT[0]}")
        a("s_mov_b32 exec_hi, 0x3ffff")
        a(f"buffer_load_dword v252, v{vT[0]}, s[{SA}:{SA+3}], s{sT0} offen")
        a(f"s_add_u32 s{sT0}, s{sT0}, {5*64*1280}")
        a(f"buffer_load_dword v252, v{vT[0]}, s[{SA}:{SA+3}], s{sT0} offen")
        a("s_mov_b32 exec_hi, -1")
        a.label(f"{name}_ntq")
        tile_decode()
        touch_setup(sW, 253)
        for c in range(ntouch): touch(None, c, 253)
        a(f"v_lshlrev_b32 v236, 3, v{vLane}")
        a(f"s_and_b32 s{sT0}, s2, 7")
        a(f"s_mul_i32 s{sA}, s{sT0}, {FL_REP}")
        a(f"s_add_u32 s{sA}, s{sA}, {WS_FLKV}")
        for (dst, sw) in ((254, None), (255, 2)):
            if sw: a(f"s_xor_b32 s{sT1}, s{sW}, 2")
            else: a(f"s_mov_b32 s{sT1}, s{sW}")
            a(f"s_mul_i32 s{sT0}, s{sT1}, 10240")
            a(f"s_add_u32 s{sT0}, s{sT0}, 40960")
            a(f"s_cmp_eq_u32 s{sT1}, 3")
            a(f"s_cselect_b32 s{sT0}, 121856, s{sT0}")
            a(f"v_add_u32 v{dst}, s{sT0}, v{vL16}")
        QA = lambda i: 128 + 16*i
        FXq = lambda b: 96 + 4*b
        FWq = lambda b, i: 104 + 12*b + 4*i
        vXq = [234, 235]; vWq = [176, 177, 178]
        a(f"v_bfe_u32 v{vT[0]}, v{vLane}, 1, 3")
        a(f"v_xor_b32 v{vT[0]}, v{vT[0]}, v{vH}")
        a(f"v_lshlrev_b32 v{vT[0]}, 4, v{vT[0]}")
        a(f"v_lshl_add_u32 v{vT[0]}, v{vPos}, 7, v{vT[0]}")
        a(f"s_lshl_b32 s{sT0}, s{sHf}, 5")
        a(f"v_xor_b32 v{vXq[0]}, s{sT0}, v{vT[0]}")
        a(f"v_xor_b32 v{vXq[1]}, 64, v{vXq[0]}")
        a(f"v_bfe_u32 v{vT[0]}, v{vLane}, 2, 2")
        a(f"v_lshl_add_u32 v{vT[0]}, v{vH}, 3, v{vT[0]}")
        a(f"s_lshl_b32 s{sT0}, s{sHf}, 4")
        a(f"v_add_u32 v{vT[0]}, s{sT0}, v{vT[0]}")
        a(f"v_mul_u32_u24 v{vT[0]}, 320, v{vT[0]}")
        a(f"s_and_b32 s{sT0}, s{sW}, 1")
        a(f"s_mul_i32 s{sT0}, s{sT0}, 160")
        a(f"s_add_u32 s{sT0}, s{sT0}, {P0_WQ}")
        a(f"v_add_u32 v{vT[0]}, s{sT0}, v{vT[0]}")
        a(f"v_and_b32 v{vT[1]}, 3, v{vLane}")
        a(f"v_bfe_u32 v{vT[2]}, v{vLane}, 4, 1")
        a(f"v_mul_u32_u24 v{vT[3]}, 40, v{vT[2]}")
        a(f"v_lshl_add_u32 v{vT[3]}, v{vT[1]}, 3, v{vT[3]}")
        a(f"v_add_u32 v{vWq[0]}, v{vT[0]}, v{vT[3]}")
        a(f"v_add_u32 v{vWq[1]}, 80, v{vWq[0]}")
        a(f"v_lshrrev_b32 v{vT[1]}, 1, v{vT[1]}")
        a(f"v_lshl_add_u32 v{vT[1]}, v{vT[2]}, 1, v{vT[1]}")
        a(f"v_mul_u32_u24 v{vT[1]}, 40, v{vT[1]}")
        a(f"v_add_u32 v{vWq[2]}, v{vT[0]}, v{vT[1]}")
        a(f"v_add_u32 v{vWq[2]}, 32, v{vWq[2]}")
        for i in range(3): a(f"v_add_u32 v{vWq[i]+3}, 40960, v{vWq[i]}")
        a("s_barrier")
        stamp(1)
        a("s_barrier")
        def qreads(c, sg):
            b = sg
            o = [f"ds_read_b128 {R(FXq(b),4)}, v{vXq[sg]} offset:{P0_X + c*4096}"]
            for i in range(3):
                for e in range(2):
                    sl = c % NQS
                    o.append(f"ds_read_b64_tr_b16 {P(FWq(b,i)+2*e)}, v{vWq[i] + (3 if sl >= 2 else 0)} offset:{(sl&1)*20480 + (32*sg + 4*e)*320}")
            return o
        get_tag(vT[3])
        static_setup()
        a(f"v_mov_b32 v{vT[2]+1}, {f2u(QSCALE):#x}")
        a(f"v_mov_b32 v{vT[2]+2}, {f2u(QSCALE):#x}")
        a(f"v_mov_b32 v{vT[5]}, 1")
        for c in range(10):
            a("s_barrier")
            stamp(32 + c)
            for sg in range(2):
                for r in qreads(c, sg): a(r)
            if c == 7: a(f"buffer_load_dwordx2 {P(10)}, v236, s[{SWS}:{SWS+3}], s{sA} offen sc1")
            for sg in range(2):
                a(f"s_waitcnt lgkmcnt({7 if sg == 0 else 0})")
                if c == 9 and sg == 1: a("s_barrier")
                for i in range(3):
                    C = R(QA(i),16) if (c or sg) else "0"
                    a(f"v_mfma_f32_32x32x16_bf16 {R(QA(i),16)}, {R(FWq(sg,i),4)}, {R(FXq(sg),4)}, {C}")
        stamp(2)
        a("s_waitcnt vmcnt(0)")
        a(f"v_cmp_ne_u32 vcc, s{sTag}, v10")
        a(f"v_cmp_ne_u32 s[92:93], s{sTag}, v11")
        a(f"s_mov_b32 s{sCnt}, 0")
        a("s_nop 0")
        a("s_or_b64 vcc, vcc, s[92:93]")
        a(f"s_cbranch_vccnz {name}_e1")
        static_loads()
        a(f"s_mov_b32 s{sCnt}, 1")
        a(f"ds_write_b32 v{vFl}, v{vT[5]} offset:{F_KVR}")
        a.label(f"{name}_e1")
        a("s_nop 3")
        for gI in range(8): a(f"ds_write_b128 v254, {R(128+4*gI,4)} offset:{1024*gI}")
        a("s_mov_b32 exec_hi, 0")
        for gI in range(4): a(f"ds_write_b128 v254, {R(160+4*gI,4)} offset:{8192 + 512*gI}")
        a("s_mov_b32 exec_hi, -1")
        a("s_waitcnt lgkmcnt(0)")
        a(f"ds_write_b32 v{vXf1}, v{vT[5]} offset:{F_QF}")
        a.label(f"{name}_q3")
        a(f"ds_read_b32 v{vT[0]}, v{vXf2} offset:{F_QF}")
        a("s_waitcnt lgkmcnt(0)")
        a(f"v_readfirstlane_b32 s{sT0}, v{vT[0]}")
        a(f"s_cmp_lg_u32 s{sT0}, 0")
        a(f"s_cbranch_scc1 {name}_q3d")
        bounded(f"{name}_q3")
        a.label(f"{name}_q3d")
        for gI in range(8): a(f"ds_read_b128 {R(176+4*gI,4)}, v255 offset:{1024*gI}")
        a("s_mov_b32 exec_hi, 0")
        for gI in range(4): a(f"ds_read_b128 {R(208+4*gI,4)}, v255 offset:{8192 + 512*gI}")
        a("s_mov_b32 exec_hi, -1")
        a("s_waitcnt lgkmcnt(0)")
        signal(F_QX, vT[5])
        for r in range(0, 48, 2): a(f"v_pk_add_f32 {P(128+r)}, {P(128+r)}, {P(176+r)}")
        for r in range(0, 48, 2): a(f"v_pk_mul_f32 {P(128+r)}, {P(128+r)}, {P(12)}")
        for t in range(4):
            for r in range(4): a(f"v_cvt_pk_bf16_f32 v{Q1(t)+r}, v{128+8*t+2*r}, v{129+8*t+2*r}")
        a("s_mov_b32 exec_hi, 0")
        for t in range(4):
            for r in range(2): a(f"v_cvt_pk_bf16_f32 v{Q2(t)+2+r}, v{160+4*t+2*r}, v{161+4*t+2*r}")
        a("s_mov_b32 exec_hi, -1")
    else:
        a(f"v_lshlrev_b32 v{vT[0]}, 3, v{vPos}")
        a(f"s_lshl_b32 s{sT0}, s{sP}, 5")
        a(f"s_add_u32 s{sT0}, s{sT0}, s{sHd}")
        a(f"s_mul_i32 s{sT0}, s{sT0}, 1280")
        a(f"s_add_u32 s{sT0}, s{sT0}, {WS_Q}")
        a(f"s_add_u32 s{sT3}, s{sT0}, 2560")
        for t in range(4):
            a(f"buffer_load_dwordx4 {R(Q1(t),4)}, v{vL16}, s[{SWS}:{SWS+3}], s{sT0 if t < 2 else sT3} offen offset:{1280*(t&1)}")
        a("s_mov_b32 exec_hi, 0")
        for t in range(4):
            a(f"buffer_load_dwordx2 {R(Q2(t)+2,2)}, v{vT[0]}, s[{SWS}:{SWS+3}], s{sT0 if t < 2 else sT3} offen offset:{1280*(t&1)+1024}")
        a("s_mov_b32 exec_hi, -1")
        a("s_barrier")
        a("s_waitcnt vmcnt(0)")
    for t in range(4): a(f"v_mov_b32 v{N[t]}, 0")
    for r in range(4):
        for t in range(4): a(f"v_dot2c_f32_bf16 v{N[t]}, v{Q1(t)+r}, v{Q1(t)+r}")
    for r in (2,3):
        for t in range(4): a(f"v_dot2c_f32_bf16 v{N[t]}, v{Q2(t)+r}, v{Q2(t)+r}")
    for t in range(4): a(f"v_mov_b32 v{N2[t]}, v{N[t]}")
    for t in range(4): a(f"v_permlane32_swap_b32 v{N2[t]}, v{N[t]}")
    for t in range(4): a(f"v_add_f32 v{N[t]}, v{N[t]}, v{N2[t]}")
    stamp(3)
    kn = 239
    if phase0:
        a(f"s_cmp_lg_u32 s{sCnt}, 0")
        a(f"s_cbranch_scc1 {name}_e2")
        spin(F_KVR, 1, tmp=vT[3])
        vq.q = []
        static_loads()
        a.label(f"{name}_e2")
    else:
        static_setup()
        static_loads()
    stamp(4)
    srd(a, SKV, 6, WS_KV + 32*DUO)
    a(f"s_lshl_b32 s{sA}, s{sW}, 10")
    a(f"s_add_u32 s{sB}, s{sA}, {WS_KV + 2*DUO}")
    a(f"s_cmp_eq_u32 s{sW}, 3")
    a(f"s_cselect_b32 s90, 0xffffff, -1")
    a(f"s_cselect_b32 s91, 0, -1")
    a(f"v_mov_b32 v237, 1")
    def kvdma(r):
        a(f"s_add_u32 m0, s{sA}, {r*4096}")
        a(f"s_add_u32 s{sT2}, s{sB}, {r*4096}")
        if r == 17: a("s_mov_b64 exec, s[90:91]")
        a(f"buffer_load_dwordx4 v{vL16}, s[{SKV}:{SKV+3}], s{sT2} offen sc1 lds"); vq.issue('p1' if r < 3 else ('p2' if r < 8 else 'p3'))
        if r == 17: a("s_mov_b64 exec, -1")
    for r in range(8): kvdma(r)
    a(f"v_add_u32 v{vKA}, s{sT3}, v{vL16}")
    a(f"v_add_u32 v{vK2A}, s{sT3}, v{vK2A}")
    a(f"v_add_u32 v{vVA}, s{sT3}, v{vVA}")
    vq.wait(a, 'kn')
    for sh in (1,2,4,8):
        a(f"v_max_f32_dpp v{kn}, v{kn}, v{kn} row_shr:{sh} row_mask:0xf bank_mask:0xf")
    a(f"v_readlane_b32 s{sT0}, v{kn}, 15")
    a(f"v_readlane_b32 s{sT1}, v{kn}, 31")
    a(f"v_readlane_b32 s{sT2}, v{kn}, 47")
    a(f"v_readlane_b32 s{sT3}, v{kn}, 63")
    a(f"s_max_u32 s{sT0}, s{sT0}, s{sT1}")
    a(f"s_max_u32 s{sT2}, s{sT2}, s{sT3}")
    a(f"s_max_u32 s{sT0}, s{sT0}, s{sT2}")
    for t in range(4): a(f"v_mul_f32 v{N[t]}, s{sT0}, v{N[t]}")
    for t in range(4): a(f"v_sqrt_f32 v{N[t]}, v{N[t]}")
    a("s_mov_b32 exec_hi, 0")
    for t in range(4): a(f"v_cvt_pk_bf16_f32 v{Q2(t)}, -v{N[t]}, 0")
    for t in range(4): a(f"v_mov_b32 v{Q2(t)+4}, v{Q2(t)}")
    a("s_mov_b32 exec_hi, -1")

    def k1reg(j): return K1S if j == 1 else K1B
    def vreg(j): return VS if j == 1 else VB
    def qk(n):
        j, t = n >> 2, n & 3
        S_ = SBf(n & 1)
        return [f"v_mfma_f32_32x32x16_bf16 {R(S_,16)}, {R(k1reg(j),4)}, {R(Q1(t),4)}, 0",
                f"v_mfma_f32_32x32x16_bf16 {R(S_,16)}, {R(K2B + 4*(j&1),4)}, {R(Q2(t) + 2*(j&1),4)}, {R(S_,16)}"]
    def pv(n):
        j, t = n >> 2, n & 3
        o = []
        for m in range(2):
            C = R(OB(t),16) if (j > 0 or m > 0) else "0"
            o.append(f"v_mfma_f32_32x32x16_bf16 {R(OB(t),16)}, {R(vreg(j)+4*m,4)}, {R(PB(n&1)+4*m,4)}, {C}")
        return o
    def off(jj, D0): return ((jj >> 1) - D0) * 2 * DUO
    def step(n, D0, pre=None, mid=None):
        S_ = SBf(n & 1); P_ = PB(n & 1)
        Q = qk(n+1) if n + 1 < 128 else [None, None]
        V = pv(n-1) if n >= 1 else [None, None]
        rK1 = rK2 = rV1 = rV2 = None
        if n % 4 == 2:
            jj = (n >> 2) + 1
            if 2 <= jj < 32:
                rK1 = f"ds_read_b128 {R(K1B,4)}, v{vKA} offset:{off(jj, D0) + 1024*(jj&1)}"
                if (jj & 1) == 0: rK2 = f"ds_read_b128 {R(K2B+2,4)}, v{vK2A} offset:{off(jj, D0)}"
        if n % 4 == 0:
            jj = n >> 2
            if 2 <= jj < 32:
                rV1 = f"ds_read_b128 {R(VB,4)}, v{vVA} offset:{off(jj, D0) + 1376*(jj&1)}"
                rV2 = f"ds_read_b128 {R(VB+4,4)}, v{vVA} offset:{off(jj, D0) + 1376*(jj&1) + 688}"
        wK = "s_waitcnt lgkmcnt(0)" if (n % 4 == 3 and n >= 7 and n < 127) else None
        wV = "s_waitcnt lgkmcnt(0)" if (n % 4 == 1 and n >= 9) else None
        e = lambda i: f"v_exp_f32 v{S_+i}, v{S_+i}"
        c = lambda i: f"v_cvt_pk_bf16_f32 v{P_+i}, v{S_+2*i}, v{S_+2*i+1}"
        if pre: pre()
        if 0 <= n < 128:
            if sched == 0:
                seq = [wK, Q[0], rK1, e(0), e(1), e(2), e(3), Q[1], rK2, e(4), e(5), c(0), c(1), e(6), e(7), wV, 'mid', V[0], rV1, c(2), e(8), c(3), e(9), e(10), e(11), V[1], rV2, c(4), e(12), c(5), e(13), e(14), e(15), c(6), c(7)]
            elif sched == 4:
                seq = [wK, Q[0], e(0), e(1), e(2), e(3), Q[1], rK1, e(4), e(5), c(0), rK2, e(6), c(1), e(7), wV, 'mid', V[0], e(8), c(2), e(9), c(3), e(10), e(11), V[1], rV1, e(12), c(4), e(13), rV2, e(14), c(5), e(15), c(6), c(7)]
        else:
            seq = [Q[0], Q[1], 'mid', V[0], V[1]]
        for x in seq:
            if x is None: continue
            if x == 'mid':
                if mid: mid()
            else: a(x)
    if adelay:
        a(f"s_cmp_ge_u32 s{sCT}, 27")
        a(f"s_cbranch_scc1 {name}_nd")
        spin(F_G1, 4*(2*adelay+1), sleep=2)
        a.label(f"{name}_nd")
    stamp(5)
    vq.wait(a, 'k0')
    step(-1, 1)
    def seq(*fs):
        def f():
            for g in fs: g()
        return f
    DM = lambda *rs: (lambda: [kvdma(r) for r in rs])
    WT = lambda t: (lambda: vq.wait(a, t))
    SG = lambda f: (lambda: signal(f, 237))
    hooks = {
        0: (None, None), 1: (None, WT('v0')), 2: (None, None),
        3: (WT('k1'), None), 4: (seq(WT('p1'), SG(F_P1)), None), 5: (None, None),
        6: (seq(lambda: stamp(6), lambda: spin(F_P1, 4), lambda: stamp(7)), None), 7: (None, seq(WT('p2'), SG(F_P2))), 8: (None, None)}
    for n in range(0, 9):
        pre, mid = hooks[n]
        step(n, 1, pre, mid)
    spin(F_P2, 4)
    stamp(8)
    assert unroll == 2
    U = 16; NIT = 7
    a(f"s_mov_b32 s{sCnt}, {NIT}")
    a.label(f"{name}_loop")
    for n in range(9, 9+U): step(n, 1)
    a(f"v_add_u32 v{vKA}, {4*DUO}, v{vKA}")
    a(f"ds_write_b32 v{vPr}, v{vKA}")
    a(f"v_add_u32 v{vK2A}, {4*DUO}, v{vK2A}")
    a(f"v_add_u32 v{vVA}, {4*DUO}, v{vVA}")
    a(f"s_cmp_ge_u32 s{sCnt}, {NIT - 3}")
    a(f"s_cbranch_scc1 {name}_w3")
    a.label(f"{name}_w3r")
    a(f"s_sub_u32 s{sCnt}, s{sCnt}, 1")
    a(f"s_cmp_lg_u32 s{sCnt}, 0")
    a(f"s_cbranch_scc1 {name}_loop")
    for n in range(121, 129): step(n, 15)
    stamp(12)
    progress_wait(12*2*DUO, vT[3], vT[4], vT[5], 0)
    a(f"v_mov_b32 v{vT[5]}, 1")
    a(f"s_cmp_eq_u32 s{sHf}, 0")
    a(f"s_cbranch_scc1 {name}_x1")
    for t in range(2):
        for g in range(3): a(f"ds_write_b128 v{vX1}, {R(OB(t)+4*g,4)} offset:{(3*t+g)*1024}")
    for t in range(2):
        for r in range(0, 12, 2): a(f"v_pk_mul_f32 {R(OB(t)+r,2)}, {R(OB(t+2)+r,2)}, 1.0 op_sel_hi:[1,0]")
    a(f"s_branch {name}_x2")
    a.label(f"{name}_x1")
    for t in range(2):
        for g in range(3): a(f"ds_write_b128 v{vX1}, {R(OB(t+2)+4*g,4)} offset:{(3*t+g)*1024}")
    a.label(f"{name}_x2")
    a("s_waitcnt lgkmcnt(0)")
    a(f"ds_write_b32 v{vXf1}, v{vT[5]} offset:{F_XCH}")
    a.label(f"{name}_x3")
    a(f"ds_read_b32 v{vT[0]}, v{vXf2} offset:{F_XCH}")
    a("s_waitcnt lgkmcnt(0)")
    a(f"v_readfirstlane_b32 s{sT0}, v{vT[0]}")
    a(f"s_cmp_lg_u32 s{sT0}, 0")
    a(f"s_cbranch_scc1 {name}_x3d")
    bounded(f"{name}_x3")
    a.label(f"{name}_x3d")
    for t in range(2):
        for g in range(3): a(f"ds_read_b128 {R(OB(t+2)+4*g,4)}, v{vX2} offset:{(3*t+g)*1024}")
    a("s_waitcnt vmcnt(0) lgkmcnt(0)")
    for t in range(2):
        for r in range(0, 12, 2): a(f"v_pk_add_f32 {R(OB(t)+r,2)}, {R(OB(t)+r,2)}, {R(OB(t+2)+r,2)}")
    stamp(13)
    a.label(f"{name}_fin2")
    Lr = [vT[0], vT[1]]; X = [vT[2], vT[3]]
    for t in range(2):
        a(f"v_mov_b32 v{Lr[t]}, v{OB(t)+8}")
        a(f"v_mov_b32 v{X[t]}, v{OB(t)+8}")
    for t in range(2): a(f"v_permlane32_swap_b32 v{X[t]}, v{Lr[t]}")
    a(f"v_min_f32 v{X[0]}, v{Lr[0]}, v{Lr[1]}")
    a(f"v_mov_b32 v{X[1]}, {f2u(THR):#x}")
    a(f"v_cmp_ngt_f32 vcc, v{X[0]}, v{X[1]}")
    a(f"s_cmp_lg_u32 s{sFlag}, 0")
    a(f"s_cbranch_scc1 {name}_st")
    a(f"s_cbranch_vccnz {name}_slow")
    a.label(f"{name}_st")
    for t in range(2): a(f"v_rcp_f32 v{Lr[t]}, v{Lr[t]}")
    for t in range(2): a(f"v_mul_f32 v{Lr[t]}, v{Lr[t]}, v{vG}")
    a(f"s_lshl_b32 s{sT0}, s{sCG}, 1")
    a(f"s_and_b32 s{sT1}, s{sW}, 1")
    a(f"s_add_u32 s{sT0}, s{sT0}, s{sT1}")
    a(f"s_mul_i32 s{sT0}, s{sT0}, 5")
    a(f"s_mul_i32 s{sT1}, s{sP}, 40")
    a(f"s_add_u32 s{sT0}, s{sT0}, s{sT1}")
    a(f"s_lshl_b32 s{sT0}, s{sT0}, 10")
    a(f"s_add_u32 s{sT0}, s{sT0}, {WS_O}")
    a(f"s_lshl_b32 s{sT1}, s{sHf}, 9")
    a(f"s_add_u32 s{sT2}, s{sT0}, s{sT1}")
    a(f"s_add_u32 s{sT2}, s{sT2}, 4096")
    a(f"s_lshl_b32 s{sT1}, s{sHf}, 11")
    a(f"s_add_u32 s{sT0}, s{sT0}, s{sT1}")
    for t in range(2):
        O = OB(t)
        a(f"v_mov_b32 v{X[t]}, v{Lr[t]}") if False else None
        for r in range(8): a(f"v_mul_f32 v{O+r}, v{O+r}, v{Lr[t]}")
        for r in range(4): a(f"v_cvt_pk_bf16_f32 v{PB(0)+4*t+r}, v{O+2*r}, v{O+2*r+1}")
        a(f"buffer_store_dwordx4 {R(PB(0)+4*t,4)}, v{vL16}, s[{SWS}:{SWS+3}], s{sT0} offen offset:{1024*t} sc1")
    for t in range(2):
        O = OB(t)
        for r in range(8, 12): a(f"v_mul_f32 v{O+r}, v{O+r}, v{Lr[t]}")
        for r in range(2): a(f"v_cvt_pk_bf16_f32 v{PB(1)+2*t+r}, v{O+8+2*r}, v{O+9+2*r}")
    a("s_mov_b32 exec_hi, 0")
    a(f"buffer_store_dwordx4 {R(PB(1),4)}, v{vL16}, s[{SWS}:{SWS+3}], s{sT2} offen sc1")
    a(f"s_lshl_b32 s{sT0}, s2, 7")
    a(f"s_lshl_b32 s{sT1}, s{sW}, 2")
    a(f"s_add_u32 s{sT0}, s{sT0}, s{sT1}")
    a(f"s_add_u32 s{sT0}, s{sT0}, {WS_FLAG}")
    a(f"v_mov_b32 v{vT[1]}, 0")
    a(f"v_mov_b32 v{vT[3]}, s{sTag}")
    a("s_mov_b64 exec, 1")
    a("s_waitcnt vmcnt(0)")
    a(f"buffer_store_dword v{vT[3]}, v{vT[1]}, s[{SWS}:{SWS+3}], s{sT0} offen sc1")
    a("s_mov_b64 exec, -1")
    a.label(f"{name}_adone")
    stamp_out()
    a("s_endpgm")
    a.label(f"{name}_w3")
    a(f"s_cmp_eq_u32 s{sCnt}, {NIT-1}")
    a(f"s_cbranch_scc1 {name}_w3r")
    a(f"s_cmp_eq_u32 s{sCnt}, {NIT}")
    a(f"s_cbranch_scc1 {name}_w3a")
    a(f"s_cmp_eq_u32 s{sCnt}, {NIT-3}")
    a(f"s_cbranch_scc1 {name}_w3b")
    stamp(10)
    spin(F_P4, 4)
    stamp(11)
    a(f"s_branch {name}_w3r")
    a.label(f"{name}_w3b")
    stamp(14)
    spin(F_P5, 4)
    stamp(15)
    a(f"s_branch {name}_w3r")
    a.label(f"{name}_w3a")
    spin(F_P3, 4)
    stamp(9)
    a(f"s_branch {name}_w3r")
    a.label(f"{name}_slow")
    a(f"s_mov_b32 s{sFlag}, 1")
    a(f"s_cmp_eq_u32 s{sHf}, 0")
    a(f"s_cbranch_scc1 {name}_sl0")
    for t in range(2):
        for r in range(4): a(f"v_mov_b32 v{Q1(t)+r}, v{Q1(t+2)+r}")
        for r in range(6): a(f"v_mov_b32 v{Q2(t)+r}, v{Q2(t+2)+r}")
    a.label(f"{name}_sl0")
    a(f"s_mul_i32 s{sT2}, s{sHf}, {DUO}")
    a(f"s_add_u32 s{sT2}, s{sT2}, {28*DUO}")
    a(f"v_subrev_u32 v{vK2A}, s{sT2}, v{vK2A}")
    a(f"v_subrev_u32 v{vVA}, s{sT2}, v{vVA}")
    M = [vT[4], vT[5]]
    for t in range(2):
        a(f"v_mov_b32 v{M[t]}, 0xff7fffff")
        a(f"v_mov_b32 v{Q2(t)}, 0"); a(f"v_mov_b32 v{Q2(t)+4}, 0")
    def slow_loads(withv):
        a(f"buffer_load_dwordx4 {R(K1B,4)}, v{vL16}, s[{SWS}:{SWS+3}], s{sOff} offen sc1")
        a(f"buffer_load_dwordx4 {R(K1S,4)}, v{vL16}, s[{SWS}:{SWS+3}], s{sOff} offen offset:1024 sc1")
        a(f"buffer_load_dwordx4 {R(K2B+2,4)}, v{vK2A}, s[{SWS}:{SWS+3}], s{sOff} offen sc1")
        if withv:
            for jj in range(2):
                for m in range(2):
                    a(f"buffer_load_dwordx4 {R(vreg(jj)+4*m,4)}, v{vVA}, s[{SWS}:{SWS+3}], s{sOff} offen offset:{1376*jj+688*m} sc1")
        a("s_waitcnt vmcnt(0)")
    def slow_qk(jj):
        for t in range(2):
            a(f"v_mfma_f32_32x32x16_bf16 {R(SBf(t),16)}, {R(k1reg(jj),4)}, {R(Q1(t),4)}, 0")
            a(f"v_mfma_f32_32x32x16_bf16 {R(SBf(t),16)}, {R(K2B+4*jj,4)}, {R(Q2(t)+2*jj,4)}, {R(SBf(t),16)}")
    a(f"s_mov_b32 s{sOff}, {WS_KV}")
    a(f"s_mov_b32 s{sCnt}, 32")
    a.label(f"{name}_sl1")
    slow_loads(False)
    for jj in range(2):
        slow_qk(jj)
        for t in range(2):
            for r in range(0, 16, 2): a(f"v_max3_f32 v{M[t]}, v{SBf(t)+r}, v{SBf(t)+r+1}, v{M[t]}")
    a(f"s_add_u32 s{sOff}, s{sOff}, {DUO}")
    a(f"s_sub_u32 s{sCnt}, s{sCnt}, 1")
    a(f"s_cmp_lg_u32 s{sCnt}, 0")
    a(f"s_cbranch_scc1 {name}_sl1")
    for t in range(2): a(f"v_mov_b32 v{vT[t]}, v{M[t]}")
    for t in range(2): a(f"v_permlane32_swap_b32 v{vT[t]}, v{M[t]}")
    for t in range(2): a(f"v_max_f32 v{M[t]}, v{M[t]}, v{vT[t]}")
    for t in range(2):
        a(f"v_cvt_pk_bf16_f32 v{vT[t]}, -v{M[t]}, 0")
        a(f"v_lshlrev_b32 v{vT[t]}, 16, v{vT[t]}")
        a(f"v_sub_f32 v{vT[2+t]}, -v{M[t]}, v{vT[t]}")
    a("s_mov_b32 exec_hi, 0")
    for t in range(2):
        a(f"v_cvt_pk_bf16_f32 v{Q2(t)}, v{vT[t]}, v{vT[2+t]}")
        a(f"v_mov_b32 v{Q2(t)+4}, v{Q2(t)}")
    a("s_mov_b32 exec_hi, -1")
    for t in range(2):
        for r in range(16): a(f"v_mov_b32 v{OB(t)+r}, 0")
    a(f"s_mov_b32 s{sOff}, {WS_KV}")
    a(f"s_mov_b32 s{sCnt}, 32")
    a.label(f"{name}_sl2")
    slow_loads(True)
    for jj in range(2):
        slow_qk(jj)
        for t in range(2):
            for r in range(16): a(f"v_exp_f32 v{SBf(t)+r}, v{SBf(t)+r}")
            for r in range(8): a(f"v_cvt_pk_bf16_f32 v{PB(t)+r}, v{SBf(t)+2*r}, v{SBf(t)+2*r+1}")
            for m in range(2):
                a(f"v_mfma_f32_32x32x16_bf16 {R(OB(t),16)}, {R(vreg(jj)+4*m,4)}, {R(PB(t)+4*m,4)}, {R(OB(t),16)}")
    a(f"s_add_u32 s{sOff}, s{sOff}, {DUO}")
    a(f"s_sub_u32 s{sCnt}, s{sCnt}, 1")
    a(f"s_cmp_lg_u32 s{sCnt}, 0")
    a(f"s_cbranch_scc1 {name}_sl2")
    a("s_nop 15")
    a(f"s_branch {name}_fin2")

    import kf_g
    kf_g.gen_g(a, name, phase0, locals())
    a.label(f"{name}_end")
    a("s_endpgm")
    return dict(name=name, vgpr=256, lds=LDS_SIZE, block=512, grid=256)
```

```python
from asmlib import *
from layout import *
from k1 import srd, VMQ
import kf
from kf import *

def gen_g(a, name, phase0, E):
    globals().update({k: v for k, v in E.items() if k not in ('a', 'name', 'phase0')})
    STAMP = kf.STAMP
    L = vLane
    vOne = 90; vCnt = 91; vTch = 89; sRep = 5; vRep = 95
    sXoff = 90; sWoff = 91; sM0x = 98; sM0w = 99
    t0, t1, t2, t3, t4, t5, t6 = vT
    a.label(f"{name}_G")
    a(f"s_sub_u32 s{sGw}, s{sW}, 4")
    vR8 = 224; vC8 = 225; vRr = 226; vCB = 227
    a(f"v_lshrrev_b32 v{vR8}, 3, v{L}")
    a(f"v_and_b32 v{vC8}, 7, v{L}")
    gq = VMQ()
    if phase0:
        vXD0 = 16; vQD = [17, 18, 19, 20, 21]; vJX = 22; vJW = 23; vJG = 228; vTagL = 229; vZero = 230
        a(f"s_lshl_b32 s{sT0}, s{sGw}, 3")
        a(f"v_add_u32 v{t0}, s{sT0}, v{vR8}")
        a(f"v_bfe_u32 v{t2}, v{t0}, 1, 3")
        a(f"v_xor_b32 v{t2}, v{t2}, v{vC8}")
        a(f"v_mul_u32_u24 v{t0}, 1280, v{t0}")
        a(f"v_lshl_add_u32 v{vXD0}, v{t2}, 4, v{t0}")
        a(f"v_mov_b32 v{vZero}, 0")
        a(f"s_mul_i32 s{sT1}, s{sP}, {32*1280}")
        a(f"s_lshl_b32 s{sT2}, s{sGw}, 10")
        a(f"s_mul_i32 s{sT3}, s{sCG}, 5")
        a(f"s_lshr_b32 s{sT0}, s{sCG}, 1")
        a(f"s_lshl_b32 s{sT0}, s{sT0}, 3")
        a(f"s_sub_u32 s{sT3}, s{sT3}, s{sT0}")
    a("s_waitcnt lgkmcnt(0)")
    srd(a, SX, 60, S*D*2)
    if STAMP:
        a(f"s_add_u32 s92, s94, 0x70000000"); a(f"v_mov_b32 v{vST}, s92"); a("s_nop 1")
        a(f"v_writelane_b32 v{vST}, s94, 0"); a(f"v_writelane_b32 v{vST}, s96, 62")
    if phase0:
        stamp(40)
        srd(a, SDB, 82, 256)
        a(f"s_cmp_lg_u32 s2, 0")
        a(f"s_cbranch_scc1 {name}_n0")
        a(f"s_cmp_lg_u32 s{sGw}, 3")
        a(f"s_cbranch_scc1 {name}_n0")
        a("s_memrealtime s[92:93]")
        a("s_waitcnt lgkmcnt(0)")
        a("s_or_b32 s92, s92, 1")
        a(f"v_mov_b32 v{vTagL}, s92")
        a("s_mov_b64 exec, 1")
        a(f"buffer_store_dword v{vTagL}, v{vZero}, s[{SDB}:{SDB+3}], 0 offen sc1")
        a("s_mov_b64 exec, -1")
        a.label(f"{name}_n0")
        a(f"s_cmp_eq_u32 s{sCG}, 0")
        a(f"s_cselect_b32 s{SK}, s64, s66")
        a(f"s_cselect_b32 s{SK+1}, s65, s67")
        a(f"s_and_b32 s{SK+1}, s{SK+1}, 0xffff")
        a(f"s_mov_b32 s{SK+2}, {D*DH*2}")
        a(f"s_mov_b32 s{SK+3}, 0x20000")
        a(f"s_lshr_b32 s{sA}, s2, 5")
        a(f"s_cmp_ge_u32 s{sA}, 6")
        a(f"s_cselect_b32 s{sT0}, 6, 0")
        a(f"s_sub_u32 s{sA}, s{sA}, s{sT0}")
        a(f"s_cmp_ge_u32 s{sCG}, 2")
        a(f"s_cbranch_scc1 {name}_nokv0")
        def wkv(j):
            a(f"s_lshl_b32 s{sT0}, s{sA}, 12")
            a(f"s_add_u32 s{sT0}, s{sT0}, s{sT2}")
            a(f"s_add_u32 m0, s{sT0}, {P0_WKV}")
            a(f"s_add_u32 s{sA}, s{sA}, 1")
            a(f"buffer_load_dwordx4 v{vL16}, s[{SK}:{SK+3}], s{sT0} offen lds")
            a(f"s_cmp_eq_u32 s{sA}, 6")
            a(f"s_cselect_b32 s{sA}, 0, s{sA}")
        for j in range(2): wkv(j)
        a.label(f"{name}_nokv0")
        for c in range(10):
            a(f"s_lshl_b32 s{sT0}, s{sT3}, 12")
            a(f"s_add_u32 s{sT0}, s{sT0}, s{sT2}")
            a(f"s_add_u32 m0, s{sT0}, {P0_X}")
            a(f"s_lshl_b32 s{sT0}, s{sT3}, 7")
            a(f"s_add_u32 s{sT0}, s{sT0}, s{sT1}")
            a(f"buffer_load_dwordx4 v{vXD0}, s[{SX}:{SX+3}], s{sT0} offen lds"); gq.issue('x')
            a(f"s_add_u32 s{sT3}, s{sT3}, 1")
            a(f"s_cmp_eq_u32 s{sT3}, 10")
            a(f"s_cselect_b32 s{sT3}, 0, s{sT3}")
        srd(a, SA, 62, D*D*2)
        a(f"s_cmp_ge_u32 s{sCG}, 2")
        a(f"s_cbranch_scc1 {name}_nokv")
        for j in range(4): wkv(j)
        a(f"s_cmp_lg_u32 s{sGw}, 0")
        a(f"s_cbranch_scc1 {name}_kv1")
        a(f"s_mov_b32 m0, {P0_WKV + 24576}")
        a(f"s_mov_b32 s{sT0}, 24576")
        a(f"buffer_load_dwordx4 v{vL16}, s[{SK}:{SK+3}], s{sT0} offen lds")
        a.label(f"{name}_kv1")
        a(f"s_cmp_lg_u32 s{sGw}, 1")
        a(f"s_cbranch_scc1 {name}_nokv")
        srd(a, SR, 78, D*2)
        a(f"s_mov_b32 m0, {P0_GW}")
        a(f"s_mov_b32 s{sT0}, 0")
        a(f"buffer_load_dwordx4 v{vL16}, s[{SR}:{SR+3}], s{sT0} offen lds")
        a(f"s_mov_b32 m0, {P0_GW+1024}")
        a(f"s_mov_b32 s{sT0}, 1024")
        a(f"buffer_load_dwordx4 v{vL16}, s[{SR}:{SR+3}], s{sT0} offen lds")
        a.label(f"{name}_nokv")
        a(f"s_cmp_lg_u32 s{sGw}, 3")
        a(f"s_cbranch_scc1 {name}_n1")
        a(f"buffer_load_dword v{vTagL}, v{vZero}, s[{SDB}:{SDB+3}], 0 offen sc1")
        a.label(f"{name}_n1")
    srd(a, SWS, 6, WS_END + (1<<20))
    srd(a, SO, 80, S*D*2)
    srd(a, SKV, 6, WS_KV + 32*DUO)
    tile_decode()
    a(f"v_and_b32 v{t1}, 31, v{L}")
    a(f"v_lshl_add_u32 v{t1}, v{t1}, 2, v{vFl}")
    a(f"v_mov_b32 v{t2}, 0")
    a(f"ds_write_b32 v{t1}, v{t2}")
    a(f"v_mov_b32 v{vOne}, 1")
    a(f"v_bfe_u32 v{vRr}, v{L}, 2, 2")
    a(f"v_and_b32 v{t5}, 3, v{L}")
    a(f"v_bfe_u32 v{t6}, v{L}, 4, 1")
    a(f"v_lshlrev_b32 v{t5}, 3, v{t5}")
    a(f"v_lshl_add_u32 v{vCB}, v{t6}, 5, v{t5}")
    a(f"v_mul_u32_u24 v{vRep}, {FL_REP}, v{L}")
    a(f"s_and_b32 s{sT0}, s2, 7")
    a(f"s_mul_i32 s{sRep}, s{sT0}, {FL_REP}")
    if phase0:
        for j in range(5):
            a(f"v_add_u32 v{t0}, {64*j}, v{L}")
            a(f"v_mul_u32_u24 v{t2}, 3277, v{t0}")
            a(f"v_lshrrev_b32 v{t2}, 16, v{t2}")
            a(f"v_mul_u32_u24 v{t5}, 20, v{t2}")
            a(f"v_sub_u32 v{t5}, v{t0}, v{t5}")
            a(f"v_mul_u32_u24 v{t2}, 1280, v{t2}")
            a(f"v_lshl_add_u32 v{vQD[j]}, v{t5}, 4, v{t2}")
        a(f"s_mul_i32 s{sA}, s{sGw}, {16*1280}")
        a(f"s_mul_i32 s{sT0}, s{sCG}, 320")
        a(f"s_add_u32 s{sA}, s{sA}, s{sT0}")
        a(f"s_mul_i32 s{sB}, s{sGw}, 5120")
        def wq_dma(c):
            for j in range(5):
                a(f"s_add_u32 m0, s{sB}, {P0_WQ + (c%NQS)*20480 + j*1024}")
                if j == 0: a(f"s_add_u32 s{sT3}, s{sA}, {c*64*1280}")
                else: a("s_nop 0")
                a(f"buffer_load_dwordx4 v{vQD[j]}, s[{SA}:{SA+3}], s{sT3} offen lds"); gq.issue(('wq', c))
    vXA = [240, 241, 242, 243]; vWA = 244; vXD = [245, 246]; vWD = 247; vRD = 248; vRA = [249, 250]
    a(f"v_lshrrev_b32 v{t2}, 1, v{vR8}")
    a(f"v_xor_b32 v{t3}, v{vC8}, v{t2}")
    a(f"v_mul_u32_u24 v{t4}, 1280, v{vR8}")
    a(f"v_lshl_add_u32 v{vXD[0]}, v{t3}, 4, v{t4}")
    a(f"v_xor_b32 v{t3}, 4, v{t3}")
    a(f"v_lshl_add_u32 v{vXD[1]}, v{t3}, 4, v{t4}")
    a(f"v_add_u32 v{vXD[1]}, {8*1280}, v{vXD[1]}")
    a(f"v_and_b32 v{t3}, 1, v{t2}")
    a(f"v_lshlrev_b32 v{t3}, 2, v{t3}")
    a(f"v_xor_b32 v{t3}, v{t3}, v{vC8}")
    a(f"v_lshl_add_u32 v{vRD}, v{t3}, 4, v{t4}")
    a(f"v_mul_u32_u24 v{t4}, {F*2}, v{vR8}")
    a(f"v_lshl_add_u32 v{vWD}, v{t3}, 4, v{t4}")
    a(f"v_bfe_u32 v{t3}, v{L}, 1, 3")
    a(f"v_xor_b32 v{t3}, v{t3}, v{vH}")
    a(f"v_lshlrev_b32 v{t3}, 4, v{t3}")
    a(f"v_lshl_add_u32 v{t3}, v{vPos}, 7, v{t3}")
    if phase0:
        a(f"s_lshl_b32 s{sT0}, s{sGw}, 5")
        a(f"v_xor_b32 v{vJX}, s{sT0}, v{t3}")
    a(f"s_lshr_b32 s{sT0}, s{sGw}, 1")
    a(f"s_lshl_b32 s{sT0}, s{sT0}, 14")
    a(f"s_add_u32 s{sT0}, s{sT0}, {LGX}")
    a(f"v_add_u32 v{vXA[0]}, s{sT0}, v{t3}")
    for s_ in range(1, 4): a(f"v_xor_b32 v{vXA[s_]}, {32*s_}, v{vXA[0]}")
    a(f"v_lshrrev_b32 v{t4}, 1, v{vRr}")
    a(f"s_and_b32 s{sT0}, s{sGw}, 1")
    a(f"v_xor_b32 v{t5}, s{sT0}, v{t4}")
    a(f"v_lshl_add_u32 v{t5}, v{t5}, 6, v{vCB}")
    a(f"v_lshl_add_u32 v{t6}, v{vH}, 3, v{vRr}")
    a(f"v_lshl_add_u32 v{vWA}, v{t6}, 7, v{t5}")
    a(f"v_add_u32 v{vWA}, {LGW}, v{vWA}")
    if phase0:
        a(f"s_lshl_b32 s{sT0}, s{sGw}, 4")
        a(f"v_add_u32 v{t6}, s{sT0}, v{t6}")
        a(f"v_mul_u32_u24 v{vJW}, 40, v{t6}")
        a(f"v_add_u32 v{vJW}, v{vJW}, v{vCB}")
        a(f"v_add_u32 v{vJW}, {P0_WKV}, v{vJW}")
        a(f"s_lshl_b32 s{sT0}, s{sGw}, 5")
        a(f"s_add_u32 s{sT0}, s{sT0}, {P0_GW}")
        a(f"v_lshl_add_u32 v{vJG}, v{vH}, 4, s{sT0}")
        a(f"v_lshl_add_u32 v{t6}, v{vH}, 2, v{vRr}")
        a(f"v_lshl_add_u32 v{t5}, v{t4}, 6, v{vCB}")
        a(f"v_lshl_add_u32 v{vRA[0]}, v{t6}, 7, v{t5}")
        a(f"s_mul_i32 s{sT0}, s{sGw}, 20480")
        a(f"s_add_u32 s{sT0}, s{sT0}, {LG}")
        a(f"v_add_u32 v{vRA[0]}, s{sT0}, v{vRA[0]}")
        a(f"v_xor_b32 v{vRA[1]}, 64, v{vRA[0]}")
        a(f"v_lshrrev_b32 v{t5}, 2, v{vR8}")
        a(f"v_mul_u32_u24 v{t5}, {36*1280}, v{t5}")
        a(f"v_add_u32 v251, v{vRD}, v{t5}")
    a(f"s_lshl_b32 s{sT0}, s{sRB}, 8")
    a(f"s_lshl_b32 s{sT1}, s{sGw}, 6")
    a(f"s_add_u32 s{sT0}, s{sT0}, s{sT1}")
    a(f"s_mul_i32 s{sXoff}, s{sT0}, 1280")
    a(f"s_lshl_b32 s{sM0x}, s{sGw}, 13")
    a(f"s_add_u32 s{sM0x}, s{sM0x}, {LGX}")
    a(f"s_lshl_b32 s{sM0w}, s{sGw}, 10")
    a(f"s_add_u32 s{sM0w}, s{sM0w}, {LGW}")
    a(f"s_mul_i32 s{sWoff}, s{sGw}, {8*F*2}")
    a(f"s_lshl_b32 s{sT0}, s{sCT}, 7")
    a(f"s_add_u32 s{sWoff}, s{sWoff}, s{sT0}")
    touch_setup(sGw, vTch)
    if phase0:
        JACC = 96; JF = lambda i: 112 + 8*i
        gq.q = []
        wq_dma(0)
        stamp(41)
        a("s_waitcnt vmcnt(5)")
        a("s_waitcnt lgkmcnt(0)")
        stamp(42)
        a("s_barrier")
        stamp(1)
        a(f"s_cmp_lg_u32 s{sGw}, 3")
        a(f"s_cbranch_scc1 {name}_tg1")
        a.label(f"{name}_tg0")
        a(f"v_readfirstlane_b32 s{sT0}, v{vTagL}")
        a(f"s_cmp_lg_u32 s{sT0}, 0")
        a(f"s_cbranch_scc1 {name}_tgd")
        a("s_sleep 4")
        a(f"buffer_load_dword v{vTagL}, v{vZero}, s[{SDB}:{SDB+3}], 0 offen sc1")
        a("s_waitcnt vmcnt(0)")
        bounded(f"{name}_tg0")
        a.label(f"{name}_tgd")
        a(f"ds_write_b32 v{vFl}, v{vTagL} offset:{F_TAG}")
        a.label(f"{name}_tg1")
        wq_dma(1)
        a(f"s_cmp_ge_u32 s{sCG}, 2")
        a(f"s_cbranch_scc1 {name}_j9")
        a(f"s_cmp_eq_u32 s{sCG}, 1")
        a(f"s_cbranch_scc1 {name}_jV")
        def job(kind):
            def rd(c):
                a(f"ds_read_b128 {R(JF(c),4)}, v{vJX} offset:{P0_X + c*4096}")
                for e in range(2):
                    a(f"ds_read_b64_tr_b16 {P(JF(c)+4+2*e)}, v{vJW} offset:{(64*c+4*e)*40}")
                if kind == 'K':
                    a(f"s_mov_b32 exec_lo, {1<<20}"); a(f"s_mov_b32 exec_hi, {1<<20}")
                    a(f"ds_read_b128 {R(JF(c)+4,4)}, v{vJG} offset:{128*c}")
                    a("s_mov_b64 exec, -1")
            per = 4 if kind == 'K' else 3
            for c in range(3): rd(c)
            for c in range(10):
                left = min(2, 9 - c)
                a(f"s_waitcnt lgkmcnt({left*per})")
                C = R(JACC,16) if c else "0"
                fx = R(JF(c),4); fw = R(JF(c)+4,4)
                if kind == 'K': a(f"v_mfma_f32_32x32x16_bf16 {R(JACC,16)}, {fw}, {fx}, {C}")
                else: a(f"v_mfma_f32_32x32x16_bf16 {R(JACC,16)}, {fx}, {fw}, {C}")
                if c + 3 < 10: rd(c+3)
        job('K')
        a(f"s_branch {name}_j8")
        a.label(f"{name}_jV")
        job('V')
        a.label(f"{name}_j8")
        a("s_nop 7")
        a(f"s_cmp_eq_u32 s{sGw}, 0")
        a(f"s_cbranch_scc1 {name}_j9")
        a(f"s_lshl_b32 s{sT0}, s{sGw}, 12")
        a(f"s_add_u32 s{sT0}, s{sT0}, {P0_JR - 4096}")
        a(f"v_add_u32 v{t0}, s{sT0}, v{vL16}")
        for g_ in range(4): a(f"ds_write_b128 v{t0}, {R(JACC+4*g_,4)} offset:{1024*g_}")
        a.label(f"{name}_j9")
        a("s_waitcnt lgkmcnt(0)")
        a("s_barrier")
        stamp(2)
        get_tag(t0)
        a(f"s_cmp_lg_u32 s{sGw}, 0")
        a(f"s_cbranch_scc1 {name}_pb9")
        a(f"s_cmp_ge_u32 s{sCG}, 2")
        a(f"s_cbranch_scc1 {name}_pb9")
        a(f"v_add_u32 v{t0}, {P0_JR}, v{vL16}")
        for g_ in range(12): a(f"ds_read_b128 {R(112+4*g_,4)}, v{t0} offset:{1024*g_}")
        a(f"s_lshr_b32 s{sT2}, s{sP}, 1")
        a(f"s_mul_i32 s{sT2}, s{sT2}, {DUO}")
        a(f"s_add_u32 s{sT2}, s{sT2}, {WS_KV}")
        a(f"s_and_b32 s{sCnt}, s{sP}, 1")
        a("s_waitcnt lgkmcnt(0)")
        for r in range(0, 16, 2): a(f"v_pk_add_f32 {P(JACC+r)}, {P(JACC+r)}, {P(112+r)}")
        for r in range(0, 16, 2): a(f"v_pk_add_f32 {P(128+r)}, {P(128+r)}, {P(144+r)}")
        for r in range(0, 16, 2): a(f"v_pk_add_f32 {P(JACC+r)}, {P(JACC+r)}, {P(128+r)}")
        TMP = 160; J = JACC
        a(f"s_cmp_eq_u32 s{sCG}, 1")
        a(f"s_cbranch_scc1 {name}_pbV")
        for j in range(6): a(f"v_cvt_pk_bf16_f32 v{TMP+j}, v{J+2*j}, v{J+2*j+1}")
        a(f"s_lshl_b32 s{sT0}, s{sCnt}, 10")
        a(f"s_add_u32 s{sT0}, s{sT0}, s{sT2}")
        a(f"buffer_store_dwordx4 {R(TMP,4)}, v{vL16}, s[{SWS}:{SWS+3}], s{sT0} offen sc1")
        a(f"s_lshl_b32 s{sT0}, s{sCnt}, 3")
        a(f"s_add_u32 s{sT0}, s{sT0}, s{sT2}")
        a(f"s_add_u32 s{sT0}, s{sT0}, 2048")
        a(f"v_mov_b32 v{TMP+8}, 0")
        a(f"v_mov_b32 v{TMP+9}, 0")
        a(f"v_mul_f32 v{TMP+10}, {f2u(-math.log2(math.e)):#x}, v{J+8}")
        for j in range(4): a(f"v_dot2c_f32_bf16 v{TMP+8}, v{TMP+j}, v{TMP+j}")
        a(f"v_exp_f32 v{TMP+10}, v{TMP+10}")
        a(f"s_mov_b32 exec_hi, 0")
        a(f"buffer_store_dwordx2 {P(TMP+4)}, v{vL16}, s[{SWS}:{SWS+3}], s{sT0} offen sc1")
        for j in range(4,6): a(f"v_dot2c_f32_bf16 v{TMP+9}, v{TMP+j}, v{TMP+j}")
        a(f"s_mov_b64 exec, -1")
        a(f"v_add_f32 v{TMP+10}, 1.0, v{TMP+10}")
        a(f"v_rcp_f32 v{TMP+10}, v{TMP+10}")
        a(f"v_lshlrev_b32 v{TMP+11}, 2, v{vPos}")
        a(f"s_lshl_b32 s{sT0}, s{sP}, 7")
        a(f"s_add_u32 s{sT0}, s{sT0}, {WS_G}")
        a(f"v_add_f32 v{TMP+8}, v{TMP+8}, v{TMP+9}")
        a(f"s_mov_b32 exec_lo, 0")
        a(f"buffer_store_dword v{TMP+10}, v{TMP+11}, s[{SWS}:{SWS+3}], s{sT0} offen sc1")
        a(f"s_mov_b64 exec, -1")
        a(f"v_mov_b32 v{TMP+9}, v{TMP+8}")
        a(f"v_permlane32_swap_b32 v{TMP+8}, v{TMP+9}")
        a(f"v_add_f32 v{TMP+8}, v{TMP+8}, v{TMP+9}")
        for sh in (1,2,4,8):
            a(f"v_max_f32_dpp v{TMP+8}, v{TMP+8}, v{TMP+8} row_shr:{sh} row_mask:0xf bank_mask:0xf")
        a(f"v_readlane_b32 s{sT0}, v{TMP+8}, 15")
        a(f"v_readlane_b32 s{sT1}, v{TMP+8}, 31")
        a(f"s_max_u32 s{sT0}, s{sT0}, s{sT1}")
        a(f"v_mov_b32 v{TMP+8}, s{sT0}")
        a(f"s_lshl_b32 s{sT1}, s{sP}, 2")
        a(f"s_add_u32 s{sT1}, s{sT1}, {WS_KN}")
        a(f"s_mov_b64 exec, 1")
        a(f"buffer_store_dword v{TMP+8}, v{vZero}, s[{SWS}:{SWS+3}], s{sT1} offen sc1")
        a(f"s_mov_b64 exec, -1")
        a(f"s_branch {name}_pbF")
        a.label(f"{name}_pbV")
        for j in range(8): a(f"v_cvt_pk_bf16_f32 v{TMP+j}, v{J+2*j}, v{J+2*j+1}")
        a(f"s_mov_b32 exec_lo, {1<<20}"); a(f"s_mov_b32 exec_hi, {1<<20}")
        for j in range(8): a(f"v_mov_b32 v{TMP+j}, 0x3f803f80")
        a(f"s_mov_b32 exec_lo, 0"); a(f"s_mov_b32 exec_hi, {1<<21}")
        for j in range(8): a(f"v_mov_b32 v{TMP+j}, 0")
        a(f"s_mov_b32 exec_lo, {(1<<21)-1}"); a(f"s_mov_b32 exec_hi, {(1<<22)-1}")
        a(f"v_mul_u32_u24 v{TMP+8}, 336, v{vH}")
        a(f"v_lshl_add_u32 v{TMP+8}, v{vPos}, 4, v{TMP+8}")
        a(f"s_mul_i32 s{sT0}, s{sCnt}, 1376")
        a(f"s_add_u32 s{sT0}, s{sT0}, s{sT2}")
        a(f"s_add_u32 s{sT0}, s{sT0}, 2560")
        a(f"buffer_store_dwordx4 {R(TMP,4)}, v{TMP+8}, s[{SWS}:{SWS+3}], s{sT0} offen sc1")
        a(f"buffer_store_dwordx4 {R(TMP+4,4)}, v{TMP+8}, s[{SWS}:{SWS+3}], s{sT0} offen offset:688 sc1")
        a(f"s_mov_b64 exec, -1")
        a.label(f"{name}_pbF")
        stamp(43)
        a.label(f"{name}_pb9")
        gq.issue('st')
        wq_dma(2); wq_dma(3)
        gq.wait(a, ('wq', 0))
        a("s_barrier")
        def kvflag():
            lbl = a.newlabel(f"{name}_pf")
            a(f"s_cmp_lg_u32 s{sGw}, 0")
            a(f"s_cbranch_scc1 {lbl}")
            a(f"s_cmp_ge_u32 s{sCG}, 2")
            a(f"s_cbranch_scc1 {lbl}")
            a(f"s_lshl_b32 s{sT0}, s{sP}, 1")
            a(f"s_add_u32 s{sT0}, s{sT0}, s{sCG}")
            a(f"s_lshl_b32 s{sT0}, s{sT0}, 2")
            a(f"s_add_u32 s{sT0}, s{sT0}, {WS_FLKV}")
            a(f"v_mov_b32 v{TMP+8}, s{sTag}")
            i = gq.q.index('st')
            a(f"s_waitcnt vmcnt({len(gq.q) - 1 - i})")
            a(f"s_mov_b64 exec, 0xff")
            a(f"buffer_store_dword v{TMP+8}, v{vRep}, s[{SWS}:{SWS+3}], s{sT0} offen sc1")
            a(f"s_mov_b64 exec, -1")
            stamp(3)
            a.label(lbl)
        vKF = 232
        a(f"v_lshlrev_b32 v234, 3, v{L}")
        a(f"s_add_u32 s{sOff}, s{sRep}, {WS_FLKV}")
        a(f"s_mov_b32 s{sFlag}, 0")
        def kvcheck():
            lbl = a.newlabel(f"{name}_kc")
            a(f"v_cmp_ne_u32 vcc, s{sTag}, v{vKF}")
            a(f"v_cmp_ne_u32 s[92:93], s{sTag}, v{vKF+1}")
            a("s_nop 1")
            a("s_or_b64 vcc, vcc, s[92:93]")
            a(f"s_cbranch_vccnz {lbl}")
            a(f"ds_write_b32 v{vFl}, v{vOne} offset:{F_KVR}")
            a(f"s_mov_b32 s{sFlag}, 1")
            a.label(lbl)
        for c in range(1, 10):
            if c == 2: kvflag()
            gq.wait(a, ('wq', c))
            a("s_barrier")
            if c + 3 < 10: wq_dma(c+3)
        a("s_barrier")
        stamp(4)

    else:
        a(f"s_mov_b32 s{sTag}, 1")
        for c in range(4): touch(gq, c, vTch)
    srd(a, SA, 72, D*F*2)
    srd(a, SB, 74, D*F*2)

    def xdma(q, c, j):
        a(f"s_add_u32 m0, s{sM0x}, {(c&1)*32768 + j*1024}")
        a(f"s_add_u32 s{sT0}, s{sXoff}, {c*128 + (j>>1)*16*1280}")
        a(f"buffer_load_dwordx4 v{vXD[j&1]}, s[{SX}:{SX+3}], s{sT0} offen lds"); q.issue(('x', c))
    def wdma(q, u, p):
        a(f"s_add_u32 m0, s{sM0w}, {(u%3)*8192 + p*4096}")
        a(f"s_add_u32 s{sT0}, s{sWoff}, {u*32*F*2}")
        a(f"buffer_load_dwordx4 v{vWD}, s[{SB if p else SA}:{(SB if p else SA)+3}], s{sT0} offen lds"); q.issue(('w', u))
    def kvdma(q, r, tag):
        a(f"s_add_u32 m0, s{sA}, {r*4096}")
        a(f"s_add_u32 s{sT2}, s{sB}, {r*4096}")
        a(f"buffer_load_dwordx4 v{vL16}, s[{SKV}:{SKV+3}], s{sT2} offen sc1 lds"); q.issue(tag)
    def kv_poll():
        if not phase0:
            a("s_barrier"); return
        lbl = a.newlabel(f"{name}_kp")
        a(f"s_cmp_lg_u32 s{sGw}, 1")
        a(f"s_cbranch_scc1 {lbl}_d")
        spin(F_QX, 4, tmp=vCnt)
        a(f"ds_read_b32 v{vCnt}, v{vFl} offset:{F_KVR}")
        a("s_waitcnt lgkmcnt(0)")
        a(f"v_readfirstlane_b32 s{sFlag}, v{vCnt}")
        a.label(lbl)
        a(f"s_cmp_lg_u32 s{sFlag}, 0")
        a(f"s_cbranch_scc1 {lbl}_d")
        a(f"buffer_load_dwordx2 {P(vKF)}, v234, s[{SWS}:{SWS+3}], s{sOff} offen sc1")
        a("s_waitcnt vmcnt(0)")
        kvcheck()
        a("s_sleep 2")
        bounded(lbl)
        a.label(lbl + "_d")
        stamp(5)
    def kv_p3(q):
        for r in range(8, 17): kvdma(q, r, 'p3')
        a(f"s_cmp_eq_u32 s{sGw}, 3")
        a(f"s_cselect_b32 exec_lo, 0xffffff, -1")
        a(f"s_cselect_b32 exec_hi, 0, -1")
        kvdma(q, 17, 'p3')
        a("s_mov_b64 exec, -1")

    a(f"s_cmp_ge_u32 s{sCT}, 27")
    a(f"s_cbranch_scc1 {name}_R")
    q = gq.copy()
    FX = lambda b, t: 24 + 16*b + 4*t
    FW = lambda b, s01, p: 56 + 16*b + 8*s01 + 4*p
    ACC = lambda p, t: 96 + (4*p + t)*16
    a(f"s_lshl_b32 s{sA}, s{sGw}, 10")
    a(f"s_add_u32 s{sB}, s{sA}, {WS_KV + 2*DUO}")
    spin(F_QX, 4, tmp=vCnt)
    for p in range(2): wdma(q, 0, p)
    for j in range(8): xdma(q, 0, j)
    for p in range(2): wdma(q, 1, p)
    kv_poll()
    spin(F_KVR, 1, tmp=vCnt)
    kv_p3(q)
    sig = {'p3': F_P3}
    def maybe_signal():
        for tg in list(sig):
            if tg not in q.q:
                signal(sig.pop(tg), vOne)
    def xreads(gs):
        c, s_ = divmod(gs, 4)
        return [f"ds_read_b128 {R(FX(gs&1,t),4)}, v{vXA[s_]} offset:{(c&1)*32768 + t*4096}" for t in range(4)]
    def wreads(u):
        return [f"ds_read_b64_tr_b16 {P(FW(u&1,s01,p)+2*e)}, v{vWA} offset:{(u%3)*8192 + p*4096 + (16*s01+4*e)*128}" for s01 in range(2) for p in range(2) for e in range(2)]
    def mf(gs):
        u = gs >> 1
        o = []
        for t in range(4):
            for p in range(2):
                C = R(ACC(p,t),16) if gs else "0"
                o.append(f"v_mfma_f32_32x32x16_bf16 {R(ACC(p,t),16)}, {R(FW(u&1,gs&1,p),4)}, {R(FX(gs&1,t),4)}, {C}")
        return o
    def arrive(u):
        tags = [('w', u)] + ([('x', u//2)] if u % 2 == 0 else [])
        tags = [t for t in tags if t in q.q]
        if tags:
            last = max(tags, key=lambda t: max(i for i, x in enumerate(q.q) if x == t))
            q.wait(a, last)
        maybe_signal()
        signal(F_G1, vOne)
        a(f"ds_read_b32 v{vCnt}, v{vFl} offset:{F_G1}")
    def check(u):
        lbl = a.newlabel(f"{name}_ck")
        a("s_waitcnt lgkmcnt(0)")
        a(f"v_readfirstlane_b32 s{sT0}, v{vCnt}")
        a(f"s_cmp_ge_u32 s{sT0}, {4*(u+1)}")
        a(f"s_cbranch_scc1 {lbl}")
        spin(F_G1, 4*(u+1), tmp=vCnt)
        a.label(lbl)
    pend = []
    def after_sync(u):
        nonlocal pend
        if u + 2 < 20: pend += [(lambda p=p: wdma(q, u+2, p)) for p in range(2)]
        if u % 2 == 0 and u//2 + 1 < 10:
            pend += [(lambda j=j: xdma(q, u//2 + 1, j)) for j in range(8)]
    if g1prio: a(f"s_setprio {g1prio}")
    arrive(0); check(0)
    stamp(7)
    for r in wreads(0)[:4] + xreads(0): a(r)
    after_sync(0)
    for _ in range(3): pend.pop(0)()
    for gs in range(40):
        M = mf(gs)
        dbg = (32 <= gs < 36)
        a("s_waitcnt lgkmcnt(0)")
        if dbg: stamp(44 + 4*(gs-32))
        if gs % 2 == 0:
            u = gs // 2
            Rr = wreads(u)[4:] + xreads(gs+1)
            for mi, m in enumerate(M):
                a(m)
                a(Rr[mi])
                if mi % 2 == 1 and pend and mi < 7: pend.pop(0)()
        else:
            u = (gs + 1) // 2
            if u % 2 == 0:
                while pend: pend.pop(0)()
            if u % 2 == 0 and u < 20: stamp(20 + u//2)
            if g1prio and u == 2*g1hi: a("s_setprio 0")
            arrive(u)
            if dbg: stamp(45 + 4*(gs-32))
            early = xreads(gs+1) if (u % 2 == 1) else []
            for mi, m in enumerate(M[:4]):
                a(m)
                if pend: pend.pop(0)()
            if dbg: stamp(46 + 4*(gs-32))
            check(u)
            if dbg: stamp(47 + 4*(gs-32))
            if gs == 39:
                stamp(8)
                pend = [(lambda r=r: kvdma(q, r, 'p5')) for r in range(25, 39)]
                Rr = []
            else:
                Rr = wreads(u)[:4] + xreads(gs+1)
                after_sync(u)
                if u == 18:
                    pend += [(lambda r=r: kvdma(q, r, 'p4')) for r in range(17, 25)]
            for mi, m in enumerate(M[4:]):
                a(m)
                for r in Rr[2*mi:2*mi+2]: a(r)
    stamp(9)
    a("s_setprio 3")
    c0 = -2.0*math.sqrt(2.0/math.pi)*math.log2(math.e); c1 = c0*0.044715
    vC0 = 24; vC1 = 26; vOn2 = 28
    for r, val in ((vC0, c0), (vC1, c1), (vOn2, 1.0)):
        a(f"v_mov_b32 v{r}, {f2u(val):#x}"); a(f"v_mov_b32 v{r+1}, {f2u(val):#x}")
    a(f"s_lshl_b32 s{sT0}, s{sRB}, 3")
    a(f"s_lshr_b32 s{sT1}, s{sGw}, 1")
    a(f"s_lshl_b32 s{sT1}, s{sT1}, 2")
    a(f"s_add_u32 s{sT0}, s{sT0}, s{sT1}")
    a(f"s_mul_i32 s{sT0}, s{sT0}, 108")
    a(f"s_lshl_b32 s{sT1}, s{sCT}, 2")
    a(f"s_add_u32 s{sT0}, s{sT0}, s{sT1}")
    a(f"s_and_b32 s{sT1}, s{sGw}, 1")
    a(f"s_lshl_b32 s{sT1}, s{sT1}, 1")
    a(f"s_add_u32 s{sT0}, s{sT0}, s{sT1}")
    a(f"s_lshl_b32 s{sT0}, s{sT0}, 10")
    a(f"s_add_u32 s{sT3}, s{sT0}, {WS_H}")
    for t in range(4):
        G_ = ACC(0,t); U_ = ACC(1,t)
        for m in range(2):
            T = 224 + 8*m
            O = 32 + 4*((2*t+m) % 8)
            for j in range(4): a(f"v_pk_mul_f32 {P(T+2*j)}, {P(G_+8*m+2*j)}, {P(G_+8*m+2*j)}")
            for j in range(4): a(f"v_pk_fma_f32 {P(T+2*j)}, {P(T+2*j)}, {P(vC1)}, {P(vC0)}")
            for j in range(4): a(f"v_pk_mul_f32 {P(T+2*j)}, {P(T+2*j)}, {P(G_+8*m+2*j)}")
            for _ in range(4):
                if pend: pend.pop(0)()
            for j in range(8): a(f"v_exp_f32 v{T+j}, v{T+j}")
            for _ in range(4):
                if pend: pend.pop(0)()
            for j in range(4): a(f"v_pk_mul_f32 {P(U_+8*m+2*j)}, {P(U_+8*m+2*j)}, {P(G_+8*m+2*j)}")
            for j in range(4): a(f"v_pk_add_f32 {P(T+2*j)}, {P(T+2*j)}, {P(vOn2)}")
            for j in range(8): a(f"v_rcp_f32 v{T+j}, v{T+j}")
            for j in range(4): a(f"v_pk_mul_f32 {P(U_+8*m+2*j)}, {P(U_+8*m+2*j)}, {P(T+2*j)}")
            for j in range(4): a(f"v_cvt_pk_bf16_f32 v{O+j}, v{U_+8*m+2*j}, v{U_+8*m+2*j+1}")
            a(f"buffer_store_dwordx4 {R(O,4)}, v{vL16}, s[{SWS}:{SWS+3}], s{sT3} offen offset:{m*1024} sc1"); q.issue('h')
        if t < 3: a(f"s_add_u32 s{sT3}, s{sT3}, {108*1024}")
        if t == 0:
            q.wait(a, 'p4'); signal(F_P4, vOne)
        if t == 2:
            assert not pend
            q.wait(a, 'p5'); signal(F_P5, vOne)
    a("s_setprio 0")
    stamp(10)
    a(f"s_branch {name}_pubh")

    a.label(f"{name}_R")
    q = gq.copy()
    if phase0:
        sU = 90; sNK = 91; sDst = 98; sK16 = 99; sGrp = 100
        a(f"s_mul_i32 s{sCnt}, s{sRB}, 5")
        a(f"s_add_u32 s{sCnt}, s{sCnt}, s{sCT}")
        a(f"s_sub_u32 s{sCnt}, s{sCnt}, 27")
        a(f"s_lshl_b32 s{sCnt}, s{sCnt}, 2")
        a(f"s_add_u32 s{sCnt}, s{sCnt}, s{sGw}")
        a(f"s_mul_i32 s{sCnt}, s{sCnt}, 10")
        a(f"s_mul_i32 s101, s{sGw}, 20480")
        spin(F_QX, 4, tmp=vCnt)
        def unit(i):
            a(f"s_add_u32 s{sU}, s{sCnt}, {i}")
            a(f"s_min_u32 s{sU}, s{sU}, 1479")
            a(f"s_cmp_ge_u32 s{sU}, 1080")
            a(f"s_cselect_b32 s{SR}, s68, s76")
            a(f"s_cselect_b32 s{SR+1}, s69, s77")
            a(f"s_mov_b32 s{SR+2}, {F*D*2}")
            a(f"s_cselect_b32 s{SR+2}, {D*D*2}, s{SR+2}")
            a(f"s_cselect_b32 s{sNK}, 40, 108")
            a(f"s_mov_b32 s{sDst}, {WS_WD}")
            a(f"s_cselect_b32 s{sDst}, {WS_WO}, s{sDst}")
            a(f"s_cselect_b32 s{sT0}, 1080, 0")
            a(f"s_and_b32 s{SR+1}, s{SR+1}, 0xffff")
            a(f"s_mov_b32 s{SR+3}, 0x20000")
            a(f"s_sub_u32 s{sU}, s{sU}, s{sT0}")
            a(f"s_mul_hi_u32 s{sK16}, s{sU}, {(2**32+9)//10}")
            a(f"s_mul_i32 s{sT0}, s{sK16}, 10")
            a(f"s_sub_u32 s{sGrp}, s{sU}, s{sT0}")
    kv_poll()
    a(f"s_lshl_b32 s{sA}, s{sGw}, 10")
    a(f"s_add_u32 s{sB}, s{sA}, {WS_KV + 2*DUO}")
    spin(F_KVR, 1, tmp=vCnt)
    kv_p3(q)
    if phase0:
        for i in range(10):
            unit(i)
            a(f"s_mul_hi_u32 s{sT1}, s{sK16}, {(2**32+4)//5}")
            a(f"s_mul_i32 s{sT2}, s{sT1}, 5")
            a(f"s_sub_u32 s{sT2}, s{sK16}, s{sT2}")
            a(f"s_mul_i32 s{sT1}, s{sT1}, 80")
            a(f"s_mul_i32 s{sT3}, s{sT2}, 20")
            a(f"s_cmp_eq_u32 s{sT2}, 4")
            a(f"s_cselect_b32 s{sT3}, 16, s{sT3}")
            a(f"s_cselect_b32 s{sT2}, 1, 0")
            a(f"s_add_u32 s{sT1}, s{sT1}, s{sT3}")
            a(f"s_lshl_b32 s{sT0}, s{sK16}, 4")
            a(f"s_cmp_eq_u32 s{sNK}, 40")
            a(f"s_cselect_b32 s{sT0}, s{sT1}, s{sT0}")
            a(f"s_cselect_b32 s{sT2}, s{sT2}, 0")
            a(f"s_mul_i32 s{sT0}, s{sT0}, 1280")
            a(f"s_lshl_b32 s{sT1}, s{sGrp}, 7")
            a(f"s_add_u32 s{sT0}, s{sT0}, s{sT1}")
            a(f"s_cmp_eq_u32 s{sT2}, 1")
            a(f"s_cselect_b64 s[92:93], -1, 0")
            a(f"s_mov_b32 s{sT1}, {8*1280}")
            a(f"s_cselect_b32 s{sT1}, {20*1280}, s{sT1}")
            a(f"v_cndmask_b32 v252, v{vRD}, v251, s[92:93]")
            a(f"s_add_u32 m0, s101, {LG + i*2048}")
            a(f"s_add_u32 s{sT1}, s{sT0}, s{sT1}")
            a(f"buffer_load_dwordx4 v252, s[{SR}:{SR+3}], s{sT0} offen lds"); q.issue(('r', i))
            a(f"s_add_u32 m0, s101, {LG + i*2048 + 1024}")
            a("s_nop 0")
            a(f"buffer_load_dwordx4 v252, s[{SR}:{SR+3}], s{sT1} offen lds"); q.issue(('r', i))
        q.wait(a, 'p3'); signal(F_P3, vOne)
        for i in range(10):
            q.wait(a, ('r', i))
            for c in range(2):
                for e in range(2):
                    a(f"ds_read_b64_tr_b16 {P(96+8*i+4*c+2*e)}, v{vRA[c]} offset:{i*2048 + 8*e*128}")
            unit(i)
            a("s_waitcnt lgkmcnt(0)")
            for c in range(2):
                a(f"s_lshl_b32 s{sT0}, s{sGrp}, 1")
                if c: a(f"s_add_u32 s{sT0}, s{sT0}, 1")
                a(f"s_mul_hi_u32 s{sT1}, s{sT0}, {(2**32+4)//5}")
                a(f"s_mul_i32 s{sT2}, s{sT1}, 5")
                a(f"s_sub_u32 s{sT2}, s{sT0}, s{sT2}")
                a(f"s_mul_i32 s{sT1}, s{sT1}, s{sNK}")
                a(f"s_add_u32 s{sT1}, s{sT1}, s{sK16}")
                a(f"s_mul_i32 s{sT1}, s{sT1}, 5120")
                a(f"s_lshl_b32 s{sT2}, s{sT2}, 10")
                a(f"s_add_u32 s{sT1}, s{sT1}, s{sT2}")
                a(f"s_add_u32 s{sT1}, s{sT1}, s{sDst}")
                a(f"buffer_store_dwordx4 {R(96+8*i+4*c,4)}, v{vL16}, s[{SWS}:{SWS+3}], s{sT1} offen sc1"); q.issue('h')
        signal(F_G1, vOne)
        spin(F_G1, 4, tmp=vCnt)
    for r in range(17, 39): kvdma(q, r, 'p4')
    q.wait(a, 'p4'); signal(F_P4, vOne); signal(F_P5, vOne)

    a.label(f"{name}_pubh")
    a("s_waitcnt vmcnt(0)")
    a("s_mov_b64 exec, 1")
    a(f"ds_add_rtn_u32 v{t1}, v{vFl}, v{vOne} offset:{F_HST}")
    a("s_mov_b64 exec, -1")
    a(f"s_lshl_b32 s{sT1}, s{sRB}, 5")
    a(f"s_add_u32 s{sT1}, s{sT1}, s{sCT}")
    a(f"s_lshl_b32 s{sT1}, s{sT1}, 2")
    a(f"s_add_u32 s{sT1}, s{sT1}, {WS_FLH}")
    a(f"s_mul_i32 s{sT2}, s{sRB}, 5")
    a(f"s_add_u32 s{sT2}, s{sT2}, s{sCT}")
    a(f"s_lshl_b32 s{sT2}, s{sT2}, 2")
    a(f"s_add_u32 s{sT2}, s{sT2}, {WS_FLR - 27*4}")
    a(f"s_cmp_ge_u32 s{sCT}, 27")
    a(f"s_cselect_b32 s{sT1}, s{sT2}, s{sT1}")
    a(f"v_mov_b32 v{t2}, s{sTag}")
    a("s_waitcnt lgkmcnt(0)")
    a(f"v_readfirstlane_b32 s{sT0}, v{t1}")
    a(f"s_cmp_lg_u32 s{sT0}, 3")
    a(f"s_cbranch_scc1 {name}_ph1")
    a("s_mov_b64 exec, 0xff")
    a(f"buffer_store_dword v{t2}, v{vRep}, s[{SWS}:{SWS+3}], s{sT1} offen sc1")
    a("s_mov_b64 exec, -1")
    a.label(f"{name}_ph1")
    stamp(11)
    a(f"s_mul_i32 s{sT0}, s{sGw}, 27")
    a(f"s_lshr_b32 s{sT0}, s{sT0}, 2")
    a(f"v_and_b32 v{t1}, 7, v{L}")
    a(f"v_add_u32 v{t1}, s{sT0}, v{t1}")
    a(f"v_min_u32 v{t1}, 26, v{t1}")
    a(f"v_lshlrev_b32 v{t2}, 2, v{t1}")
    a(f"s_lshr_b32 s{sT1}, s{sP}, 3")
    a(f"s_lshl_b32 s{sT1}, s{sT1}, 7")
    a(f"s_add_u32 s{sT1}, s{sT1}, s{sRep}")
    a(f"s_add_u32 s{sT1}, s{sT1}, {WS_FLH}")
    a(f"v_min_u32 v{t4}, 39, v{L}")
    a(f"v_lshlrev_b32 v{t4}, 2, v{t4}")
    a(f"s_add_u32 s{sT2}, s{sRep}, {WS_FLR}")
    a(f"s_mul_i32 s{sT0}, s{sGw}, 27")
    a(f"s_mul_i32 s{sB}, s{sP}, 108")
    a(f"s_add_u32 s{sB}, s{sB}, s{sT0}")
    a(f"s_lshl_b32 s{sB}, s{sB}, 10")
    a(f"s_add_u32 s{sB}, s{sB}, {WS_H}")
    a(f"s_mul_i32 s{sA}, s{sCG}, 108")
    a(f"s_add_u32 s{sA}, s{sA}, s{sT0}")
    a(f"s_mul_i32 s{sA}, s{sA}, 5120")
    a(f"s_add_u32 s{sA}, s{sA}, {WS_WD}")
    q = VMQ()
    FB = lambda b: [16, 40, 64, 176, 200, 224][b]
    AC = lambda i: 96 + 16*i
    def poll(lb, va, so, keep):
        a.label(lb)
        a(f"buffer_load_dword v{t3}, v{va}, s[{SWS}:{SWS+3}], s{so} offen sc1")
        a("s_waitcnt vmcnt(0)")
        a(f"v_cmp_ne_u32 vcc, s{sTag}, v{t3}")
        a("s_nop 4")
        a(f"s_cbranch_vccz {lb}d")
        a("s_sleep 6")
        bounded(lb)
        a.label(lb + "d")
    def wl(s_):
        b = FB(s_ % g2depth)
        for i in range(4):
            a(f"buffer_load_dwordx4 {R(b+4+4*i,4)}, v{vL16}, s[{SWS}:{SWS+3}], s{sA} offen offset:{1024*i} sc1"); q.issue(s_)
        a(f"s_add_u32 s{sT0}, s{sA}, 4096")
        a(f"buffer_load_dwordx4 {R(b+20,4)}, v{vL16}, s[{SWS}:{SWS+3}], s{sT0} offen sc1"); q.issue(s_)
        a(f"s_add_u32 s{sA}, s{sA}, 5120")
    def hl(s_):
        b = FB(s_ % g2depth)
        a(f"buffer_load_dwordx4 {R(b,4)}, v{vL16}, s[{SWS}:{SWS+3}], s{sB} offen sc1"); q.issue(s_)
        a(f"s_add_u32 s{sB}, s{sB}, 1024")
    def loads(s_): hl(s_); wl(s_)
    poll(f"{name}_rp", t4, sT2, 0)
    a(f"v_lshlrev_b32 v{t1}, 2, v{vPos}")
    a(f"s_lshl_b32 s{sT2}, s{sP}, 7")
    a(f"s_add_u32 s{sT2}, s{sT2}, {WS_G}")
    a(f"buffer_load_dword v{vG}, v{t1}, s[{SWS}:{SWS+3}], s{sT2} offen sc1")
    for s_ in range(g2depth): wl(s_)
    poll(f"{name}_hp", t2, sT1, 0)
    stamp(12)
    q.q = []
    for s_ in range(g2depth): hl(s_)
    for s_ in range(27):
        q.wait(a, s_)
        b = FB(s_ % g2depth)
        for i in range(5):
            C = R(AC(i),16) if s_ > 0 else "0"
            a(f"v_mfma_f32_32x32x16_bf16 {R(AC(i),16)}, {R(b+4+4*i,4)}, {R(b,4)}, {C}")
        if s_ + g2depth < 27: loads(s_+g2depth)
    stamp(13)
    WR = [16, 36, 56, 76, 176, 196]
    OR = lambda s_: 216 + 4*s_
    a(f"s_mul_i32 s{sT0}, s{sGw}, 10")
    a(f"s_mul_i32 s{sA}, s{sCG}, 40")
    a(f"s_add_u32 s{sA}, s{sA}, s{sT0}")
    a(f"s_mul_i32 s{sA}, s{sA}, 5120")
    a(f"s_add_u32 s{sA}, s{sA}, {WS_WO}")
    a(f"s_mul_i32 s{sB}, s{sP}, 40")
    a(f"s_add_u32 s{sB}, s{sB}, s{sT0}")
    a(f"s_lshl_b32 s{sB}, s{sB}, 10")
    a(f"s_add_u32 s{sB}, s{sB}, {WS_O}")
    def wloads(s_):
        b = WR[s_ % 6]
        for i in range(4):
            a(f"buffer_load_dwordx4 {R(b+4*i,4)}, v{vL16}, s[{SWS}:{SWS+3}], s{sA} offen offset:{1024*i} sc1"); q.issue(('w', s_))
        a(f"s_add_u32 s{sT0}, s{sA}, 4096")
        a(f"buffer_load_dwordx4 {R(b+16,4)}, v{vL16}, s[{SWS}:{SWS+3}], s{sT0} offen sc1"); q.issue(('w', s_))
        a(f"s_add_u32 s{sA}, s{sA}, 5120")
    if STAMP: a(f"v_mov_b32 v14, v{vST}")
    for s_ in range(6): wloads(s_)
    a(f"v_lshlrev_b32 v{t2}, 7, v{L}")
    for i in range(3):
        a(f"s_add_u32 s{sT0}, s{sA}, {8192*i}")
        a(f"buffer_load_dword v{t6}, v{t2}, s[{SWS}:{SWS+3}], s{sT0} offen sc1"); q.issue('t')
    a("s_setprio 3")
    a(f"v_sub_f32 v{vG}, 1.0, v{vG}")
    a(f"v_mov_b32 v{vG+1}, v{vG}")
    for r in range(96, 176, 2): a(f"v_pk_mul_f32 {R(r,2)}, {R(r,2)}, {R(vG,2)}")
    progress_wait(14*2*DUO, t1, t2, t3, 8)
    a(f"s_andn2_b32 s{sT1}, s2, 0x18")
    a(f"s_lshl_b32 s{sT0}, s{sGw}, 3")
    a(f"s_or_b32 s{sT1}, s{sT1}, s{sT0}")
    a(f"s_lshl_b32 s{sT1}, s{sT1}, 7")
    a(f"s_add_u32 s{sT1}, s{sT1}, {WS_FLAG}")
    a(f"v_and_b32 v{t1}, 3, v{L}")
    a(f"v_lshlrev_b32 v{t1}, 2, v{t1}")
    a("s_waitcnt vmcnt(0)"); q.q = []
    stamp(14, 14)
    a.label(f"{name}_g5")
    a(f"buffer_load_dword v{t2}, v{t1}, s[{SWS}:{SWS+3}], s{sT1} offen sc1")
    a("s_waitcnt vmcnt(0)")
    a(f"v_cmp_ne_u32 vcc, s{sTag}, v{t2}")
    a("s_nop 4")
    a(f"s_cbranch_vccz {name}_g5d")
    a("s_sleep 1")
    bounded(f"{name}_g5")
    a.label(f"{name}_g5d")
    a(f"s_add_u32 s{sT1}, s{sB}, 4096")
    a(f"s_add_u32 s{sT2}, s{sB}, 8192")
    for s_ in range(10):
        a(f"buffer_load_dwordx4 {R(OR(s_),4)}, v{vL16}, s[{SWS}:{SWS+3}], s{(sB,sT1,sT2)[s_//4]} offen offset:{1024*(s_%4)} sc1"); q.issue(('o', s_))
    stamp(15, 14)
    for s_ in range(10):
        q.wait(a, ('o', s_) if s_ < 6 else ('w', s_))
        b = WR[s_ % 6]
        for i in range(5):
            a(f"v_mfma_f32_32x32x16_bf16 {R(AC(i),16)}, {R(b+4*i,4)}, {R(OR(s_),4)}, {R(AC(i),16)}")
        if s_ + 6 < 10: wloads(s_ + 6)
    if STAMP: a(f"v_mov_b32 v{vST}, v14")
    stamp(16)
    a(f"v_mov_b32 v{vFl}, {L_FLAG}")
    a(f"v_mov_b32 v{vOne}, 1")
    a(f"s_mul_i32 s{sT0}, s{sGw}, 20480")
    a(f"v_add_u32 v{t1}, s{sT0}, v{vL16}")
    for gi in range(20):
        a(f"ds_write_b128 v{t1}, {R(96+4*gi,4)} offset:{1024*gi}")
    a("s_waitcnt lgkmcnt(0)")
    signal(F_RED, vOne)
    a(f"s_mul_i32 s{sT0}, s{sGw}, 5120")
    a(f"v_add_u32 v{t1}, s{sT0}, v{vL16}")
    a(f"v_add_u32 v{t4}, 40960, v{t1}")
    a(f"v_mul_u32_u24 v{t3}, 1280, v{vPos}")
    a(f"v_lshrrev_b32 v{t5}, 5, v{L}")
    a(f"v_lshl_add_u32 v{t3}, v{t5}, 3, v{t3}")
    a(f"s_mul_i32 s{sT1}, s{sP}, {32*1280}")
    a(f"s_mul_i32 s{sT2}, s{sCG}, 320")
    a(f"s_add_u32 s{sT1}, s{sT1}, s{sT2}")
    a(f"s_mul_i32 s{sT2}, s{sGw}, 80")
    a(f"s_add_u32 s{sT1}, s{sT1}, s{sT2}")
    spin(F_RED, 4)
    for src in range(4):
        for gi in range(5):
            if src*5+gi == 12: a("s_waitcnt lgkmcnt(4)")
            a(f"ds_read_b128 {R(96+20*src+4*gi,4)}, v{t1 if src < 2 else t4} offset:{(src&1)*20480 + 1024*gi}")
    a("s_waitcnt lgkmcnt(0)")
    for (d, s_) in ((0,1),(2,3),(0,2)):
        for r in range(0, 20, 2): a(f"v_pk_add_f32 {P(96+20*d+r)}, {P(96+20*d+r)}, {P(96+20*s_+r)}")
    for r in range(10): a(f"v_cvt_pk_bf16_f32 v{120+r}, v{96+2*r}, v{97+2*r}")
    for gi in range(5):
        a(f"buffer_store_dwordx2 {P(120+2*gi)}, v{t3}, s[{SO}:{SO+3}], s{sT1} offen offset:{16*gi}")
    stamp_out()
```

```python
S=2048; D=640; H=32; DH=20; F=1728
WS_H   = 0
WS_Q   = WS_H + 64*108*1024
WS_KV  = WS_Q + 64*32*1280
DUO    = 5312
WS_KN  = WS_KV + 32*DUO
WS_G   = WS_KN + 256
WS_O   = WS_G + 8192
WS_WD  = WS_O + 64*40*1024
WS_WO  = WS_WD + 4*108*5120
WS_B   = WS_WO + 4*40*5120
WS_FLAG = WS_B + 2048*640*4
WS_FLH = WS_FLAG + 256*128
FL_REP = 4352
WS_FLKV = WS_FLH + 1024
WS_FLR = WS_FLH + 2048
WS_END = WS_FLAG + 3*256*128
WS_SIZE = 268435456
KA = dict(x=0, wq=8, wk=16, wv=24, wo=32, bx=40, wg=48, wu=56, wd=64, gw=72, out=80, dbg=88, ws=96)
import math
QSCALE = math.log2(math.e)/math.sqrt(20.0)
import struct
def f2u(f): return struct.unpack('<I', struct.pack('<f', f))[0]
```

```python
import sys
sys.path.insert(0,'gen')
import build, os
if os.environ.get('KH'): import kh as kf
else: import kf
from functools import partial
out = sys.argv[1]
opts = eval("dict(%s)" % (sys.argv[2] if len(sys.argv) > 2 else ""))
NAME = 'gated_mix__grouped_kv_mqa__geglu_ffn__prompt_kernel'
build.build([partial(kf.gen_kf, name=NAME, phase0=True, **opts)], out)
s = open(out).read()
s = s.replace(f"; @launch kernel={NAME} grid", "; @launch grid")
open(out, 'w').write(s)
```

```python
from asmlib import *
from layout import *

def srd(a, d, base, size):
    a(f"s_mov_b32 s{d}, s{base}")
    a(f"s_and_b32 s{d+1}, s{base+1}, 0xffff")
    a(f"s_mov_b32 s{d+2}, {size}")
    a(f"s_mov_b32 s{d+3}, 0x20000")

class VMQ:
    def __init__(self): self.q = []
    def issue(self, tag): self.q.append(tag)
    def wait(self, a, tag, extra=''):
        if tag not in self.q: return
        last = max(i for i, t in enumerate(self.q) if t == tag)
        n = len(self.q) - 1 - last
        assert n <= 63
        a(f"s_waitcnt vmcnt({n}){extra}")
        self.q = self.q[last+1:]
    def copy(self):
        v = VMQ(); v.q = list(self.q); return v

L_X = 0
L_W = 98304
L_S = 147456
K1_LDS = 163840

STAMP = False
TOUCH = 'burst'
RL_AT = 21
SKIP_H = False
def gen_k1(a, name='k1_kernel'):
    vST = 175
    def stamp(i):
        if not STAMP: return
        a("s_memtime s[92:93]")
        a("s_waitcnt lgkmcnt(0)")
        a(f"v_writelane_b32 v{vST}, s92, {i}")
    def stamp_out():
        if not STAMP: return
        stamp(63)
        a("s_memrealtime s[92:93]")
        a("s_waitcnt lgkmcnt(0)")
        a(f"v_writelane_b32 v{vST}, s92, 61")
        a("s_lshl_b32 s92, s2, 3")
        a("s_add_u32 s92, s92, s3")
        a("s_lshl_b32 s92, s92, 8")
        a(f"s_add_u32 s92, s92, {WS_END}")
        a("v_lshlrev_b32 v174, 2, v11")
        a(f"buffer_store_dword v{vST}, v174, s[20:23], s92 offen")
    vXA = [1,2,3,4]; vWA = 5; vKA = 6; vXD = [7,8]; vWD = 9; vL16 = 10; vLane = 11; vT = [12,13,14,15,16,17,18,19]
    FX = lambda b,t: 24 + b*8 + t*4
    FW = lambda b,p: 40 + b*8 + p*4
    FK = lambda b: 56 + b*4
    ACC = lambda p,t: 64 + (p*2+t)*16
    JACC = 128
    TMP = 144
    sW = 3
    sRB = 4; sCT = 5
    SX = 8; SA = 12; SB = 16; SWS = 20; SK = 24; SV = 28; SR = 32
    sXoff = 40; sWoff = 41; sLdw = 42; sM0x = 43; sM0w = 44; sT0 = 45; sT1 = 46; sT2 = 47; sT3=48; sWstep = 49; sP = 50; sKoff = 51; sM0k = 52; sExecK=54
    sWoffB = 56
    a(f".p2align 8\n.globl {name}\n.type {name},@function")
    a.label(name)
    a(f"s_cmp_ge_u32 s2, 256")
    a(f"s_cbranch_scc1 {name}_end")
    a("s_load_dwordx4 s[60:63], s[0:1], 0")
    a("s_load_dwordx4 s[64:67], s[0:1], 16")
    a("s_load_dwordx2 s[68:69], s[0:1], 32")
    a("s_load_dwordx4 s[72:75], s[0:1], 48")
    a("s_load_dwordx4 s[76:79], s[0:1], 64")
    a("s_load_dwordx2 s[80:81], s[0:1], 96")
    if STAMP:
        a("s_memtime s[94:95]")
        a("s_memrealtime s[96:97]")
    a(f"v_lshrrev_b32 v{vT[0]}, 6, v0")
    a(f"v_and_b32 v{vLane}, 63, v0")
    a(f"v_readfirstlane_b32 s{sW}, v{vT[0]}")
    a(f"s_and_b32 s{sT0}, s2, 7")
    a(f"s_lshr_b32 s{sT1}, s2, 3")
    a(f"s_and_b32 s{sRB}, s{sT0}, 1")
    a(f"s_lshl_b32 s{sRB}, s{sRB}, 2")
    a(f"s_and_b32 s{sT2}, s{sT1}, 3")
    a(f"s_add_u32 s{sRB}, s{sRB}, s{sT2}")
    a(f"s_lshr_b32 s{sCT}, s{sT0}, 1")
    a(f"s_lshl_b32 s{sCT}, s{sCT}, 3")
    a(f"s_lshr_b32 s{sT2}, s{sT1}, 2")
    a(f"s_add_u32 s{sCT}, s{sCT}, s{sT2}")
    L = vLane
    t0,t1,t2,t3,t4,t5 = vT[:6]
    a(f"v_lshlrev_b32 v{vL16}, 4, v{L}")
    a(f"v_lshrrev_b32 v{t0}, 3, v{L}")
    a(f"v_and_b32 v{t1}, 7, v{L}")
    a(f"v_lshrrev_b32 v{t2}, 1, v{t0}")
    a(f"v_xor_b32 v{t3}, v{t1}, v{t2}")
    a(f"v_mul_u32_u24 v{t4}, 1280, v{t0}")
    a(f"v_lshl_add_u32 v{vXD[0]}, v{t3}, 4, v{t4}")
    a(f"v_xor_b32 v{t3}, 4, v{t3}")
    a(f"v_lshl_add_u32 v{vXD[1]}, v{t3}, 4, v{t4}")
    a(f"v_add_u32 v{vXD[1]}, {8*1280}, v{vXD[1]}")
    a(f"v_and_b32 v{t3}, 1, v{t2}")
    a(f"v_lshlrev_b32 v{t3}, 2, v{t3}")
    a(f"v_xor_b32 v{t3}, v{t3}, v{t1}")
    a(f"v_lshlrev_b32 v{vWD}, 4, v{t3}")
    a(f"v_and_b32 v{t1}, 31, v{L}")
    a(f"v_lshrrev_b32 v{t2}, 5, v{L}")
    a(f"v_bfe_u32 v{t3}, v{L}, 1, 3")
    a(f"v_xor_b32 v{t3}, v{t3}, v{t2}")
    a(f"v_lshlrev_b32 v{t3}, 4, v{t3}")
    a(f"v_lshl_add_u32 v{t3}, v{t1}, 7, v{t3}")
    a(f"s_lshr_b32 s{sT0}, s{sW}, 1")
    a(f"s_mul_i32 s{sT0}, s{sT0}, 24576")
    a(f"v_add_u32 v{vXA[0]}, s{sT0}, v{t3}")
    for s in range(1,4):
        a(f"v_xor_b32 v{vXA[s]}, {32*s}, v{vXA[0]}")
    a(f"v_bfe_u32 v{t1}, v{L}, 2, 2")
    a(f"v_and_b32 v{t3}, 3, v{L}")
    a(f"v_bfe_u32 v{t4}, v{L}, 4, 1")
    a(f"v_lshlrev_b32 v{t3}, 3, v{t3}")
    a(f"v_lshl_add_u32 v{t3}, v{t4}, 5, v{t3}")
    a(f"v_lshrrev_b32 v{t4}, 1, v{t1}")
    a(f"s_and_b32 s{sT0}, s{sW}, 1")
    a(f"v_xor_b32 v{t4}, s{sT0}, v{t4}")
    a(f"v_lshl_add_u32 v{t4}, v{t4}, 6, v{t3}")
    a(f"v_lshl_add_u32 v{t5}, v{t2}, 3, v{t1}")
    a(f"v_lshl_add_u32 v{vWA}, v{t5}, 7, v{t4}")
    a(f"v_add_u32 v{vWA}, {L_W}, v{vWA}")
    a(f"v_mul_u32_u24 v{vKA}, 40, v{t5}")
    a(f"v_add_u32 v{vKA}, v{vKA}, v{t3}")
    a(f"s_mul_i32 s{sT0}, s{sT0}, 2560")
    a(f"s_add_u32 s{sT0}, s{sT0}, {L_S}")
    a(f"v_add_u32 v{vKA}, s{sT0}, v{vKA}")
    a(f"v_lshl_add_u32 v{t5}, v{t2}, 2, v{t1}")
    a(f"v_lshrrev_b32 v{t4}, 1, v{t1}")
    a(f"v_lshl_add_u32 v{t4}, v{t4}, 6, v{t3}")
    a(f"v_lshl_add_u32 v{vT[6]}, v{t5}, 7, v{t4}")
    a(f"s_lshl_b32 s{sT0}, s{sW}, 11")
    a(f"s_add_u32 s{sT0}, s{sT0}, {L_S}")
    a(f"v_add_u32 v{vT[6]}, s{sT0}, v{vT[6]}")
    a(f"v_xor_b32 v{vT[7]}, 64, v{vT[6]}")
    a(f"s_lshl_b32 s{sT0}, s{sRB}, 8")
    a(f"s_lshl_b32 s{sT1}, s{sW}, 5")
    a(f"s_add_u32 s{sT0}, s{sT0}, s{sT1}")
    a(f"s_mul_i32 s{sXoff}, s{sT0}, 1280")
    a(f"s_lshr_b32 s{sT0}, s{sW}, 1")
    a(f"s_mul_i32 s{sM0x}, s{sT0}, 24576")
    a(f"s_and_b32 s{sT0}, s{sW}, 1")
    a(f"s_lshl_b32 s{sT0}, s{sT0}, 12")
    a(f"s_add_u32 s{sM0x}, s{sM0x}, s{sT0}")
    a(f"s_lshl_b32 s{sM0w}, s{sW}, 10")
    a(f"s_add_u32 s{sM0w}, s{sM0w}, {L_W}")
    a("s_waitcnt lgkmcnt(0)")
    stamp(1)
    if STAMP:
        a(f"v_writelane_b32 v{vST}, s94, 0")
        a(f"v_writelane_b32 v{vST}, s96, 62")
    srd(a, SX, 60, S*D*2)
    srd(a, SWS, 80, WS_END + (1<<20))
    a(f"s_lshl_b32 s{sT0}, s2, 7")
    a(f"s_add_u32 s{sT0}, s{sT0}, {WS_FLAG}")
    a(f"v_mov_b32 v21, 0")
    a(f"v_lshlrev_b32 v22, 2, v{vLane}")
    a(f"s_mov_b64 exec, 15")
    ZFLAG = True
    a(f"buffer_store_dword v21, v22, s[{SWS}:{SWS+3}], s{sT0} offen")
    a(f"s_mov_b64 exec, -1")
    a(f"s_cmp_ge_u32 s{sCT}, 27")
    a(f"s_cbranch_scc1 {name}_q")

    def dma_list(vq, c, kv):
        st = c % 3
        L = []
        def xd(j):
            a(f"s_add_u32 m0, s{sM0x}, {st*8192 + j*1024}")
            a(f"s_add_u32 s{sT0}, s{sXoff}, {c*128 + (j>>1)*16*1280}")
            a(f"buffer_load_dwordx4 v{vXD[j&1]}, s[{SX}:{SX+3}], s{sT0} offen lds")
            vq.issue(('c', c))
        def wd(p):
            a(f"s_add_u32 m0, s{sM0w}, {st*16384 + p*8192}")
            a(f"s_mul_i32 s{sT1}, s{sWstep}, {c}")
            a(f"s_add_u32 s{sT0}, s{sWoffB if p else sWoff}, s{sT1}")
            a(f"buffer_load_dwordx4 v{vWD}, s[{SB if p else SA}:{(SB if p else SA)+3}], s{sT0} offen lds")
            vq.issue(('c', c))
        def kd_():
            a(f"s_add_u32 m0, s{sM0k}, {st*5120}")
            a(f"s_add_u32 s{sT0}, s{sKoff}, {c*2560}")
            a(f"s_mov_b64 exec, s[{sExecK}:{sExecK+1}]")
            a(f"buffer_load_dwordx4 v{vL16}, s[{SK}:{SK+3}], s{sT0} offen lds")
            a(f"s_mov_b64 exec, -1")
            vq.issue(('c', c))
        L = [lambda: wd(0), lambda: wd(1)] + [(lambda j=j: xd(j)) for j in range(4)]
        if kv: L.append(kd_)
        return L
    def dma_chunk(vq, c, kv):
        for f in dma_list(vq, c, kv): f()
    STC = 36; sTch = 57; sTstep = 58; vTch = 20
    def touch_setup(ldw):
        a(f"s_lshr_b32 s{sT2}, s2, 3")
        a(f"s_lshr_b32 s{sT0}, s{sT2}, 2")
        a(f"s_lshl_b32 s{sT0}, s{sT0}, 5")
        a(f"s_lshl_b32 s{sT1}, s{sW}, 3")
        a(f"s_add_u32 s{sT0}, s{sT0}, s{sT1}")
        a(f"s_lshl_b32 s{sT1}, s{sRB}, 8")
        a(f"s_add_u32 s{sT0}, s{sT0}, s{sT1}")
        a(f"s_mul_i32 s{sTch}, s{sT0}, 1280")
        a(f"s_and_b32 s{sT2}, s{sT2}, 3")
        a(f"s_lshl_b32 s{sT2}, s{sT2}, 1")
        a(f"s_and_b32 s{sT0}, s{sW}, 1")
        a(f"s_add_u32 s{sT2}, s{sT2}, s{sT0}")
        a(f"s_sub_u32 s{sT2}, s{sT2}, s{sW}")
        a(f"s_mul_i32 s{sT2}, s{sT2}, {8*ldw}")
        a(f"s_cmp_ge_u32 s{sW}, 6")
        a(f"s_cselect_b32 s{sT0}, s{sWoffB}, s{sWoff}")
        a(f"s_cselect_b32 s{STC}, s{SB}, s{SA}")
        a(f"s_cselect_b32 s{STC+1}, s{SB+1}, s{SA+1}")
        a(f"s_add_u32 s{sT2}, s{sT2}, s{sT0}")
        a(f"s_cmp_ge_u32 s{sW}, 4")
        a(f"s_cselect_b32 s{sTch}, s{sT2}, s{sTch}")
        a(f"s_cselect_b32 s{STC}, s{STC}, s{SX}")
        a(f"s_cselect_b32 s{STC+1}, s{STC+1}, s{SX+1}")
        a(f"s_cselect_b32 s{STC+2}, s{SA+2}, s{SX+2}")
        a(f"s_mov_b32 s{STC+3}, 0x20000")
        a(f"s_mov_b32 s{sTstep}, 128")
        a(f"s_cselect_b32 s{sTstep}, s{sWstep}, s{sTstep}")
        a(f"s_mov_b32 s{sT0}, 1280")
        a(f"s_cselect_b32 s{sT0}, {ldw}, s{sT0}")
        a(f"v_mul_lo_u32 v{vTch}, s{sT0}, v{L}")
    def touch0(vq):
        if TOUCH == 'step':
            touch(vq, 2); touch(vq, 3)
        elif TOUCH.startswith('burst'):
            c0 = int(TOUCH[5:] or 2)
            a(f"v_and_b32 v{vTch+1}, 7, v{L}")
            a(f"v_mul_lo_u32 v{vTch}, s{sT0}, v{vTch+1}")
            a(f"v_lshrrev_b32 v{vTch+1}, 3, v{L}")
            a(f"v_mul_lo_u32 v{vTch+1}, s{sTstep}, v{vTch+1}")
            a(f"v_add_u32 v{vTch}, v{vTch}, v{vTch+1}")
            a(f"s_mul_i32 s{sT0}, s{sTstep}, {c0}")
            a(f"s_add_u32 s{sT0}, s{sT0}, s{sTch}")
            n = (10 - c0) * 8
            a(f"s_mov_b32 exec_lo, {(1 << min(n,32)) - 1:#x}")
            a(f"s_mov_b32 exec_hi, {((1 << max(n-32,0)) - 1):#x}")
            a(f"buffer_load_dword v{vTch+1}, v{vTch}, s[{STC}:{STC+3}], s{sT0} offen"); vq.issue('t')
            a(f"s_mov_b64 exec, -1")
    def touch(vq, c):
        a(f"s_mul_i32 s{sT0}, s{sTstep}, {c}")
        a(f"s_add_u32 s{sT0}, s{sT0}, s{sTch}")
        a(f"s_mov_b64 exec, 0xff")
        a(f"buffer_load_dword v{vTch+1}, v{vTch}, s[{STC}:{STC+3}], s{sT0} offen"); vq.issue('t')
        a(f"s_mov_b64 exec, -1")

    def reads(gs, job):
        c, s = divmod(gs, 4); st = c % 3; b = gs & 1
        out = []
        for t in range(2):
            out.append(f"ds_read_b128 v[{FX(b,t)}:{FX(b,t)+3}], v{vXA[s]} offset:{st*8192 + t*4096}")
        for p in range(2):
            for e in range(2):
                out.append(f"ds_read_b64_tr_b16 v[{FW(b,p)+2*e}:{FW(b,p)+2*e+1}], v{vWA} offset:{st*16384 + p*8192 + (16*s+4*e)*128}")
        if job in ('K0','K1','V0','V1'):
            for e in range(2):
                out.append(f"ds_read_b64_tr_b16 v[{FK(b)+2*e}:{FK(b)+2*e+1}], v{vKA} offset:{st*5120 + (16*s+4*e)*40}")
        elif job == 'G':
            out.append(f"ds_read_b128 v[{FK(b)}:{FK(b)+3}], v{vKA} offset:{gs*32}")
        return out

    def mfmas(gs, job):
        b = gs & 1
        out = []
        for p in range(2):
            for t in range(2):
                A = ACC(p,t)
                C = f"v[{A}:{A+15}]" if gs else "0"
                out.append(f"v_mfma_f32_32x32x16_bf16 v[{A}:{A+15}], v[{FW(b,p)}:{FW(b,p)+3}], v[{FX(b,t)}:{FX(b,t)+3}], {C}")
        if job:
            t = {'K0':0,'K1':1,'V0':0,'V1':1,'G0':0,'G1':1}[job]
            fk = f"v[{FK(b)}:{FK(b)+3}]"; fx = f"v[{FX(b,t)}:{FX(b,t)+3}]"
            C = f"v[{JACC}:{JACC+15}]" if gs else "0"
            if job[0] == 'V': out.append(f"v_mfma_f32_32x32x16_bf16 v[{JACC}:{JACC+15}], {fx}, {fk}, {C}")
            else: out.append(f"v_mfma_f32_32x32x16_bf16 v[{JACC}:{JACC+15}], {fk}, {fx}, {C}")
        return out

    def mainloop(vq, job, kv, hook=None):
        rj = 'G' if (job and job[0] == 'G') else job
        stamp(2)
        vq.wait(a, ('c', 0))
        stamp(3)
        a("s_barrier")
        stamp(4)
        for r in reads(0, rj): a(r)
        pend = dma_list(vq, 2, kv) + ([lambda: touch(vq, 4)] if TOUCH == 'step' else [])
        for gs in range(40):
            c, s = divmod(gs, 4)
            a("s_waitcnt lgkmcnt(0)")
            if s == 3 and c < 9:
                assert not pend
                stamp(5+3*c)
                vq.wait(a, ('c', c+1))
                stamp(6+3*c)
                a("s_barrier")
                stamp(7+3*c)
                if c + 3 < 10: pend = dma_list(vq, c+3, kv)
                if TOUCH == 'step' and c + 5 < 10: pend.append(lambda c=c: touch(vq, c+5))
            M = mfmas(gs, job)
            R = reads(gs+1, rj) if gs < 39 else []
            nd = {3: 2, 0: 2, 1: 2, 2: 3}[s]
            if gs < 3: nd = 3
            if kv and s in (0,1): nd = 3
            ri = 0
            for mi, m in enumerate(M):
                a(m)
                k = 2 if mi < len(M)-1 else len(R)
                for r in R[ri:ri+k]: a(r)
                ri += k
                if mi >= 1 and nd > 0 and pend:
                    pend.pop(0)(); nd -= 1
            if hook: hook(vq, gs)
        stamp(40)

    srd(a, SA, 72, D*F*2)
    srd(a, SB, 74, D*F*2)
    a(f"v_mul_u32_u24 v{t0}, {F*2}, v{t0}")
    a(f"v_add_u32 v{TMP}, v{vWD}, v{t0}")
    a(f"v_lshrrev_b32 v{t0}, 3, v{L}")
    a(f"v_mul_u32_u24 v{t0}, 1280, v{t0}")
    a(f"v_add_u32 v{TMP+1}, v{vWD}, v{t0}")
    a(f"v_mov_b32 v{vWD}, v{TMP}")
    a(f"s_mul_i32 s{sWoff}, s{sW}, {8*F*2}")
    a(f"s_lshl_b32 s{sT0}, s{sCT}, 7")
    a(f"s_add_u32 s{sWoff}, s{sWoff}, s{sT0}")
    a(f"s_mov_b32 s{sWoffB}, s{sWoff}")
    a(f"s_mov_b32 s{sWstep}, {64*F*2}")
    sU = 84; sK16 = 85; sGrp = 86; sNK = 87; sDst = 88; sIsWo = 89
    a(f"s_mul_i32 s{sU}, s{sRB}, 27")
    a(f"s_add_u32 s{sU}, s{sU}, s{sCT}")
    a(f"s_lshl_b32 s{sU}, s{sU}, 3")
    a(f"s_add_u32 s{sU}, s{sU}, s{sW}")
    a(f"s_min_u32 s{sU}, s{sU}, 1479")
    a(f"s_cmp_ge_u32 s{sU}, 1080")
    a(f"s_cselect_b32 s{SR}, s68, s76")
    a(f"s_cselect_b32 s{SR+1}, s69, s77")
    a(f"s_mov_b32 s{SR+2}, {F*D*2}")
    a(f"s_cselect_b32 s{SR+2}, {D*D*2}, s{SR+2}")
    a(f"s_cselect_b32 s{sNK}, 40, 108")
    a(f"s_mov_b32 s{sDst}, {WS_WD}")
    a(f"s_cselect_b32 s{sDst}, {WS_WO}, s{sDst}")
    a(f"s_cselect_b32 s{sT0}, 1080, 0")
    a(f"s_and_b32 s{SR+1}, s{SR+1}, 0xffff")
    a(f"s_mov_b32 s{SR+3}, 0x20000")
    a(f"s_sub_u32 s{sU}, s{sU}, s{sT0}")
    a(f"s_mul_hi_u32 s{sK16}, s{sU}, {(2**32+9)//10}")
    a(f"s_mul_i32 s{sT0}, s{sK16}, 10")
    a(f"s_sub_u32 s{sGrp}, s{sU}, s{sT0}")
    a(f"s_mul_hi_u32 s{sT1}, s{sK16}, {(2**32+4)//5}")
    a(f"s_mul_i32 s{sT2}, s{sT1}, 5")
    a(f"s_sub_u32 s{sT2}, s{sK16}, s{sT2}")
    a(f"s_mul_i32 s{sT1}, s{sT1}, 80")
    a(f"s_mul_i32 s{sT3}, s{sT2}, 20")
    a(f"s_cmp_eq_u32 s{sT2}, 4")
    a(f"s_cselect_b32 s{sT3}, 16, s{sT3}")
    a(f"s_cselect_b32 s{sT2}, 1, 0")
    a(f"s_add_u32 s{sT1}, s{sT1}, s{sT3}")
    a(f"s_lshl_b32 s{sT0}, s{sK16}, 4")
    a(f"s_cmp_eq_u32 s{sNK}, 40")
    a(f"s_cselect_b32 s{sT0}, s{sT1}, s{sT0}")
    a(f"s_cselect_b32 s{sT2}, s{sT2}, 0")
    a(f"s_mul_i32 s{sT0}, s{sT0}, 1280")
    a(f"s_lshl_b32 s{sT1}, s{sGrp}, 7")
    a(f"s_add_u32 s{sT0}, s{sT0}, s{sT1}")
    a(f"s_mul_i32 s{sT1}, s{sT2}, {36*1280}")
    a(f"v_lshrrev_b32 v{TMP+2}, 5, v{L}")
    a(f"v_mul_lo_u32 v{TMP+2}, s{sT1}, v{TMP+2}")
    a(f"v_add_u32 v{TMP+1}, v{TMP+1}, v{TMP+2}")
    a(f"s_mul_i32 s83, s{sT2}, {12*1280}")
    a(f"s_add_u32 s83, s83, {8*1280}")
    vq = VMQ()
    a(f"s_mov_b32 s{sT3}, s{sT0}")
    dma_chunk(vq, 0, False)
    a("s_barrier")
    dma_chunk(vq, 1, False)
    touch_setup(F*2)
    touch0(vq)
    sD = [90, 91]
    for c in range(2):
        a(f"s_lshl_b32 s{sT0}, s{sGrp}, 1")
        if c: a(f"s_add_u32 s{sT0}, s{sT0}, 1")
        a(f"s_mul_hi_u32 s{sT1}, s{sT0}, {(2**32+4)//5}")
        a(f"s_mul_i32 s{sT2}, s{sT1}, 5")
        a(f"s_sub_u32 s{sT2}, s{sT0}, s{sT2}")
        a(f"s_mul_i32 s{sT1}, s{sT1}, s{sNK}")
        a(f"s_add_u32 s{sT1}, s{sT1}, s{sK16}")
        a(f"s_mul_i32 s{sT1}, s{sT1}, 5120")
        a(f"s_lshl_b32 s{sT2}, s{sT2}, 10")
        a(f"s_add_u32 s{sT1}, s{sT1}, s{sT2}")
        a(f"s_add_u32 s{sD[c]}, s{sT1}, s{sDst}")
    def relayout(vq, gs):
        if gs == RL_AT:
            a(f"s_lshl_b32 s{sT2}, s{sW}, 11")
            a(f"s_add_u32 m0, s{sT2}, {L_S}")
            a("s_nop 0")
            a(f"buffer_load_dwordx4 v{TMP+1}, s[{SR}:{SR+3}], s{sT3} offen lds"); vq.issue('rl')
            a(f"s_add_u32 m0, s{sT2}, {L_S+1024}")
            a(f"s_add_u32 s{sT3}, s{sT3}, s83")
            a(f"buffer_load_dwordx4 v{TMP+1}, s[{SR}:{SR+3}], s{sT3} offen lds"); vq.issue('rl')
        if gs == 38:
            vq.wait(a, 'rl')
            for c in range(2):
                for e in range(2):
                    a(f"ds_read_b64_tr_b16 v[{TMP+8+4*c+2*e}:{TMP+8+4*c+2*e+1}], v{vT[6+c]} offset:{8*e*128}")
        if gs == 39:
            a("s_waitcnt lgkmcnt(0)")
            for c in range(2):
                a(f"buffer_store_dwordx4 v[{TMP+8+4*c}:{TMP+8+4*c+3}], v{vL16}, s[{SWS}:{SWS+3}], s{sD[c]} offen"); vq.issue('st')
    mainloop(vq, None, False, relayout)
    c0 = -2.0*math.sqrt(2.0/math.pi)*math.log2(math.e); c1 = c0*0.044715
    vC0 = 24; vC1 = 26; vOne = 28
    for r, val in ((vC0, c0), (vC1, c1), (vOne, 1.0)):
        a(f"v_mov_b32 v{r}, {f2u(val):#x}"); a(f"v_mov_b32 v{r+1}, {f2u(val):#x}")
    a(f"s_lshl_b32 s{sT0}, s{sRB}, 3")
    a(f"s_and_b32 s{sT1}, s{sW}, 6")
    a(f"s_add_u32 s{sT0}, s{sT0}, s{sT1}")
    a(f"s_mul_i32 s{sT0}, s{sT0}, 108")
    a(f"s_lshl_b32 s{sT1}, s{sCT}, 2")
    a(f"s_add_u32 s{sT0}, s{sT0}, s{sT1}")
    a(f"s_and_b32 s{sT1}, s{sW}, 1")
    a(f"s_lshl_b32 s{sT1}, s{sT1}, 1")
    a(f"s_add_u32 s{sT0}, s{sT0}, s{sT1}")
    a(f"s_lshl_b32 s{sT0}, s{sT0}, 10")
    a(f"s_add_u32 s{sT0}, s{sT0}, {WS_H}")
    a(f"s_add_u32 s{sT1}, s{sT0}, {108*1024}")
    P = lambda r: f"v[{r}:{r+1}]"
    for t in range(2):
        G = ACC(0,t); U = ACC(1,t)
        for m in range(2):
            T = TMP + 8*m
            O = 32 + 4*(2*t+m)
            for j in range(4): a(f"v_pk_mul_f32 {P(T+2*j)}, {P(G+8*m+2*j)}, {P(G+8*m+2*j)}")
            for j in range(4): a(f"v_pk_fma_f32 {P(T+2*j)}, {P(T+2*j)}, {P(vC1)}, {P(vC0)}")
            for j in range(4): a(f"v_pk_mul_f32 {P(T+2*j)}, {P(T+2*j)}, {P(G+8*m+2*j)}")
            for j in range(8): a(f"v_exp_f32 v{T+j}, v{T+j}")
            for j in range(4): a(f"v_pk_mul_f32 {P(U+8*m+2*j)}, {P(U+8*m+2*j)}, {P(G+8*m+2*j)}")
            for j in range(4): a(f"v_pk_add_f32 {P(T+2*j)}, {P(T+2*j)}, {P(vOne)}")
            for j in range(8): a(f"v_rcp_f32 v{T+j}, v{T+j}")
            for j in range(4): a(f"v_pk_mul_f32 {P(U+8*m+2*j)}, {P(U+8*m+2*j)}, {P(T+2*j)}")
            for j in range(4): a(f"v_cvt_pk_bf16_f32 v{O+j}, v{U+8*m+2*j}, v{U+8*m+2*j+1}")
            if not SKIP_H: a(f"buffer_store_dwordx4 v[{O}:{O+3}], v{vL16}, s[{SWS}:{SWS+3}], s{sT0 if t == 0 else sT1} offen offset:{m*1024}")
    stamp_out()
    a("s_endpgm")

    QAD = TMP + 16; vQS = TMP + 24
    def qaddr():
        vH = TMP+8; vPos = TMP+9; vG = TMP+10; vHd = TMP+11; vJ = TMP+12; vA1 = TMP+13; vA2 = TMP+14
        a(f"v_lshrrev_b32 v{vH}, 5, v{L}")
        a(f"v_and_b32 v{vPos}, 31, v{L}")
        a(f"v_mov_b32 v{vQS}, {f2u(QSCALE):#x}")
        a(f"v_mov_b32 v{vQS+1}, {f2u(QSCALE):#x}")
        a(f"s_lshl_b32 s{sT0}, s{sCQ}, 5")
        a(f"s_and_b32 s{sT1}, s{sW}, 1")
        a(f"s_lshl_b32 s{sT1}, s{sT1}, 3")
        a(f"s_add_u32 s{sT0}, s{sT0}, s{sT1}")
        a(f"v_add_u32 v{vH}, s{sT0}, v{vH}")
        a(f"v_lshlrev_b32 v{vA2}, 3, v{vPos}")
        a(f"v_add_u32 v{vA2}, 1024, v{vA2}")
        for p in range(2):
            for aa in range(4):
                a(f"v_add_u32 v{vG}, {p*16 + 2*aa}, v{vH}")
                a(f"v_mul_u32_u24 v{vHd}, 205, v{vG}")
                a(f"v_lshrrev_b32 v{vHd}, 10, v{vHd}")
                a(f"v_mul_u32_u24 v{vJ}, 5, v{vHd}")
                a(f"v_sub_u32 v{vJ}, v{vG}, v{vJ}")
                a(f"v_and_b32 v{vA1}, 1, v{vJ}")
                a(f"v_lshl_add_u32 v{vA1}, v{vA1}, 5, v{vPos}")
                a(f"v_lshlrev_b32 v{vA1}, 4, v{vA1}")
                a(f"v_lshrrev_b32 v{vG}, 1, v{vJ}")
                a(f"v_lshl_add_u32 v{vA1}, v{vG}, 3, v{vA1}")
                a(f"v_cmp_eq_u32 vcc, 4, v{vJ}")
                a(f"v_mul_u32_u24 v{vHd}, 1280, v{vHd}")
                a(f"v_cndmask_b32 v{vA1}, v{vA1}, v{vA2}, vcc")
                a(f"v_add_u32 v{QAD+4*p+aa}, v{vA1}, v{vHd}")
    a.label(f"{name}_q")
    sCQ = 84
    a(f"s_sub_u32 s{sCQ}, s{sCT}, 27")
    srd(a, SA, 62, D*D*2)
    srd(a, SB, 62, D*D*2)
    a(f"v_mul_u32_u24 v{t0}, 1280, v{t0}")
    a(f"v_add_u32 v{vWD}, v{vWD}, v{t0}")
    a(f"s_mul_i32 s{sWoff}, s{sW}, {8*1280}")
    a(f"s_lshl_b32 s{sT0}, s{sCQ}, 8")
    a(f"s_add_u32 s{sWoff}, s{sWoff}, s{sT0}")
    a(f"s_add_u32 s{sWoffB}, s{sWoff}, 128")
    a(f"s_mov_b32 s{sWstep}, {64*1280}")
    a(f"s_cmp_eq_u32 s{sCQ}, 4")
    a(f"s_cbranch_scc1 {name}_qg")
    a(f"s_min_u32 s{sT0}, s{sW}, 5")
    a(f"s_cmp_ge_u32 s{sT0}, 3")
    a(f"s_cselect_b32 s{SK}, s66, s64")
    a(f"s_cselect_b32 s{SK+1}, s67, s65")
    a(f"s_cselect_b32 s{sT1}, 3, 0")
    a(f"s_mov_b32 s{sM0k}, {L_S}")
    a(f"s_cselect_b32 s{sM0k}, {L_S+2560}, s{sM0k}")
    a(f"s_and_b32 s{SK+1}, s{SK+1}, 0xffff")
    a(f"s_mov_b32 s{SK+2}, {D*DH*2}")
    a(f"s_mov_b32 s{SK+3}, 0x20000")
    a(f"s_sub_u32 s{sT0}, s{sT0}, s{sT1}")
    a(f"s_lshl_b32 s{sKoff}, s{sT0}, 10")
    a(f"s_add_u32 s{sM0k}, s{sM0k}, s{sKoff}")
    a(f"s_cmp_eq_u32 s{sT0}, 2")
    a(f"s_mov_b32 s{sExecK}, -1")
    a(f"s_cselect_b32 s{sExecK+1}, 0, -1")
    vq0 = VMQ()
    dma_chunk(vq0, 0, True)
    a("s_barrier")
    dma_chunk(vq0, 1, True)
    touch_setup(1280)
    touch0(vq0)
    qaddr()
    a(f"s_lshr_b32 s{sT0}, s{sW}, 2")
    a(f"s_lshr_b32 s{sT1}, s{sCQ}, 1")
    a(f"s_cmp_lg_u32 s{sT0}, s{sT1}")
    a(f"s_cbranch_scc1 {name}_qN")
    a(f"s_and_b32 s{sT0}, s{sCQ}, 1")
    a(f"s_and_b32 s{sT1}, s{sW}, 1")
    a(f"s_lshl_b32 s{sT1}, s{sT1}, 1")
    a(f"s_or_b32 s{sT0}, s{sT0}, s{sT1}")
    a(f"s_lshl_b32 s{sP}, s{sRB}, 3")
    a(f"s_and_b32 s{sT1}, s{sW}, 6")
    a(f"s_add_u32 s{sP}, s{sP}, s{sT1}")
    a(f"s_and_b32 s{sT1}, s{sCQ}, 1")
    a(f"s_add_u32 s{sP}, s{sP}, s{sT1}")
    a(f"s_cmp_eq_u32 s{sT0}, 1"); a(f"s_cbranch_scc1 {name}_qK1")
    a(f"s_cmp_eq_u32 s{sT0}, 2"); a(f"s_cbranch_scc1 {name}_qV0")
    a(f"s_cmp_eq_u32 s{sT0}, 3"); a(f"s_cbranch_scc1 {name}_qV1")

    def kv_base():
        a(f"s_lshr_b32 s{sT2}, s{sP}, 1")
        a(f"s_mul_i32 s{sT2}, s{sT2}, {DUO}")
        a(f"s_add_u32 s{sT2}, s{sT2}, {WS_KV}")
        a(f"s_and_b32 s{sT3}, s{sP}, 1")
    def k_epi():
        J = JACC
        kv_base()
        for j in range(6): a(f"v_cvt_pk_bf16_f32 v{TMP+j}, v{J+2*j}, v{J+2*j+1}")
        a(f"s_lshl_b32 s{sT0}, s{sT3}, 10")
        a(f"s_add_u32 s{sT0}, s{sT0}, s{sT2}")
        a(f"buffer_store_dwordx4 v[{TMP}:{TMP+3}], v{vL16}, s[{SWS}:{SWS+3}], s{sT0} offen")
        a(f"s_lshl_b32 s{sT0}, s{sT3}, 3")
        a(f"s_add_u32 s{sT0}, s{sT0}, s{sT2}")
        a(f"s_add_u32 s{sT0}, s{sT0}, 2048")
        a(f"v_mov_b32 v{TMP+8}, 0")
        a(f"v_mov_b32 v{TMP+9}, 0")
        for j in range(4): a(f"v_dot2c_f32_bf16 v{TMP+8}, v{TMP+j}, v{TMP+j}")
        a(f"s_mov_b32 exec_hi, 0")
        a(f"buffer_store_dwordx2 v[{TMP+4}:{TMP+5}], v{vL16}, s[{SWS}:{SWS+3}], s{sT0} offen")
        for j in range(4,6): a(f"v_dot2c_f32_bf16 v{TMP+9}, v{TMP+j}, v{TMP+j}")
        a(f"s_mov_b64 exec, -1")
        a(f"v_add_f32 v{TMP+8}, v{TMP+8}, v{TMP+9}")
        a(f"v_mov_b32 v{TMP+9}, v{TMP+8}")
        a(f"v_permlane32_swap_b32 v{TMP+8}, v{TMP+9}")
        a(f"v_add_f32 v{TMP+8}, v{TMP+8}, v{TMP+9}")
        for sh in (1,2,4,8):
            a(f"v_max_f32_dpp v{TMP+8}, v{TMP+8}, v{TMP+8} row_shr:{sh} row_mask:0xf bank_mask:0xf")
        a(f"v_readlane_b32 s{sT0}, v{TMP+8}, 15")
        a(f"v_readlane_b32 s{sT1}, v{TMP+8}, 31")
        a(f"s_max_u32 s{sT0}, s{sT0}, s{sT1}")
        a(f"v_mov_b32 v{TMP+8}, s{sT0}")
        a(f"s_lshl_b32 s{sT1}, s{sP}, 2")
        a(f"s_add_u32 s{sT1}, s{sT1}, {WS_KN}")
        a(f"v_mov_b32 v{TMP+9}, 0")
        a(f"s_mov_b64 exec, 1")
        a(f"buffer_store_dword v{TMP+8}, v{TMP+9}, s[{SWS}:{SWS+3}], s{sT1} offen")
        a(f"s_mov_b64 exec, -1")
    def v_epi():
        J = JACC
        kv_base()
        for j in range(8): a(f"v_cvt_pk_bf16_f32 v{TMP+j}, v{J+2*j}, v{J+2*j+1}")
        a(f"s_mov_b32 exec_lo, {1<<20}")
        a(f"s_mov_b32 exec_hi, {1<<20}")
        for j in range(8): a(f"v_mov_b32 v{TMP+j}, 0x3f803f80")
        a(f"s_mov_b32 exec_lo, 0")
        a(f"s_mov_b32 exec_hi, {1<<21}")
        for j in range(8): a(f"v_mov_b32 v{TMP+j}, 0")
        a(f"s_mov_b32 exec_lo, {(1<<21)-1}")
        a(f"s_mov_b32 exec_hi, {(1<<22)-1}")
        a(f"v_lshrrev_b32 v{TMP+8}, 5, v{L}")
        a(f"v_mul_u32_u24 v{TMP+8}, 336, v{TMP+8}")
        a(f"v_and_b32 v{TMP+9}, 31, v{L}")
        a(f"v_lshl_add_u32 v{TMP+8}, v{TMP+9}, 4, v{TMP+8}")
        a(f"s_mul_i32 s{sT0}, s{sT3}, 1376")
        a(f"s_add_u32 s{sT0}, s{sT0}, s{sT2}")
        a(f"s_add_u32 s{sT0}, s{sT0}, 2560")
        a(f"buffer_store_dwordx4 v[{TMP}:{TMP+3}], v{TMP+8}, s[{SWS}:{SWS+3}], s{sT0} offen")
        a(f"buffer_store_dwordx4 v[{TMP+4}:{TMP+7}], v{TMP+8}, s[{SWS}:{SWS+3}], s{sT0} offen offset:688")
        a(f"s_mov_b64 exec, -1")
    def g_epi():
        J = JACC
        a(f"v_mul_f32 v{TMP}, {f2u(-math.log2(math.e)):#x}, v{J}")
        a(f"v_exp_f32 v{TMP}, v{TMP}")
        a(f"v_add_f32 v{TMP}, 1.0, v{TMP}")
        a(f"v_rcp_f32 v{TMP}, v{TMP}")
        a(f"v_lshlrev_b32 v{TMP+1}, 2, v{L}")
        a(f"s_lshl_b32 s{sT0}, s{sP}, 7")
        a(f"s_add_u32 s{sT0}, s{sT0}, {WS_G}")
        a(f"s_mov_b32 exec_hi, 0")
        a(f"buffer_store_dword v{TMP}, v{TMP+1}, s[{SWS}:{SWS+3}], s{sT0} offen")
        a(f"s_mov_b64 exec, -1")

    for job, epi in (('K0', k_epi), ('K1', k_epi), ('V0', v_epi), ('V1', v_epi), (None, None)):
        if job != 'K0': a.label(f"{name}_q{job or 'N'}")
        mainloop(vq0.copy(), job, True)
        if epi: epi()
        a(f"s_branch {name}_qepi")
    a.label(f"{name}_qg")
    srd(a, SK, 78, D*2)
    vq1 = VMQ()
    a(f"s_mov_b32 m0, {L_S}")
    a(f"s_mov_b32 s{sT0}, 0")
    a(f"buffer_load_dwordx4 v{vL16}, s[{SK}:{SK+3}], s{sT0} offen lds"); vq1.issue(('c',0))
    a(f"s_mov_b32 m0, {L_S+1024}")
    a(f"s_mov_b32 s{sT0}, 1024")
    a(f"buffer_load_dwordx4 v{vL16}, s[{SK}:{SK+3}], s{sT0} offen lds"); vq1.issue(('c',0))
    dma_chunk(vq1, 0, False)
    a("s_barrier")
    dma_chunk(vq1, 1, False)
    touch_setup(1280)
    touch0(vq1)
    qaddr()
    a(f"v_lshrrev_b32 v{vKA}, 5, v{L}")
    a(f"v_lshlrev_b32 v{vKA}, 4, v{vKA}")
    a(f"v_add_u32 v{vKA}, {L_S}, v{vKA}")
    a(f"s_lshl_b32 s{sP}, s{sRB}, 3")
    a(f"s_add_u32 s{sP}, s{sP}, s{sW}")
    a(f"s_bitcmp1_b32 s{sW}, 0")
    a(f"s_cbranch_scc1 {name}_qG1")
    mainloop(vq1.copy(), 'G0', False); g_epi()
    a(f"s_branch {name}_qepi")
    a.label(f"{name}_qG1")
    mainloop(vq1.copy(), 'G1', False); g_epi()
    a.label(f"{name}_qepi")
    a("s_nop 3")
    a(f"s_lshl_b32 s{sT2}, s{sRB}, 3")
    a(f"s_and_b32 s{sT1}, s{sW}, 6")
    a(f"s_add_u32 s{sT2}, s{sT2}, s{sT1}")
    a(f"s_mul_i32 s{sT2}, s{sT2}, {32*1280}")
    a(f"s_add_u32 s{sT2}, s{sT2}, {WS_Q}")
    a(f"s_add_u32 s{sT3}, s{sT2}, {32*1280}")
    for p in range(2):
        for aa in range(4):
            for t in range(2):
                A = ACC(p,t) + 4*aa
                O = 24 + 2*((p*8+aa*2+t) % 16)
                a(f"v_pk_mul_f32 {P(A)}, {P(A)}, {P(vQS)}")
                a(f"v_pk_mul_f32 {P(A+2)}, {P(A+2)}, {P(vQS)}")
                a(f"v_cvt_pk_bf16_f32 v{O}, v{A}, v{A+1}")
                a(f"v_cvt_pk_bf16_f32 v{O+1}, v{A+2}, v{A+3}")
                a(f"buffer_store_dwordx2 v[{O}:{O+1}], v{QAD+4*p+aa}, s[{SWS}:{SWS+3}], s{sT2 if t == 0 else sT3} offen")
    stamp_out()
    a.label(f"{name}_end")
    a("s_endpgm")
    return dict(name=name, vgpr=176, lds=K1_LDS, block=512, grid=256)
```

```python
from asmlib import *
from layout import *
from k1 import srd, VMQ
STAMP = False
L_FLAG = 159744
K2_LDS = 163840
THR = 2.0**-24
L_OST = 110592
L_XCH = 86016

def gen_k2(a, name='k2_kernel', sched=0, gwork=True, prio=0, unroll=2, g2depth=6):
    vLane = 1; vL16 = 2; vKA = 3; vK2A = 8; vVA = 5; vG = 6; vPos = 4; vH = 7
    vT = list(range(9, 16)); vFl = 92; vPr = 93
    Q1 = lambda t: 16 + 4*t
    Q2 = lambda t: 32 + 6*t
    K1B = 56; K2B = 60; VB = 68
    PB = lambda b: 76 + 8*b
    SB = lambda b: 96 + 16*b
    OB = lambda t: 128 + 16*t
    K1S = 192; VS = 196
    sW = 3; sP = 4; sHd = 5; SWS = 8; sT0 = 12; sT1 = 13; sT2 = 14; sT3 = 15; sCnt = 16; sFlag = 17; sOff = 18; sHf = 23
    vST = 94
    def stamp(i):
        if not STAMP: return
        a("s_memtime s[92:93]"); a("s_waitcnt lgkmcnt(0)"); a(f"v_writelane_b32 v{vST}, s92, {i}")
    def stamp_out():
        if not STAMP: return
        stamp(63)
        a("s_memrealtime s[92:93]"); a("s_waitcnt lgkmcnt(0)"); a(f"v_writelane_b32 v{vST}, s92, 61")
        a("s_lshl_b32 s92, s2, 3"); a(f"s_add_u32 s92, s92, s{sW}"); a("s_lshl_b32 s92, s92, 8")
        a(f"s_add_u32 s92, s92, {WS_END}")
        a(f"v_lshlrev_b32 v95, 2, v{vLane}")
        a(f"buffer_store_dword v{vST}, v95, s[{SWS}:{SWS+3}], s92 offen")
    def R(b, n): return f"v[{b}:{b+n-1}]"
    sBud = 28
    def bounded(lbl):
        a(f"s_sub_u32 s{sBud}, s{sBud}, 1")
        a(f"s_cbranch_scc0 {lbl}")
    def spin(lbl, off, need, sleep=0):
        a.label(lbl)
        a(f"ds_read_b32 v{vT[0]}, v{vFl} offset:{off}")
        a("s_waitcnt lgkmcnt(0)")
        a(f"v_readfirstlane_b32 s{sT0}, v{vT[0]}")
        a(f"s_cmp_ge_u32 s{sT0}, {need}")
        a(f"s_cbranch_scc1 {lbl}_d")
        bounded(lbl)
        a.label(lbl + "_d")
    a(f".p2align 8\n.globl {name}\n.type {name},@function")
    a.label(name)
    a("s_cmp_ge_u32 s2, 256")
    a(f"s_cbranch_scc1 {name}_end")
    a("s_load_dwordx2 s[6:7], s[0:1], 96")
    a("s_load_dwordx2 s[30:31], s[0:1], 80")
    if STAMP:
        a("s_memtime s[94:95]"); a("s_memrealtime s[96:97]")
    a(f"v_lshrrev_b32 v{vT[0]}, 6, v0")
    a(f"v_and_b32 v{vLane}, 63, v0")
    a(f"v_readfirstlane_b32 s{sW}, v{vT[0]}")
    a(f"v_lshlrev_b32 v{vL16}, 4, v{vLane}")
    a(f"s_and_b32 s{sP}, s2, 7")
    a(f"s_lshr_b32 s{sT0}, s2, 5")
    a(f"s_lshl_b32 s{sT0}, s{sT0}, 3")
    a(f"s_add_u32 s{sP}, s{sP}, s{sT0}")
    a(f"v_and_b32 v{vPos}, 31, v{vLane}")
    a(f"v_mov_b32 v{vFl}, {L_FLAG}")
    a(f"s_mov_b32 s{sBud}, 0x40000")
    a(f"s_cmp_ge_u32 s{sW}, 4")
    a(f"s_cbranch_scc1 {name}_ld")
    a(f"s_bfe_u32 s{sHd}, s2, 0x20003")
    a(f"s_lshl_b32 s{sHd}, s{sHd}, 3")
    a(f"s_and_b32 s{sT0}, s{sW}, 1")
    a(f"s_lshl_b32 s{sT0}, s{sT0}, 2")
    a(f"s_add_u32 s{sHd}, s{sHd}, s{sT0}")
    a(f"s_lshr_b32 s{sHf}, s{sW}, 1")
    a(f"v_lshrrev_b32 v{vH}, 5, v{vLane}")
    a(f"v_lshlrev_b32 v{vK2A}, 4, v{vPos}")
    a(f"v_add_u32 v{vK2A}, 2048, v{vK2A}")
    a(f"v_mul_u32_u24 v{vVA}, 336, v{vH}")
    a(f"v_lshl_add_u32 v{vVA}, v{vPos}, 4, v{vVA}")
    a(f"v_add_u32 v{vVA}, 2560, v{vVA}")
    a(f"v_lshlrev_b32 v{vT[0]}, 3, v{vPos}")
    a(f"v_lshlrev_b32 v{vT[1]}, 2, v{vLane}")
    a(f"v_lshlrev_b32 v{vT[2]}, 2, v{vPos}")
    for t in range(4):
        a(f"v_mov_b32 v{Q2(t)+2}, 0"); a(f"v_mov_b32 v{Q2(t)+3}, 0")
    a(f"s_mov_b32 exec_lo, 0xffe00000")
    a(f"s_mov_b32 exec_hi, 0xffe00000")
    a(f"v_mov_b32 v{vVA}, {2560+672}")
    a(f"s_mov_b32 exec_lo, 0")
    a(f"s_mov_b32 exec_hi, -1")
    a(f"v_mov_b32 v{vK2A}, {2560+672}")
    a(f"s_mov_b64 exec, -1")
    a(f"s_lshl_b32 s{sT0}, s{sP}, 5")
    a(f"s_add_u32 s{sT0}, s{sT0}, s{sHd}")
    a(f"s_mul_i32 s{sT0}, s{sT0}, 1280")
    a(f"s_add_u32 s{sT0}, s{sT0}, {WS_Q}")
    a(f"s_add_u32 s{sT3}, s{sT0}, 2560")
    a(f"s_mul_i32 s{sT2}, s{sHf}, {DUO}")
    a(f"s_add_u32 s{sT2}, s{sT2}, {WS_KV}")
    a(f"s_mov_b32 s{sT1}, {WS_KN}")
    a("s_waitcnt lgkmcnt(0)")
    srd(a, SWS, 6, WS_END + (1<<20))
    vq = VMQ()
    a(f"buffer_load_dword v{vT[3]}, v{vT[1]}, s[{SWS}:{SWS+3}], s{sT1} offen"); vq.issue('q')
    for t in range(4):
        a(f"buffer_load_dwordx4 {R(Q1(t),4)}, v{vL16}, s[{SWS}:{SWS+3}], s{sT0 if t < 2 else sT3} offen offset:{1280*(t&1)}"); vq.issue('q')
    a("s_mov_b32 exec_hi, 0")
    for t in range(4):
        a(f"buffer_load_dwordx2 {R(Q2(t)+2,2)}, v{vT[0]}, s[{SWS}:{SWS+3}], s{sT0 if t < 2 else sT3} offen offset:{1280*(t&1)+1024}"); vq.issue('q')
    a("s_mov_b32 exec_hi, -1")
    a(f"buffer_load_dwordx4 {R(K1B,4)}, v{vL16}, s[{SWS}:{SWS+3}], s{sT2} offen"); vq.issue('k0')
    a(f"buffer_load_dwordx4 {R(K2B+2,4)}, v{vK2A}, s[{SWS}:{SWS+3}], s{sT2} offen"); vq.issue('k0')
    for m in range(2):
        a(f"buffer_load_dwordx4 {R(VB+4*m,4)}, v{vVA}, s[{SWS}:{SWS+3}], s{sT2} offen offset:{688*m}"); vq.issue('v0')
    a(f"buffer_load_dwordx4 {R(K1S,4)}, v{vL16}, s[{SWS}:{SWS+3}], s{sT2} offen offset:1024"); vq.issue('k1')
    for m in range(2):
        a(f"buffer_load_dwordx4 {R(VS+4*m,4)}, v{vVA}, s[{SWS}:{SWS+3}], s{sT2} offen offset:{1376+688*m}"); vq.issue('v1')
    a(f"s_lshl_b32 s{sT1}, s{sP}, 7")
    a(f"s_add_u32 s{sT1}, s{sT1}, {WS_G}")
    a(f"buffer_load_dword v{vG}, v{vT[2]}, s[{SWS}:{SWS+3}], s{sT1} offen"); vq.issue('g')
    if STAMP:
        a(f"v_writelane_b32 v{vST}, s94, 0"); a(f"v_writelane_b32 v{vST}, s96, 62")
    for t in range(4):
        a(f"v_mov_b32 v{Q2(t)+1}, 0"); a(f"v_mov_b32 v{Q2(t)+5}, 0")
        a(f"v_mov_b32 v{Q2(t)}, 0"); a(f"v_mov_b32 v{Q2(t)+4}, 0")
    for r in (0, 1, 6, 7): a(f"v_mov_b32 v{K2B+r}, 0")
    a("s_mov_b32 exec_hi, 0")
    a(f"v_mov_b32 v{K2B}, 0x3f803f80")
    a(f"v_mov_b32 v{K2B+6}, 0x3f803f80")
    a("s_mov_b32 exec_hi, -1")
    a(f"s_mul_i32 s{sT2}, s{sHf}, {DUO}")
    a(f"v_add_u32 v{vKA}, s{sT2}, v{vL16}")
    a(f"v_add_u32 v{vK2A}, s{sT2}, v{vK2A}")
    a(f"v_add_u32 v{vVA}, s{sT2}, v{vVA}")
    a(f"s_lshl_b32 s{sT1}, s{sW}, 8")
    a(f"s_add_u32 s{sT1}, s{sT1}, {L_FLAG + 256}")
    a(f"v_lshl_add_u32 v{vPr}, v{vLane}, 2, s{sT1}")
    if prio: a(f"s_setprio {prio}")
    a(f"s_mov_b32 s{sFlag}, 0")
    N = [vT[0], vT[1], vT[4], vT[5]]; N2 = [vT[2], vT[6], 94 if not STAMP else 95, 95 if not STAMP else 95]
    N2 = [204, 205, 206, 207]
    for t in range(4): a(f"v_mov_b32 v{N[t]}, 0")
    stamp(1)
    vq.wait(a, 'q')
    stamp(2)
    kn = vT[3]
    for sh in (1,2,4,8):
        a(f"v_max_f32_dpp v{kn}, v{kn}, v{kn} row_shr:{sh} row_mask:0xf bank_mask:0xf")
        r = (1,2,4,8).index(sh)
        for t in range(4): a(f"v_dot2c_f32_bf16 v{N[t]}, v{Q1(t)+r}, v{Q1(t)+r}")
    for r in (2,3):
        for t in range(4): a(f"v_dot2c_f32_bf16 v{N[t]}, v{Q2(t)+r}, v{Q2(t)+r}")
    a(f"v_readlane_b32 s{sT0}, v{kn}, 15")
    a(f"v_readlane_b32 s{sT1}, v{kn}, 31")
    a(f"v_readlane_b32 s{sT2}, v{kn}, 47")
    a(f"v_readlane_b32 s{sT3}, v{kn}, 63")
    for t in range(4): a(f"v_mov_b32 v{N2[t]}, v{N[t]}")
    a(f"s_max_u32 s{sT0}, s{sT0}, s{sT1}")
    a(f"s_max_u32 s{sT2}, s{sT2}, s{sT3}")
    a(f"s_max_u32 s{sT0}, s{sT0}, s{sT2}")
    for t in range(4): a(f"v_permlane32_swap_b32 v{N2[t]}, v{N[t]}")
    for t in range(4): a(f"v_add_f32 v{N[t]}, v{N[t]}, v{N2[t]}")
    for t in range(4): a(f"v_mul_f32 v{N[t]}, s{sT0}, v{N[t]}")
    for t in range(4): a(f"v_sqrt_f32 v{N[t]}, v{N[t]}")
    a("s_mov_b32 exec_hi, 0")
    for t in range(4): a(f"v_cvt_pk_bf16_f32 v{Q2(t)}, -v{N[t]}, 0")
    for t in range(4): a(f"v_mov_b32 v{Q2(t)+4}, v{Q2(t)}")
    a("s_mov_b32 exec_hi, -1")

    def k1reg(j): return K1S if j == 1 else K1B
    def vreg(j): return VS if j == 1 else VB
    def qk(n):
        j, t = n >> 2, n & 3
        S = SB(n & 1)
        return [f"v_mfma_f32_32x32x16_bf16 {R(S,16)}, {R(k1reg(j),4)}, {R(Q1(t),4)}, 0",
                f"v_mfma_f32_32x32x16_bf16 {R(S,16)}, {R(K2B + 4*(j&1),4)}, {R(Q2(t) + 2*(j&1),4)}, {R(S,16)}"]
    def pv(n):
        j, t = n >> 2, n & 3
        o = []
        for m in range(2):
            C = R(OB(t),16) if (j > 0 or m > 0) else "0"
            o.append(f"v_mfma_f32_32x32x16_bf16 {R(OB(t),16)}, {R(vreg(j)+4*m,4)}, {R(PB(n&1)+4*m,4)}, {C}")
        return o
    def off(jj, D0): return ((jj >> 1) - D0) * 2 * DUO
    def step(n, D0, pre=None, mid=None):
        S = SB(n & 1); P = PB(n & 1)
        Q = qk(n+1) if n + 1 < 128 else [None, None]
        V = pv(n-1) if n >= 1 else [None, None]
        rK1 = rK2 = rV1 = rV2 = None
        if n % 4 == 2:
            jj = (n >> 2) + 1
            if 2 <= jj < 32:
                rK1 = f"ds_read_b128 {R(K1B,4)}, v{vKA} offset:{off(jj, D0) + 1024*(jj&1)}"
                if (jj & 1) == 0: rK2 = f"ds_read_b128 {R(K2B+2,4)}, v{vK2A} offset:{off(jj, D0)}"
        if n % 4 == 0:
            jj = n >> 2
            if 2 <= jj < 32:
                rV1 = f"ds_read_b128 {R(VB,4)}, v{vVA} offset:{off(jj, D0) + 1376*(jj&1)}"
                rV2 = f"ds_read_b128 {R(VB+4,4)}, v{vVA} offset:{off(jj, D0) + 1376*(jj&1) + 688}"
        wK = "s_waitcnt lgkmcnt(0)" if (n % 4 == 3 and n >= 7 and n < 127) else None
        wV = "s_waitcnt lgkmcnt(0)" if (n % 4 == 1 and n >= 9) else None
        e = lambda i: f"v_exp_f32 v{S+i}, v{S+i}"
        c = lambda i: f"v_cvt_pk_bf16_f32 v{P+i}, v{S+2*i}, v{S+2*i+1}"
        if pre: pre()
        if 0 <= n < 128:
            if sched == 0:
                seq = [wK, Q[0], rK1, e(0), e(1), e(2), e(3), Q[1], rK2, e(4), e(5), c(0), c(1), e(6), e(7), wV, 'mid', V[0], rV1, c(2), e(8), c(3), e(9), e(10), e(11), V[1], rV2, c(4), e(12), c(5), e(13), e(14), e(15), c(6), c(7)]
            elif sched == 3:
                seq = [wK, Q[0], e(0), e(1), e(2), Q[1], e(3), e(4), e(5), wV, 'mid', V[0], e(6), e(7), e(8), V[1], rK1, e(9), c(0), rK2, e(10), c(1), rV1, e(11), c(2), rV2, e(12), c(3), e(13), c(4), e(14), e(15), c(5), c(6), c(7)]
            elif sched == 4:
                seq = [wK, Q[0], e(0), e(1), e(2), e(3), Q[1], rK1, e(4), e(5), c(0), rK2, e(6), c(1), e(7), wV, 'mid', V[0], e(8), c(2), e(9), c(3), e(10), e(11), V[1], rV1, e(12), c(4), e(13), rV2, e(14), c(5), e(15), c(6), c(7)]
        else:
            seq = [Q[0], Q[1], 'mid', V[0], V[1]]
        for x in seq:
            if x is None: continue
            if x == 'mid':
                if mid: mid()
            else: a(x)
    stamp(3)
    vq.wait(a, 'k0')
    step(-1, 1)
    for n in range(0, 9):
        pre = None; mid = None
        if n == 1: mid = lambda: vq.wait(a, 'v0')
        if n == 3: pre = lambda: vq.wait(a, 'k1')
        if n == 5: mid = lambda: vq.wait(a, 'v1')
        if n == 6:
            def pre():
                stamp(4); a("s_barrier"); stamp(5)
        step(n, 1, pre, mid)
    stamp(6)
    spin(f"{name}_w2", 0, 4)
    stamp(7)
    U = 8*unroll
    NIT = 112 // U
    a(f"s_mov_b32 s{sCnt}, {NIT}")
    a.label(f"{name}_loop")
    for n in range(9, 9+U): step(n, 1)
    a(f"v_add_u32 v{vKA}, {unroll*2*DUO}, v{vKA}")
    a(f"ds_write_b32 v{vPr}, v{vKA}")
    a(f"v_add_u32 v{vK2A}, {unroll*2*DUO}, v{vK2A}")
    a(f"v_add_u32 v{vVA}, {unroll*2*DUO}, v{vVA}")
    a(f"s_cmp_eq_u32 s{sCnt}, {NIT - (2 // unroll - 1)}")
    a(f"s_cbranch_scc1 {name}_w3")
    a.label(f"{name}_w3r")
    a(f"s_sub_u32 s{sCnt}, s{sCnt}, 1")
    a(f"s_cmp_lg_u32 s{sCnt}, 0")
    a(f"s_cbranch_scc1 {name}_loop")
    for n in range(121, 129): step(n, 15)
    stamp(8)
    a.label(f"{name}_fin")
    a(f"s_mul_i32 s{sT0}, s{sW}, 6144")
    a(f"s_add_u32 s{sT0}, s{sT0}, {L_XCH}")
    a(f"v_add_u32 v{vT[1]}, s{sT0}, v{vL16}")
    a(f"s_xor_b32 s{sT1}, s{sW}, 2")
    a(f"s_mul_i32 s{sT0}, s{sT1}, 6144")
    a(f"s_add_u32 s{sT0}, s{sT0}, {L_XCH}")
    a(f"v_add_u32 v{vT[2]}, s{sT0}, v{vL16}")
    a(f"v_and_b32 v{vT[3]}, 3, v{vLane}")
    a(f"v_lshlrev_b32 v{vT[3]}, 8, v{vT[3]}")
    a(f"v_add_u32 v{vT[3]}, {L_FLAG+256}, v{vT[3]}")
    a(f"v_mov_b32 v{vT[5]}, {12*2*DUO}")
    a.label(f"{name}_x0")
    a(f"ds_read_b32 v{vT[4]}, v{vT[3]}")
    a("s_waitcnt lgkmcnt(0)")
    a(f"v_cmp_lt_u32 vcc, v{vT[4]}, v{vT[5]}")
    a("s_nop 4")
    a(f"s_cbranch_vccz {name}_x0d")
    bounded(f"{name}_x0")
    a.label(f"{name}_x0d")
    a(f"s_lshl_b32 s{sT0}, s{sW}, 2")
    a(f"v_add_u32 v{vT[3]}, s{sT0}, v{vFl}")
    a(f"s_lshl_b32 s{sT0}, s{sT1}, 2")
    a(f"v_add_u32 v{vT[4]}, s{sT0}, v{vFl}")
    a(f"v_mov_b32 v{vT[5]}, 1")
    a(f"s_cmp_eq_u32 s{sHf}, 0")
    a(f"s_cbranch_scc1 {name}_x1")
    for t in range(2):
        for g in range(3): a(f"ds_write_b128 v{vT[1]}, {R(OB(t)+4*g,4)} offset:{(3*t+g)*1024}")
    for t in range(2):
        for r in range(0, 12, 2): a(f"v_pk_mul_f32 {R(OB(t)+r,2)}, {R(OB(t+2)+r,2)}, 1.0 op_sel_hi:[1,0]")
    a(f"s_branch {name}_x2")
    a.label(f"{name}_x1")
    for t in range(2):
        for g in range(3): a(f"ds_write_b128 v{vT[1]}, {R(OB(t+2)+4*g,4)} offset:{(3*t+g)*1024}")
    a.label(f"{name}_x2")
    a("s_waitcnt lgkmcnt(0)")
    a(f"ds_write_b32 v{vT[3]}, v{vT[5]} offset:16")
    a.label(f"{name}_x3")
    a(f"ds_read_b32 v{vT[0]}, v{vT[4]} offset:16")
    a("s_waitcnt lgkmcnt(0)")
    a(f"v_readfirstlane_b32 s{sT0}, v{vT[0]}")
    a(f"s_cmp_lg_u32 s{sT0}, 0")
    a(f"s_cbranch_scc1 {name}_x3d")
    bounded(f"{name}_x3")
    a.label(f"{name}_x3d")
    for t in range(2):
        for g in range(3): a(f"ds_read_b128 {R(OB(t+2)+4*g,4)}, v{vT[2]} offset:{(3*t+g)*1024}")
    a("s_waitcnt vmcnt(0) lgkmcnt(0)")
    for t in range(2):
        for r in range(0, 12, 2): a(f"v_pk_add_f32 {R(OB(t)+r,2)}, {R(OB(t)+r,2)}, {R(OB(t+2)+r,2)}")
    stamp(9)
    a.label(f"{name}_fin2")
    Lr = [vT[0], vT[1]]; X = [vT[2], vT[3]]
    for t in range(2):
        a(f"v_mov_b32 v{Lr[t]}, v{OB(t)+8}")
        a(f"v_mov_b32 v{X[t]}, v{OB(t)+8}")
    for t in range(2):
        a(f"v_permlane32_swap_b32 v{X[t]}, v{Lr[t]}")
    a(f"v_min_f32 v{X[0]}, v{Lr[0]}, v{Lr[1]}")
    a(f"v_mov_b32 v{X[1]}, {f2u(THR):#x}")
    a(f"v_cmp_ngt_f32 vcc, v{X[0]}, v{X[1]}")
    a(f"s_cmp_lg_u32 s{sFlag}, 0")
    a(f"s_cbranch_scc1 {name}_st")
    a(f"s_cbranch_vccnz {name}_slow")
    a.label(f"{name}_st")
    for t in range(2): a(f"v_rcp_f32 v{Lr[t]}, v{Lr[t]}")
    for t in range(2): a(f"v_mul_f32 v{Lr[t]}, v{Lr[t]}, v{vG}")
    a(f"s_bfe_u32 s{sT0}, s2, 0x20003")
    a(f"s_lshl_b32 s{sT0}, s{sT0}, 1")
    a(f"s_and_b32 s{sT1}, s{sW}, 1")
    a(f"s_add_u32 s{sT0}, s{sT0}, s{sT1}")
    a(f"s_mul_i32 s{sT0}, s{sT0}, 5")
    a(f"s_mul_i32 s{sT1}, s{sP}, 40")
    a(f"s_add_u32 s{sT0}, s{sT0}, s{sT1}")
    a(f"s_lshl_b32 s{sT0}, s{sT0}, 10")
    a(f"s_add_u32 s{sT0}, s{sT0}, {WS_O}")
    a(f"s_lshl_b32 s{sT1}, s{sHf}, 9")
    a(f"s_add_u32 s{sT2}, s{sT0}, s{sT1}")
    a(f"s_add_u32 s{sT2}, s{sT2}, 4096")
    a(f"s_lshl_b32 s{sT1}, s{sHf}, 11")
    a(f"s_add_u32 s{sT0}, s{sT0}, s{sT1}")
    for t in range(2):
        O = OB(t)
        for r in range(8): a(f"v_mul_f32 v{O+r}, v{O+r}, v{Lr[t]}")
        for r in range(4): a(f"v_cvt_pk_bf16_f32 v{PB(0)+4*t+r}, v{O+2*r}, v{O+2*r+1}")
        a(f"buffer_store_dwordx4 {R(PB(0)+4*t,4)}, v{vL16}, s[{SWS}:{SWS+3}], s{sT0} offen offset:{1024*t} sc1")
    for t in range(2):
        O = OB(t)
        for r in range(8, 12): a(f"v_mul_f32 v{O+r}, v{O+r}, v{Lr[t]}")
        for r in range(2): a(f"v_cvt_pk_bf16_f32 v{PB(1)+2*t+r}, v{O+8+2*r}, v{O+9+2*r}")
    a("s_mov_b32 exec_hi, 0")
    a(f"buffer_store_dwordx4 {R(PB(1),4)}, v{vL16}, s[{SWS}:{SWS+3}], s{sT2} offen sc1")
    a(f"s_lshl_b32 s{sT0}, s2, 7")
    a(f"s_lshl_b32 s{sT1}, s{sW}, 2")
    a(f"s_add_u32 s{sT0}, s{sT0}, s{sT1}")
    a(f"s_add_u32 s{sT0}, s{sT0}, {WS_FLAG}")
    a(f"v_mov_b32 v{vT[1]}, 0")
    a(f"v_mov_b32 v{vT[3]}, 1")
    a("s_mov_b64 exec, 1")
    stamp(10)
    a("s_waitcnt vmcnt(0)")
    a(f"buffer_store_dword v{vT[3]}, v{vT[1]}, s[{SWS}:{SWS+3}], s{sT0} offen sc1")
    a("s_mov_b64 exec, -1")
    a.label(f"{name}_adone")
    stamp_out()
    a("s_endpgm")
    a.label(f"{name}_w3")
    spin(f"{name}_w3s", 8, 4)
    a(f"s_branch {name}_w3r")
    a.label(f"{name}_slow")
    a(f"s_mov_b32 s{sFlag}, 1")
    a(f"s_cmp_eq_u32 s{sHf}, 0")
    a(f"s_cbranch_scc1 {name}_sl0")
    for t in range(2):
        for r in range(4): a(f"v_mov_b32 v{Q1(t)+r}, v{Q1(t+2)+r}")
        for r in range(6): a(f"v_mov_b32 v{Q2(t)+r}, v{Q2(t+2)+r}")
    a.label(f"{name}_sl0")
    a(f"s_mul_i32 s{sT2}, s{sHf}, {DUO}")
    a(f"s_add_u32 s{sT2}, s{sT2}, {28*DUO}")
    a(f"v_subrev_u32 v{vK2A}, s{sT2}, v{vK2A}")
    a(f"v_subrev_u32 v{vVA}, s{sT2}, v{vVA}")
    M = [vT[4], vT[5]]
    for t in range(2):
        a(f"v_mov_b32 v{M[t]}, 0xff7fffff")
        a(f"v_mov_b32 v{Q2(t)}, 0"); a(f"v_mov_b32 v{Q2(t)+4}, 0")
    def slow_loads(withv):
        a(f"buffer_load_dwordx4 {R(K1B,4)}, v{vL16}, s[{SWS}:{SWS+3}], s{sOff} offen")
        a(f"buffer_load_dwordx4 {R(K1S,4)}, v{vL16}, s[{SWS}:{SWS+3}], s{sOff} offen offset:1024")
        a(f"buffer_load_dwordx4 {R(K2B+2,4)}, v{vK2A}, s[{SWS}:{SWS+3}], s{sOff} offen")
        if withv:
            for jj in range(2):
                for m in range(2):
                    a(f"buffer_load_dwordx4 {R(vreg(jj)+4*m,4)}, v{vVA}, s[{SWS}:{SWS+3}], s{sOff} offen offset:{1376*jj+688*m}")
        a("s_waitcnt vmcnt(0)")
    def slow_qk(jj):
        for t in range(2):
            a(f"v_mfma_f32_32x32x16_bf16 {R(SB(t),16)}, {R(k1reg(jj),4)}, {R(Q1(t),4)}, 0")
            a(f"v_mfma_f32_32x32x16_bf16 {R(SB(t),16)}, {R(K2B+4*jj,4)}, {R(Q2(t)+2*jj,4)}, {R(SB(t),16)}")
    a(f"s_mov_b32 s{sOff}, {WS_KV}")
    a(f"s_mov_b32 s{sCnt}, 32")
    a.label(f"{name}_sl1")
    slow_loads(False)
    for jj in range(2):
        slow_qk(jj)
        for t in range(2):
            for r in range(0, 16, 2): a(f"v_max3_f32 v{M[t]}, v{SB(t)+r}, v{SB(t)+r+1}, v{M[t]}")
    a(f"s_add_u32 s{sOff}, s{sOff}, {DUO}")
    a(f"s_sub_u32 s{sCnt}, s{sCnt}, 1")
    a(f"s_cmp_lg_u32 s{sCnt}, 0")
    a(f"s_cbranch_scc1 {name}_sl1")
    for t in range(2): a(f"v_mov_b32 v{vT[t]}, v{M[t]}")
    for t in range(2): a(f"v_permlane32_swap_b32 v{vT[t]}, v{M[t]}")
    for t in range(2): a(f"v_max_f32 v{M[t]}, v{M[t]}, v{vT[t]}")
    for t in range(2):
        a(f"v_cvt_pk_bf16_f32 v{vT[t]}, -v{M[t]}, 0")
        a(f"v_lshlrev_b32 v{vT[t]}, 16, v{vT[t]}")
        a(f"v_sub_f32 v{vT[2+t]}, -v{M[t]}, v{vT[t]}")
    a("s_mov_b32 exec_hi, 0")
    for t in range(2):
        a(f"v_cvt_pk_bf16_f32 v{Q2(t)}, v{vT[t]}, v{vT[2+t]}")
        a(f"v_mov_b32 v{Q2(t)+4}, v{Q2(t)}")
    a("s_mov_b32 exec_hi, -1")
    for t in range(2):
        for r in range(16): a(f"v_mov_b32 v{OB(t)+r}, 0")
    a(f"s_mov_b32 s{sOff}, {WS_KV}")
    a(f"s_mov_b32 s{sCnt}, 32")
    a.label(f"{name}_sl2")
    slow_loads(True)
    for jj in range(2):
        slow_qk(jj)
        for t in range(2):
            for r in range(16): a(f"v_exp_f32 v{SB(t)+r}, v{SB(t)+r}")
            for r in range(8): a(f"v_cvt_pk_bf16_f32 v{PB(t)+r}, v{SB(t)+2*r}, v{SB(t)+2*r+1}")
            for m in range(2):
                a(f"v_mfma_f32_32x32x16_bf16 {R(OB(t),16)}, {R(vreg(jj)+4*m,4)}, {R(PB(t)+4*m,4)}, {R(OB(t),16)}")
    a(f"s_add_u32 s{sOff}, s{sOff}, {DUO}")
    a(f"s_sub_u32 s{sCnt}, s{sCnt}, 1")
    a(f"s_cmp_lg_u32 s{sCnt}, 0")
    a(f"s_cbranch_scc1 {name}_sl2")
    a("s_nop 15")
    a(f"s_branch {name}_fin2")
    a.label(f"{name}_ld")
    FB = lambda b: [16, 40, 64, 176, 200, 224][b]
    ACC = lambda i: 96 + 16*i
    sGw = 19; sA = 20; sB = 21; sCG = 22; SKV = 24
    a(f"v_lshl_add_u32 v{vT[1]}, v{vLane}, 4, v{vFl}")
    for r in range(12, 16): a(f"v_mov_b32 v{r}, 0")
    a(f"ds_write_b128 v{vT[1]}, v[12:15]")
    a(f"ds_write_b128 v{vT[1]}, v[12:15] offset:1024")
    a(f"s_sub_u32 s{sGw}, s{sW}, 4")
    a(f"s_bfe_u32 s{sCG}, s2, 0x20003")
    a(f"s_lshr_b32 s{sT3}, s2, 3")
    a(f"s_mul_i32 s{sT3}, s{sT3}, {42*128}")
    a(f"s_add_u32 s{sT3}, s{sT3}, {WS_KV}")
    a(f"v_lshlrev_b32 v{vT[2]}, 7, v{vLane}")
    a("s_waitcnt lgkmcnt(0)")
    SO = 32
    srd(a, SO, 30, S*D*2)
    srd(a, SKV, 6, WS_KV + 32*DUO)
    srd(a, SWS, 6, WS_END + (1<<20))
    if STAMP:
        a(f"v_writelane_b32 v{vST}, s94, 0"); a(f"v_writelane_b32 v{vST}, s96, 62")
    gq = VMQ()
    a(f"buffer_load_dword v{vT[6]}, v{vT[2]}, s[{SKV}:{SKV+3}], s{sT3} offen"); gq.issue('t')
    a(f"s_lshl_b32 s{sT0}, s{sGw}, 10")
    a(f"s_add_u32 s{sT1}, s{sT0}, {WS_KV + 2*DUO}")
    NB = (30*DUO + 4095)//4096
    P1 = 3; P2 = 11
    def kvdma(r):
        a(f"s_add_u32 m0, s{sT0}, {r*4096}")
        a(f"s_add_u32 s{sT2}, s{sT1}, {r*4096}")
        a(f"buffer_load_dwordx4 v{vL16}, s[{SKV}:{SKV+3}], s{sT2} offen lds")
        gq.issue('p1' if r < P1 else ('p2' if r < P2 else 'p3'))
    def signal(offv):
        a(f"v_mov_b32 v{vT[0]}, 1")
        a("s_mov_b64 exec, 1")
        a(f"ds_add_u32 v{vFl}, v{vT[0]} offset:{offv}")
        a("s_mov_b64 exec, -1")
    a("s_sleep 4")
    for r in range(P2): kvdma(r)
    gq.wait(a, 'p1')
    a("s_barrier")
    stamp(1)
    for r in range(P2, P2+8): kvdma(r)
    gq.wait(a, 'p2')
    signal(0)
    for r in range(P2+8, NB): kvdma(r)
    if not gwork:
        gq.wait(a, 'p3')
        signal(8)
        a("s_endpgm")
    else:
        a(f"s_mul_i32 s{sT0}, s{sGw}, 27")
        a(f"s_mul_i32 s{sB}, s{sP}, 108")
        a(f"s_add_u32 s{sB}, s{sB}, s{sT0}")
        a(f"s_lshl_b32 s{sB}, s{sB}, 10")
        a(f"s_add_u32 s{sB}, s{sB}, {WS_H}")
        a(f"s_mul_i32 s{sA}, s{sCG}, 108")
        a(f"s_add_u32 s{sA}, s{sA}, s{sT0}")
        a(f"s_mul_i32 s{sA}, s{sA}, 5120")
        a(f"s_add_u32 s{sA}, s{sA}, {WS_WD}")
        a(f"v_lshlrev_b32 v{vT[1]}, 2, v{vPos}")
        a(f"s_lshl_b32 s{sT1}, s{sP}, 7")
        a(f"s_add_u32 s{sT1}, s{sT1}, {WS_G}")
        a(f"buffer_load_dword v{vG}, v{vT[1]}, s[{SWS}:{SWS+3}], s{sT1} offen"); gq.issue('g')
        def loads(s_):
            b = FB(s_ % g2depth)
            a(f"buffer_load_dwordx4 {R(b,4)}, v{vL16}, s[{SWS}:{SWS+3}], s{sB} offen"); gq.issue(s_)
            for i in range(4):
                a(f"buffer_load_dwordx4 {R(b+4+4*i,4)}, v{vL16}, s[{SWS}:{SWS+3}], s{sA} offen offset:{1024*i}"); gq.issue(s_)
            a(f"s_add_u32 s{sT0}, s{sA}, 4096")
            a(f"buffer_load_dwordx4 {R(b+20,4)}, v{vL16}, s[{SWS}:{SWS+3}], s{sT0} offen"); gq.issue(s_)
            a(f"s_add_u32 s{sB}, s{sB}, 1024")
            a(f"s_add_u32 s{sA}, s{sA}, 5120")
        for s_ in range(g2depth): loads(s_)
        gq.wait(a, 'p3')
        signal(8)
        stamp(2)
        for s_ in range(27):
            gq.wait(a, s_)
            b = FB(s_ % g2depth)
            for i in range(5):
                C = R(ACC(i),16) if s_ > 0 else "0"
                a(f"v_mfma_f32_32x32x16_bf16 {R(ACC(i),16)}, {R(b+4+4*i,4)}, {R(b,4)}, {C}")
            if s_ + g2depth < 27: loads(s_+g2depth)
        stamp(3)
        WR = [16, 36, 56, 76, 176, 196]
        OR = lambda s_: 216 + 4*s_
        a(f"s_mul_i32 s{sT0}, s{sGw}, 10")
        a(f"s_mul_i32 s{sA}, s{sCG}, 40")
        a(f"s_add_u32 s{sA}, s{sA}, s{sT0}")
        a(f"s_mul_i32 s{sA}, s{sA}, 5120")
        a(f"s_add_u32 s{sA}, s{sA}, {WS_WO}")
        a(f"s_mul_i32 s{sB}, s{sP}, 40")
        a(f"s_add_u32 s{sB}, s{sB}, s{sT0}")
        a(f"s_lshl_b32 s{sB}, s{sB}, 10")
        a(f"s_add_u32 s{sB}, s{sB}, {WS_O}")
        def wloads(s_):
            b = WR[s_ % 6]
            for i in range(4):
                a(f"buffer_load_dwordx4 {R(b+4*i,4)}, v{vL16}, s[{SWS}:{SWS+3}], s{sA} offen offset:{1024*i}"); gq.issue(('w', s_))
            a(f"s_add_u32 s{sT0}, s{sA}, 4096")
            a(f"buffer_load_dwordx4 {R(b+16,4)}, v{vL16}, s[{SWS}:{SWS+3}], s{sT0} offen"); gq.issue(('w', s_))
            a(f"s_add_u32 s{sA}, s{sA}, 5120")
        vSTs = vST
        if STAMP: a(f"v_mov_b32 v14, v{vST}")
        for s_ in range(6): wloads(s_)
        a(f"v_lshlrev_b32 v{vT[2]}, 7, v{vLane}")
        for i in range(3):
            a(f"s_add_u32 s{sT0}, s{sA}, {8192*i}")
            a(f"buffer_load_dword v{vT[6]}, v{vT[2]}, s[{SWS}:{SWS+3}], s{sT0} offen"); gq.issue('t')
        a("s_setprio 3")
        a(f"v_sub_f32 v{vG}, 1.0, v{vG}")
        a(f"v_mov_b32 v{vG+1}, v{vG}")
        for r in range(96, 176, 2): a(f"v_pk_mul_f32 {R(r,2)}, {R(r,2)}, {R(vG,2)}")
        a(f"v_and_b32 v{vT[1]}, 3, v{vLane}")
        a(f"v_lshlrev_b32 v{vT[1]}, 8, v{vT[1]}")
        a(f"v_add_u32 v{vT[1]}, {L_FLAG+256}, v{vT[1]}")
        a(f"v_mov_b32 v{vT[3]}, {14*2*DUO}")
        a.label(f"{name}_g3")
        a(f"ds_read_b32 v{vT[2]}, v{vT[1]}")
        a("s_waitcnt lgkmcnt(0)")
        a(f"v_cmp_lt_u32 vcc, v{vT[2]}, v{vT[3]}")
        a("s_nop 4")
        a(f"s_cbranch_vccz {name}_g3d")
        a("s_sleep 8")
        bounded(f"{name}_g3")
        a.label(f"{name}_g3d")
        a(f"s_andn2_b32 s{sT1}, s2, 0x18")
        a(f"s_lshl_b32 s{sT0}, s{sGw}, 3")
        a(f"s_or_b32 s{sT1}, s{sT1}, s{sT0}")
        a(f"s_lshl_b32 s{sT1}, s{sT1}, 7")
        a(f"s_add_u32 s{sT1}, s{sT1}, {WS_FLAG}")
        a(f"v_and_b32 v{vT[1]}, 3, v{vLane}")
        a(f"v_lshlrev_b32 v{vT[1]}, 2, v{vT[1]}")
        a("s_waitcnt vmcnt(0)"); gq.q = []
        a.label(f"{name}_g5")
        a(f"buffer_load_dword v{vT[2]}, v{vT[1]}, s[{SWS}:{SWS+3}], s{sT1} offen sc1")
        a("s_waitcnt vmcnt(0)")
        a(f"v_cmp_ne_u32 vcc, 1, v{vT[2]}")
        a("s_nop 4")
        a(f"s_cbranch_vccz {name}_g5d")
        a("s_sleep 1")
        bounded(f"{name}_g5")
        a.label(f"{name}_g5d")
        a(f"s_add_u32 s{sT1}, s{sB}, 4096")
        a(f"s_add_u32 s{sT2}, s{sB}, 8192")
        for s_ in range(10):
            a(f"buffer_load_dwordx4 {R(OR(s_),4)}, v{vL16}, s[{SWS}:{SWS+3}], s{(sB,sT1,sT2)[s_//4]} offen offset:{1024*(s_%4)} sc1"); gq.issue(('o', s_))
        if STAMP:
            a("s_memtime s[92:93]"); a("s_waitcnt lgkmcnt(0)"); a(f"v_writelane_b32 v14, s92, 4")
        for s_ in range(10):
            gq.wait(a, ('o', s_) if s_ < 6 else ('w', s_))
            b = WR[s_ % 6]
            for i in range(5):
                a(f"v_mfma_f32_32x32x16_bf16 {R(ACC(i),16)}, {R(b+4*i,4)}, {R(OR(s_),4)}, {R(ACC(i),16)}")
            if s_ + 6 < 10: wloads(s_ + 6)
        if STAMP:
            a(f"v_mov_b32 v{vST}, v14")
        stamp(5)
        a(f"v_mov_b32 v{vFl}, {L_FLAG}")
        a(f"s_mul_i32 s{sT0}, s{sGw}, 20480")
        a(f"v_add_u32 v{vT[1]}, s{sT0}, v{vL16}")
        for gi in range(20):
            a(f"ds_write_b128 v{vT[1]}, {R(96+4*gi,4)} offset:{1024*gi}")
        a("s_waitcnt lgkmcnt(0)")
        signal(4)
        a(f"s_mul_i32 s{sT0}, s{sGw}, 5120")
        a(f"v_add_u32 v{vT[1]}, s{sT0}, v{vL16}")
        a(f"v_add_u32 v{vT[4]}, 40960, v{vT[1]}")
        a(f"v_mul_u32_u24 v{vT[3]}, 1280, v{vPos}")
        a(f"v_lshrrev_b32 v{vT[5]}, 5, v{vLane}")
        a(f"v_lshl_add_u32 v{vT[3]}, v{vT[5]}, 3, v{vT[3]}")
        a(f"s_mul_i32 s{sT1}, s{sP}, {32*1280}")
        a(f"s_mul_i32 s{sT2}, s{sCG}, 320")
        a(f"s_add_u32 s{sT1}, s{sT1}, s{sT2}")
        a(f"s_mul_i32 s{sT2}, s{sGw}, 80")
        a(f"s_add_u32 s{sT1}, s{sT1}, s{sT2}")
        spin(f"{name}_g4", 4, 4)
        for src in range(4):
            for gi in range(5):
                if src*5+gi == 12: a("s_waitcnt lgkmcnt(4)")
                a(f"ds_read_b128 {R(96+20*src+4*gi,4)}, v{vT[1] if src < 2 else vT[4]} offset:{(src&1)*20480 + 1024*gi}")
        a("s_waitcnt lgkmcnt(0)")
        Pp = lambda r: f"v[{r}:{r+1}]"
        for (d, s_) in ((0,1),(2,3),(0,2)):
            for r in range(0, 20, 2): a(f"v_pk_add_f32 {Pp(96+20*d+r)}, {Pp(96+20*d+r)}, {Pp(96+20*s_+r)}")
        for r in range(10): a(f"v_cvt_pk_bf16_f32 v{120+r}, v{96+2*r}, v{97+2*r}")
        for gi in range(5):
            a(f"buffer_store_dwordx2 {Pp(120+2*gi)}, v{vT[3]}, s[{SO}:{SO+3}], s{sT1} offen offset:{16*gi}")
        stamp_out()
    a.label(f"{name}_end")
    a("s_endpgm")
    return dict(name=name, vgpr=256, lds=K2_LDS, block=512, grid=256)
```

```python
from asmlib import *
from layout import *
from k1 import srd, VMQ
STAMP = False
L_FLAG = 163712
F_P1, F_P2, F_P3, F_P4 = 0, 4, 8, 12
F_XCH = 16
F_OST, F_RED, F_G1, F_HST, F_KVR, F_TAG, F_QX = 32, 36, 40, 44, 48, 52, 56
F_P5 = 60; F_AB = 96
F_QF = 80
F_PROG = 64
LDS_SIZE = 163840
THR = 2.0**-24
L_XCH = 86016; L_OST = 110592
LG = 73088; LGX = LG; LGW = LG + 65536
P0_WKV = 0; P0_GW = 25600; P0_JR = 27648; P0_X = 39936; P0_WQ = 80896
NQS = 4

def gen_kf(a, name='kf_kernel', sched=0, phase0=True, unroll=2, g1prio=0, g1hi=10, g2depth=6, adelay=0, ntouch=0, gm=0, gprio=3):
    vLane = 1; vL16 = 2; vKA = 3; vPos = 4; vVA = 5; vG = 6; vH = 7; vK2A = 8
    vT = list(range(9, 16)); vFl = 92; vPr = 93; vST = 94
    sW = 3; sP = 4; sHd = 5; SWS = 8; sT0 = 12; sT1 = 13; sT2 = 14; sT3 = 15; sCnt = 16; sFlag = 17; sOff = 18
    sGw = 19; sA = 20; sB = 21; sCG = 22; sHf = 23; SKV = 24; sBud = 28; sTag = 29; SO = 32
    SX = 36; SA = 40; SB = 44; SK = 48; STC = 52; SR = 56; SDB = 84; sRB = 88; sCT = 89
    def R(b, n): return f"v[{b}:{b+n-1}]"
    def P(b): return f"v[{b}:{b+1}]"
    def stamp(i, v=None):
        if not STAMP: return
        a("s_memtime s[92:93]"); a("s_waitcnt lgkmcnt(0)"); a(f"v_writelane_b32 v{v or vST}, s92, {i}")
    def stamp_out():
        if not STAMP: return
        stamp(63)
        a("s_memrealtime s[92:93]"); a("s_waitcnt lgkmcnt(0)"); a(f"v_writelane_b32 v{vST}, s92, 61")
        a("s_lshl_b32 s92, s2, 3"); a(f"s_add_u32 s92, s92, s{sW}"); a("s_lshl_b32 s92, s92, 8")
        a(f"s_add_u32 s92, s92, {WS_END}")
        a(f"v_lshlrev_b32 v93, 2, v{vLane}")
        a(f"buffer_store_dword v{vST}, v93, s[{SWS}:{SWS+3}], s92 offen")
    def bounded(lbl):
        a(f"s_sub_u32 s{sBud}, s{sBud}, 1")
        a(f"s_cbranch_scc0 {lbl}")
    def spin(off, need, sleep=0, tmp=None):
        lbl = a.newlabel(name + "_sp")
        tmp = tmp or vT[0]
        a.label(lbl)
        a(f"ds_read_b32 v{tmp}, v{vFl} offset:{off}")
        a("s_waitcnt lgkmcnt(0)")
        a(f"v_readfirstlane_b32 s{sT0}, v{tmp}")
        a(f"s_cmp_ge_u32 s{sT0}, {need}")
        a(f"s_cbranch_scc1 {lbl}_d")
        if sleep: a(f"s_sleep {sleep}")
        bounded(lbl)
        a.label(lbl + "_d")
    def signal(off, one):
        a("s_mov_b64 exec, 1")
        a(f"ds_add_u32 v{vFl}, v{one} offset:{off}")
        a("s_mov_b64 exec, -1")
    def progress_wait(thr, t1, t2, t3, sleep):
        lbl = a.newlabel(name + "_pw")
        a(f"v_and_b32 v{t1}, 3, v{vLane}")
        a(f"v_lshlrev_b32 v{t1}, 2, v{t1}")
        a(f"v_add_u32 v{t1}, {L_FLAG+F_PROG}, v{t1}")
        a(f"v_mov_b32 v{t3}, {thr}")
        a.label(lbl)
        a(f"ds_read_b32 v{t2}, v{t1}")
        a("s_waitcnt lgkmcnt(0)")
        a(f"v_cmp_lt_u32 vcc, v{t2}, v{t3}")
        a("s_nop 4")
        a(f"s_cbranch_vccz {lbl}_d")
        if sleep: a(f"s_sleep {sleep}")
        bounded(lbl)
        a.label(lbl + "_d")
    def get_tag(tmp):
        if phase0:
            a(f"ds_read_b32 v{tmp}, v{vFl} offset:{F_TAG}")
            a("s_waitcnt lgkmcnt(0)")
            a(f"v_readfirstlane_b32 s{sTag}, v{tmp}")
        else:
            a(f"s_mov_b32 s{sTag}, 1")

    sTch = 100; sTstep = 101
    def tile_decode():
        a(f"s_and_b32 s{sT0}, s2, 7")
        a(f"s_lshr_b32 s{sT1}, s2, 3")
        a(f"s_and_b32 s{sRB}, s{sT0}, 1")
        a(f"s_lshl_b32 s{sRB}, s{sRB}, 2")
        a(f"s_and_b32 s{sT2}, s{sT1}, 3")
        a(f"s_add_u32 s{sRB}, s{sRB}, s{sT2}")
        a(f"s_lshr_b32 s{sCT}, s{sT0}, 1")
        a(f"s_lshl_b32 s{sCT}, s{sCT}, 3")
        a(f"s_lshr_b32 s{sT2}, s{sT1}, 2")
        a(f"s_add_u32 s{sCT}, s{sCT}, s{sT2}")
    def touch_setup(sw, vt):
        a(f"s_lshr_b32 s{sT2}, s2, 3")
        a(f"s_lshr_b32 s{sT0}, s{sT2}, 2")
        a(f"s_lshl_b32 s{sT0}, s{sT0}, 5")
        a(f"s_lshl_b32 s{sT1}, s{sw}, 4")
        a(f"s_add_u32 s{sT0}, s{sT0}, s{sT1}")
        a(f"s_lshl_b32 s{sT1}, s{sRB}, 8")
        a(f"s_add_u32 s{sT0}, s{sT0}, s{sT1}")
        a(f"s_mul_i32 s{sTch}, s{sT0}, 1280")
        a(f"s_and_b32 s{sT2}, s{sT2}, 3")
        a(f"s_mul_i32 s{sT2}, s{sT2}, {16*F*2}")
        a(f"s_min_u32 s{sT0}, s{sCT}, 26")
        a(f"s_lshl_b32 s{sT0}, s{sT0}, 7")
        a(f"s_add_u32 s{sT2}, s{sT2}, s{sT0}")
        a(f"s_cmp_eq_u32 s{sw}, 3")
        a(f"s_cselect_b32 s{STC}, s74, s72")
        a(f"s_cselect_b32 s{STC+1}, s75, s73")
        a(f"s_cmp_ge_u32 s{sw}, 2")
        a(f"s_cselect_b32 s{sTch}, s{sT2}, s{sTch}")
        a(f"s_cselect_b32 s{STC}, s{STC}, s60")
        a(f"s_cselect_b32 s{STC+1}, s{STC+1}, s61")
        a(f"s_mov_b32 s{STC+2}, {S*D*2}")
        a(f"s_cselect_b32 s{STC+2}, {D*F*2}, s{STC+2}")
        a(f"s_mov_b32 s{sTstep}, 128")
        a(f"s_cselect_b32 s{sTstep}, {64*F*2}, s{sTstep}")
        a(f"s_mov_b32 s{sT0}, 1280")
        a(f"s_cselect_b32 s{sT0}, {F*2}, s{sT0}")
        a(f"s_and_b32 s{STC+1}, s{STC+1}, 0xffff")
        a(f"s_mov_b32 s{STC+3}, 0x20000")
        a(f"v_mul_lo_u32 v{vt}, s{sT0}, v{vLane}")
    def touch(q, c, vt):
        a(f"s_mul_i32 s{sT0}, s{sTstep}, {c}")
        a(f"s_add_u32 s{sT0}, s{sT0}, s{sTch}")
        a(f"s_mov_b64 exec, 0xffff")
        a(f"buffer_load_dword v{vt-1}, v{vt}, s[{STC}:{STC+3}], s{sT0} offen")
        if q: q.issue('t')
        a(f"s_mov_b64 exec, -1")

    a(f".p2align 8\n.globl {name}\n.type {name},@function")
    a.label(name)
    a("s_cmp_ge_u32 s2, 256")
    a(f"s_cbranch_scc1 {name}_end")
    a("s_load_dwordx4 s[60:63], s[0:1], 0")
    a("s_load_dwordx4 s[64:67], s[0:1], 16")
    a("s_load_dwordx2 s[68:69], s[0:1], 32")
    a("s_load_dwordx4 s[72:75], s[0:1], 48")
    a("s_load_dwordx4 s[76:79], s[0:1], 64")
    a("s_load_dwordx4 s[80:83], s[0:1], 80")
    a("s_load_dwordx2 s[6:7], s[0:1], 96")
    if STAMP:
        a("s_memtime s[94:95]"); a("s_memrealtime s[96:97]")
    a(f"v_lshrrev_b32 v{vT[0]}, 6, v0")
    a(f"v_and_b32 v{vLane}, 63, v0")
    a(f"v_readfirstlane_b32 s{sW}, v{vT[0]}")
    a(f"v_lshlrev_b32 v{vL16}, 4, v{vLane}")
    a(f"s_and_b32 s{sP}, s2, 7")
    a(f"s_lshr_b32 s{sT0}, s2, 5")
    a(f"s_lshl_b32 s{sT0}, s{sT0}, 3")
    a(f"s_add_u32 s{sP}, s{sP}, s{sT0}")
    a(f"s_bfe_u32 s{sCG}, s2, 0x20003")
    a(f"v_and_b32 v{vPos}, 31, v{vLane}")
    a(f"v_lshrrev_b32 v{vH}, 5, v{vLane}")
    a(f"v_mov_b32 v{vFl}, {L_FLAG}")
    a(f"s_mov_b32 s{sBud}, 0x40000")
    a(f"s_cmp_ge_u32 s{sW}, 4")
    a(f"s_cbranch_scc1 {name}_G")

    Q1 = lambda t: 16 + 4*t
    Q2 = lambda t: 32 + 6*t
    K1B = 56; K2B = 60; VB = 68
    PB = lambda b: 76 + 8*b
    SBf = lambda b: 96 + 16*b
    OB = lambda t: 128 + 16*t
    K1S = 240; VS = 244
    N2 = [204, 205, 206, 207]
    OAD = 224
    vX1 = 230; vX2 = 231; vXf1 = 232; vXf2 = 233
    a(f"s_lshl_b32 s{sHd}, s{sCG}, 3")
    a(f"s_and_b32 s{sT0}, s{sW}, 1")
    a(f"s_lshl_b32 s{sT0}, s{sT0}, 2")
    a(f"s_add_u32 s{sHd}, s{sHd}, s{sT0}")
    a(f"s_lshr_b32 s{sHf}, s{sW}, 1")
    a(f"v_lshlrev_b32 v{vK2A}, 4, v{vPos}")
    a(f"v_add_u32 v{vK2A}, 2048, v{vK2A}")
    a(f"v_mul_u32_u24 v{vVA}, 336, v{vH}")
    a(f"v_lshl_add_u32 v{vVA}, v{vPos}, 4, v{vVA}")
    a(f"v_add_u32 v{vVA}, 2560, v{vVA}")
    a(f"s_mov_b32 exec_lo, 0xffe00000")
    a(f"s_mov_b32 exec_hi, 0xffe00000")
    a(f"v_mov_b32 v{vVA}, {2560+672}")
    a(f"s_mov_b32 exec_lo, 0")
    a(f"s_mov_b32 exec_hi, -1")
    a(f"v_mov_b32 v{vK2A}, {2560+672}")
    a(f"s_mov_b64 exec, -1")
    for t in range(4):
        for r in range(6): a(f"v_mov_b32 v{Q2(t)+r}, 0")
    for r in (0, 1, 6, 7): a(f"v_mov_b32 v{K2B+r}, 0")
    a("s_mov_b32 exec_hi, 0")
    a(f"v_mov_b32 v{K2B}, 0x3f803f80")
    a(f"v_mov_b32 v{K2B+6}, 0x3f803f80")
    a("s_mov_b32 exec_hi, -1")
    a(f"s_lshl_b32 s{sT1}, s{sW}, 2")
    a(f"s_add_u32 s{sT1}, s{sT1}, {L_FLAG + F_PROG}")
    a(f"v_mov_b32 v{vPr}, s{sT1}")
    a(f"s_mov_b32 s{sFlag}, 0")
    a(f"s_mul_i32 s{sT0}, s{sW}, 6144")
    a(f"s_add_u32 s{sT0}, s{sT0}, {L_XCH}")
    a(f"v_add_u32 v{vX1}, s{sT0}, v{vL16}")
    a(f"s_xor_b32 s{sT1}, s{sW}, 2")
    a(f"s_mul_i32 s{sT0}, s{sT1}, 6144")
    a(f"s_add_u32 s{sT0}, s{sT0}, {L_XCH}")
    a(f"v_add_u32 v{vX2}, s{sT0}, v{vL16}")
    a(f"s_lshl_b32 s{sT0}, s{sW}, 2")
    a(f"v_add_u32 v{vXf1}, s{sT0}, v{vFl}")
    a(f"s_lshl_b32 s{sT0}, s{sT1}, 2")
    a(f"v_add_u32 v{vXf2}, s{sT0}, v{vFl}")
    a("s_waitcnt lgkmcnt(0)")
    srd(a, SWS, 6, WS_END + (1<<20))
    if STAMP:
        a(f"s_add_u32 s92, s94, 0x70000000"); a(f"v_mov_b32 v{vST}, s92"); a("s_nop 1")
        a(f"v_writelane_b32 v{vST}, s94, 0"); a(f"v_writelane_b32 v{vST}, s96, 62")
    vq = VMQ()
    N = [vT[0], vT[1], vT[4], vT[5]]
    def static_loads():
        kn = 239
        a(f"buffer_load_dword v{kn}, v{vT[6]}, s[{SWS}:{SWS+3}], s{sT1} offen sc1"); vq.issue('kn')
        a(f"buffer_load_dwordx4 {R(K1B,4)}, v{vL16}, s[{SWS}:{SWS+3}], s{sT2} offen sc1"); vq.issue('k0')
        a(f"buffer_load_dwordx4 {R(K2B+2,4)}, v{vK2A}, s[{SWS}:{SWS+3}], s{sT2} offen sc1"); vq.issue('k0')
        for m in range(2):
            a(f"buffer_load_dwordx4 {R(VB+4*m,4)}, v{vVA}, s[{SWS}:{SWS+3}], s{sT2} offen offset:{688*m} sc1"); vq.issue('v0')
        a(f"buffer_load_dwordx4 {R(K1S,4)}, v{vL16}, s[{SWS}:{SWS+3}], s{sT2} offen offset:1024 sc1"); vq.issue('k1')
        for m in range(2):
            a(f"buffer_load_dwordx4 {R(VS+4*m,4)}, v{vVA}, s[{SWS}:{SWS+3}], s{sT2} offen offset:{1376+688*m} sc1"); vq.issue('v1')
        a(f"buffer_load_dword v{vG}, v{238}, s[{SWS}:{SWS+3}], s{sOff} offen sc1"); vq.issue('g')
    def kvdma(r):
        a(f"s_add_u32 m0, s90, {r*4096}")
        a(f"s_add_u32 s{sT0}, s91, {r*4096}")
        a(f"buffer_load_dwordx4 v{vL16}, s[{SKV}:{SKV+3}], s{sT0} offen sc1 lds"); vq.issue('p1' if r < 3 else 'p2')
    srd(a, SKV, 6, WS_KV + 32*DUO)
    a(f"s_lshl_b32 s90, s{sW}, 10")
    a(f"s_add_u32 s91, s90, {WS_KV + 2*DUO}")
    a(f"v_mov_b32 v237, 1")
    def static_setup():
        a(f"v_lshlrev_b32 v{vT[6]}, 2, v{vLane}")
        a(f"v_lshlrev_b32 v238, 2, v{vPos}")
        a(f"s_mul_i32 s{sT3}, s{sHf}, {DUO}")
        a(f"s_add_u32 s{sT2}, s{sT3}, {WS_KV}")
        a(f"s_lshl_b32 s{sOff}, s{sP}, 7")
        a(f"s_add_u32 s{sOff}, s{sOff}, {WS_G}")
        a(f"s_mov_b32 s{sT1}, {WS_KN}")
    if phase0:
        srd(a, SA, 62, D*D*2)
        a(f"s_cmp_lt_u32 s{sCG}, 2")
        a(f"s_cbranch_scc1 {name}_ntq")
        a(f"s_lshr_b32 s{sT0}, s2, 5")
        a(f"s_lshl_b32 s{sT0}, s{sT0}, 1")
        a(f"s_add_u32 s{sT0}, s{sT0}, s{sCG}")
        a(f"s_sub_u32 s{sT0}, s{sT0}, 2")
        a(f"s_lshl_b32 s{sT0}, s{sT0}, 2")
        a(f"s_add_u32 s{sT0}, s{sT0}, s{sW}")
        a(f"s_mul_i32 s{sT0}, s{sT0}, 1280")
        a(f"v_mul_u32_u24 v{vT[0]}, 205, v{vLane}")
        a(f"v_lshrrev_b32 v{vT[0]}, 11, v{vT[0]}")
        a(f"v_mul_u32_u24 v{vT[2]}, 10, v{vT[0]}")
        a(f"v_sub_u32 v{vT[2]}, v{vLane}, v{vT[2]}")
        a(f"v_mul_u32_u24 v{vT[0]}, {64*1280}, v{vT[0]}")
        a(f"v_lshl_add_u32 v{vT[0]}, v{vT[2]}, 7, v{vT[0]}")
        a("s_mov_b32 exec_hi, 0x3ffff")
        a(f"buffer_load_dword v252, v{vT[0]}, s[{SA}:{SA+3}], s{sT0} offen")
        a(f"s_add_u32 s{sT0}, s{sT0}, {5*64*1280}")
        a(f"buffer_load_dword v252, v{vT[0]}, s[{SA}:{SA+3}], s{sT0} offen")
        a("s_mov_b32 exec_hi, -1")
        a.label(f"{name}_ntq")
        tile_decode()
        touch_setup(sW, 253)
        for c in range(ntouch): touch(None, c, 253)
        QA = lambda i: 128 + 16*i
        FXq = lambda b: 192 + 4*b
        FWq = lambda b, i: [96, 108, 204][b] + 4*i
        vXq = [182, 183, 184, 185]; vWq = [176, 177, 178]
        a(f"v_bfe_u32 v{vT[0]}, v{vLane}, 1, 3")
        a(f"v_xor_b32 v{vT[0]}, v{vT[0]}, v{vH}")
        a(f"v_lshlrev_b32 v{vT[0]}, 4, v{vT[0]}")
        a(f"v_lshl_add_u32 v{vT[0]}, v{vPos}, 7, v{vT[0]}")
        a(f"v_add_u32 v{vXq[0]}, {P0_X}, v{vT[0]}")
        for s_ in range(1, 4): a(f"v_xor_b32 v{vXq[s_]}, {32*s_}, v{vXq[0]}")
        a(f"v_bfe_u32 v{vT[0]}, v{vLane}, 2, 2")
        a(f"v_lshl_add_u32 v{vT[0]}, v{vH}, 3, v{vT[0]}")
        a(f"v_mul_u32_u24 v{vT[0]}, 320, v{vT[0]}")
        a(f"s_and_b32 s{sT0}, s{sW}, 1")
        a(f"s_mul_i32 s{sT0}, s{sT0}, 160")
        a(f"s_add_u32 s{sT0}, s{sT0}, {P0_WQ}")
        a(f"v_add_u32 v{vT[0]}, s{sT0}, v{vT[0]}")
        a(f"v_and_b32 v{vT[1]}, 3, v{vLane}")
        a(f"v_bfe_u32 v{vT[2]}, v{vLane}, 4, 1")
        a(f"v_mul_u32_u24 v{vT[3]}, 40, v{vT[2]}")
        a(f"v_lshl_add_u32 v{vT[3]}, v{vT[1]}, 3, v{vT[3]}")
        a(f"v_add_u32 v{vWq[0]}, v{vT[0]}, v{vT[3]}")
        a(f"v_add_u32 v{vWq[1]}, 80, v{vWq[0]}")
        a(f"v_lshrrev_b32 v{vT[1]}, 1, v{vT[1]}")
        a(f"v_lshl_add_u32 v{vT[1]}, v{vT[2]}, 1, v{vT[1]}")
        a(f"v_mul_u32_u24 v{vT[1]}, 40, v{vT[1]}")
        a(f"v_add_u32 v{vWq[2]}, v{vT[0]}, v{vT[1]}")
        a(f"v_add_u32 v{vWq[2]}, 32, v{vWq[2]}")
        for i in range(3): a(f"v_add_u32 v{vWq[i]+3}, 40960, v{vWq[i]}")
        a("s_barrier")
        stamp(1)
        a("s_barrier")
        def qreads(gs):
            c, s_ = divmod(gs, 4); b = gs % 3; sl = c % NQS
            o = [f"ds_read_b128 {R(FXq(b),4)}, v{vXq[s_]} offset:{c*4096}"]
            for i in range(3):
                for e in range(2):
                    o.append(f"ds_read_b64_tr_b16 {P(FWq(b,i)+2*e)}, v{vWq[i] + (3 if sl >= 2 else 0)} offset:{(sl&1)*20480 + (16*s_ + 4*e)*320}")
            return o
        def qmf(gs):
            b = gs % 3
            return [f"v_mfma_f32_32x32x16_bf16 {R(QA(i),16)}, {R(FWq(b,i),4)}, {R(FXq(b),4)}, {R(QA(i),16) if gs else 0}" for i in range(3)]
        get_tag(vT[3])
        static_setup()
        a(f"v_mov_b32 v12, {f2u(QSCALE):#x}")
        a(f"v_mov_b32 v13, {f2u(QSCALE):#x}")
        a(f"s_mov_b32 s{sCnt}, 0")
        a("s_barrier")
        stamp(32)
        for r in qreads(0) + qreads(1): a(r)
        for gs in range(40):
            c, s_ = divmod(gs, 4)
            if s_ == 2:
                if gs == 34: a(f"ds_read_b32 v228, v{vFl} offset:{F_KVR}")
                a("s_waitcnt lgkmcnt(0)")
                a("s_barrier")
                if c < 9: stamp(33 + c)
            elif s_ != 3:
                a("s_waitcnt lgkmcnt(7)")
            Rr = qreads(gs+2) if gs < 38 else []
            for mi, m in enumerate(qmf(gs)):
                a(m)
                for r in Rr[3*mi:3*mi+3]: a(r)
            if gs == 34:
                a(f"v_readfirstlane_b32 s{sCnt}, v228")
                a(f"s_cmp_eq_u32 s{sCnt}, 0")
                a(f"s_cbranch_scc1 {name}_e0")
                static_loads()
                a.label(f"{name}_e0")
        stamp(2)
        for r in range(0, 48, 2): a(f"v_pk_mul_f32 {P(128+r)}, {P(128+r)}, {P(12)}")
        for t in range(4):
            for r in range(4): a(f"v_cvt_pk_bf16_f32 v{Q1(t)+r}, v{128+8*t+2*r}, v{129+8*t+2*r}")
        a("s_mov_b32 exec_hi, 0")
        for t in range(4):
            for r in range(2): a(f"v_cvt_pk_bf16_f32 v{Q2(t)+2+r}, v{160+4*t+2*r}, v{161+4*t+2*r}")
        a("s_mov_b32 exec_hi, -1")
    else:
        a(f"v_lshlrev_b32 v{vT[0]}, 3, v{vPos}")
        a(f"s_lshl_b32 s{sT0}, s{sP}, 5")
        a(f"s_add_u32 s{sT0}, s{sT0}, s{sHd}")
        a(f"s_mul_i32 s{sT0}, s{sT0}, 1280")
        a(f"s_add_u32 s{sT0}, s{sT0}, {WS_Q}")
        a(f"s_add_u32 s{sT3}, s{sT0}, 2560")
        for t in range(4):
            a(f"buffer_load_dwordx4 {R(Q1(t),4)}, v{vL16}, s[{SWS}:{SWS+3}], s{sT0 if t < 2 else sT3} offen offset:{1280*(t&1)}")
        a("s_mov_b32 exec_hi, 0")
        for t in range(4):
            a(f"buffer_load_dwordx2 {R(Q2(t)+2,2)}, v{vT[0]}, s[{SWS}:{SWS+3}], s{sT0 if t < 2 else sT3} offen offset:{1280*(t&1)+1024}")
        a("s_mov_b32 exec_hi, -1")
        a("s_barrier")
        a("s_waitcnt vmcnt(0)")
    for t in range(4): a(f"v_mov_b32 v{N[t]}, 0")
    for r in range(4):
        for t in range(4): a(f"v_dot2c_f32_bf16 v{N[t]}, v{Q1(t)+r}, v{Q1(t)+r}")
    for r in (2,3):
        for t in range(4): a(f"v_dot2c_f32_bf16 v{N[t]}, v{Q2(t)+r}, v{Q2(t)+r}")
    for t in range(4): a(f"v_mov_b32 v{N2[t]}, v{N[t]}")
    for t in range(4): a(f"v_permlane32_swap_b32 v{N2[t]}, v{N[t]}")
    for t in range(4): a(f"v_add_f32 v{N[t]}, v{N[t]}, v{N2[t]}")
    stamp(3)
    kn = 239
    if phase0:
        a(f"s_cmp_lg_u32 s{sCnt}, 0")
        a(f"s_cbranch_scc1 {name}_e2")
        spin(F_KVR, 1, tmp=vT[3])
        vq.q = []
        static_loads()
        a.label(f"{name}_e2")
    else:
        static_setup()
        static_loads()
    stamp(4)
    a(f"v_add_u32 v{vKA}, s{sT3}, v{vL16}")
    a(f"v_add_u32 v{vK2A}, s{sT3}, v{vK2A}")
    a(f"v_add_u32 v{vVA}, s{sT3}, v{vVA}")
    vq.wait(a, 'kn')
    for sh in (1,2,4,8):
        a(f"v_max_f32_dpp v{kn}, v{kn}, v{kn} row_shr:{sh} row_mask:0xf bank_mask:0xf")
    a(f"v_readlane_b32 s{sT0}, v{kn}, 15")
    a(f"v_readlane_b32 s{sT1}, v{kn}, 31")
    a(f"v_readlane_b32 s{sT2}, v{kn}, 47")
    a(f"v_readlane_b32 s{sT3}, v{kn}, 63")
    a(f"s_max_u32 s{sT0}, s{sT0}, s{sT1}")
    a(f"s_max_u32 s{sT2}, s{sT2}, s{sT3}")
    a(f"s_max_u32 s{sT0}, s{sT0}, s{sT2}")
    for t in range(4): a(f"v_mul_f32 v{N[t]}, s{sT0}, v{N[t]}")
    for t in range(4): a(f"v_sqrt_f32 v{N[t]}, v{N[t]}")
    a("s_mov_b32 exec_hi, 0")
    for t in range(4): a(f"v_cvt_pk_bf16_f32 v{Q2(t)}, -v{N[t]}, 0")
    for t in range(4): a(f"v_mov_b32 v{Q2(t)+4}, v{Q2(t)}")
    a("s_mov_b32 exec_hi, -1")

    def k1reg(j): return K1S if j == 1 else K1B
    def vreg(j): return VS if j == 1 else VB
    def qk(n):
        j, t = n >> 2, n & 3
        S_ = SBf(n & 1)
        return [f"v_mfma_f32_32x32x16_bf16 {R(S_,16)}, {R(k1reg(j),4)}, {R(Q1(t),4)}, 0",
                f"v_mfma_f32_32x32x16_bf16 {R(S_,16)}, {R(K2B + 4*(j&1),4)}, {R(Q2(t) + 2*(j&1),4)}, {R(S_,16)}"]
    def pv(n):
        j, t = n >> 2, n & 3
        o = []
        for m in range(2):
            C = R(OB(t),16) if (j > 0 or m > 0) else "0"
            o.append(f"v_mfma_f32_32x32x16_bf16 {R(OB(t),16)}, {R(vreg(j)+4*m,4)}, {R(PB(n&1)+4*m,4)}, {C}")
        return o
    def off(jj, D0): return ((jj >> 1) - D0) * 2 * DUO
    def step(n, D0, pre=None, mid=None):
        S_ = SBf(n & 1); P_ = PB(n & 1)
        Q = qk(n+1) if n + 1 < 128 else [None, None]
        V = pv(n-1) if n >= 1 else [None, None]
        rK1 = rK2 = rV1 = rV2 = None
        if n % 4 == 2:
            jj = (n >> 2) + 1
            if 2 <= jj < 32:
                rK1 = f"ds_read_b128 {R(K1B,4)}, v{vKA} offset:{off(jj, D0) + 1024*(jj&1)}"
                if (jj & 1) == 0: rK2 = f"ds_read_b128 {R(K2B+2,4)}, v{vK2A} offset:{off(jj, D0)}"
        if n % 4 == 0:
            jj = n >> 2
            if 2 <= jj < 32:
                rV1 = f"ds_read_b128 {R(VB,4)}, v{vVA} offset:{off(jj, D0) + 1376*(jj&1)}"
                rV2 = f"ds_read_b128 {R(VB+4,4)}, v{vVA} offset:{off(jj, D0) + 1376*(jj&1) + 688}"
        wK = "s_waitcnt lgkmcnt(0)" if (n % 4 == 3 and n >= 7 and n < 127) else None
        wV = "s_waitcnt lgkmcnt(0)" if (n % 4 == 1 and n >= 9) else None
        e = lambda i: f"v_exp_f32 v{S_+i}, v{S_+i}"
        c = lambda i: f"v_cvt_pk_bf16_f32 v{P_+i}, v{S_+2*i}, v{S_+2*i+1}"
        if pre: pre()
        if 0 <= n < 128:
            if sched == 0:
                seq = [wK, Q[0], rK1, e(0), e(1), e(2), e(3), Q[1], rK2, e(4), e(5), c(0), c(1), e(6), e(7), wV, 'mid', V[0], rV1, c(2), e(8), c(3), e(9), e(10), e(11), V[1], rV2, c(4), e(12), c(5), e(13), e(14), e(15), c(6), c(7)]
            elif sched == 4:
                seq = [wK, Q[0], e(0), e(1), e(2), e(3), Q[1], rK1, e(4), e(5), c(0), rK2, e(6), c(1), e(7), wV, 'mid', V[0], e(8), c(2), e(9), c(3), e(10), e(11), V[1], rV1, e(12), c(4), e(13), rV2, e(14), c(5), e(15), c(6), c(7)]
        else:
            seq = [Q[0], Q[1], 'mid', V[0], V[1]]
        for x in seq:
            if x is None: continue
            if x == 'mid':
                if mid: mid()
            else: a(x)
    if adelay:
        a(f"s_cmp_ge_u32 s{sCT}, 27")
        a(f"s_cbranch_scc1 {name}_nd")
        spin(F_G1, 4*(2*adelay+1), sleep=2)
        a.label(f"{name}_nd")
    stamp(5)
    vq.wait(a, 'k0')
    step(-1, 1)
    def seq(*fs):
        def f():
            for g in fs: g()
        return f
    DM = lambda *rs: (lambda: [kvdma(r) for r in rs])
    WT = lambda t: (lambda: vq.wait(a, t))
    SG = lambda f: (lambda: signal(f, 237))
    hooks = {
        0: (None, None), 1: (None, WT('v0')), 2: (None, None),
        3: (WT('k1'), None), 4: (None, None), 5: (None, WT('v1')),
        6: (seq(lambda: stamp(6), lambda: spin(F_P1, 4), lambda: stamp(7)), None), 7: (None, None), 8: (None, None)}
    for n in range(0, 9):
        pre, mid = hooks[n]
        step(n, 1, pre, mid)
    spin(F_P2, 4)
    stamp(8)
    assert unroll == 2
    U = 16; NIT = 7
    a(f"s_mov_b32 s{sCnt}, {NIT}")
    a.label(f"{name}_loop")
    for n in range(9, 9+U): step(n, 1)
    a(f"v_add_u32 v{vKA}, {4*DUO}, v{vKA}")
    a(f"ds_write_b32 v{vPr}, v{vKA}")
    a(f"v_add_u32 v{vK2A}, {4*DUO}, v{vK2A}")
    a(f"v_add_u32 v{vVA}, {4*DUO}, v{vVA}")
    a(f"s_cmp_ge_u32 s{sCnt}, {NIT - 3}")
    a(f"s_cbranch_scc1 {name}_w3")
    a.label(f"{name}_w3r")
    a(f"s_sub_u32 s{sCnt}, s{sCnt}, 1")
    a(f"s_cmp_lg_u32 s{sCnt}, 0")
    a(f"s_cbranch_scc1 {name}_loop")
    for n in range(121, 129): step(n, 15)
    stamp(12)
    progress_wait(12*2*DUO, vT[3], vT[4], vT[5], 0)
    a(f"v_mov_b32 v{vT[5]}, 1")
    a(f"s_cmp_eq_u32 s{sHf}, 0")
    a(f"s_cbranch_scc1 {name}_x1")
    for t in range(2):
        for g in range(3): a(f"ds_write_b128 v{vX1}, {R(OB(t)+4*g,4)} offset:{(3*t+g)*1024}")
    for t in range(2):
        for r in range(0, 12, 2): a(f"v_pk_mul_f32 {R(OB(t)+r,2)}, {R(OB(t+2)+r,2)}, 1.0 op_sel_hi:[1,0]")
    a(f"s_branch {name}_x2")
    a.label(f"{name}_x1")
    for t in range(2):
        for g in range(3): a(f"ds_write_b128 v{vX1}, {R(OB(t+2)+4*g,4)} offset:{(3*t+g)*1024}")
    a.label(f"{name}_x2")
    a("s_waitcnt lgkmcnt(0)")
    a(f"ds_write_b32 v{vXf1}, v{vT[5]} offset:{F_XCH}")
    a.label(f"{name}_x3")
    a(f"ds_read_b32 v{vT[0]}, v{vXf2} offset:{F_XCH}")
    a("s_waitcnt lgkmcnt(0)")
    a(f"v_readfirstlane_b32 s{sT0}, v{vT[0]}")
    a(f"s_cmp_lg_u32 s{sT0}, 0")
    a(f"s_cbranch_scc1 {name}_x3d")
    bounded(f"{name}_x3")
    a.label(f"{name}_x3d")
    for t in range(2):
        for g in range(3): a(f"ds_read_b128 {R(OB(t+2)+4*g,4)}, v{vX2} offset:{(3*t+g)*1024}")
    a("s_waitcnt vmcnt(0) lgkmcnt(0)")
    for t in range(2):
        for r in range(0, 12, 2): a(f"v_pk_add_f32 {R(OB(t)+r,2)}, {R(OB(t)+r,2)}, {R(OB(t+2)+r,2)}")
    stamp(13)
    a.label(f"{name}_fin2")
    Lr = [vT[0], vT[1]]; X = [vT[2], vT[3]]
    for t in range(2):
        a(f"v_mov_b32 v{Lr[t]}, v{OB(t)+8}")
        a(f"v_mov_b32 v{X[t]}, v{OB(t)+8}")
    for t in range(2): a(f"v_permlane32_swap_b32 v{X[t]}, v{Lr[t]}")
    a(f"v_min_f32 v{X[0]}, v{Lr[0]}, v{Lr[1]}")
    a(f"v_mov_b32 v{X[1]}, {f2u(THR):#x}")
    a(f"v_cmp_ngt_f32 vcc, v{X[0]}, v{X[1]}")
    a(f"s_cmp_lg_u32 s{sFlag}, 0")
    a(f"s_cbranch_scc1 {name}_st")
    a(f"s_cbranch_vccnz {name}_slow")
    a.label(f"{name}_st")
    for t in range(2): a(f"v_rcp_f32 v{Lr[t]}, v{Lr[t]}")
    for t in range(2): a(f"v_mul_f32 v{Lr[t]}, v{Lr[t]}, v{vG}")
    a(f"s_lshl_b32 s{sT0}, s{sCG}, 1")
    a(f"s_and_b32 s{sT1}, s{sW}, 1")
    a(f"s_add_u32 s{sT0}, s{sT0}, s{sT1}")
    a(f"s_mul_i32 s{sT0}, s{sT0}, 5")
    a(f"s_mul_i32 s{sT1}, s{sP}, 40")
    a(f"s_add_u32 s{sT0}, s{sT0}, s{sT1}")
    a(f"s_lshl_b32 s{sT0}, s{sT0}, 10")
    a(f"s_add_u32 s{sT0}, s{sT0}, {WS_O}")
    a(f"s_lshl_b32 s{sT1}, s{sHf}, 9")
    a(f"s_add_u32 s{sT2}, s{sT0}, s{sT1}")
    a(f"s_add_u32 s{sT2}, s{sT2}, 4096")
    a(f"s_lshl_b32 s{sT1}, s{sHf}, 11")
    a(f"s_add_u32 s{sT0}, s{sT0}, s{sT1}")
    for t in range(2):
        O = OB(t)
        a(f"v_mov_b32 v{X[t]}, v{Lr[t]}") if False else None
        for r in range(8): a(f"v_mul_f32 v{O+r}, v{O+r}, v{Lr[t]}")
        for r in range(4): a(f"v_cvt_pk_bf16_f32 v{PB(0)+4*t+r}, v{O+2*r}, v{O+2*r+1}")
        a(f"buffer_store_dwordx4 {R(PB(0)+4*t,4)}, v{vL16}, s[{SWS}:{SWS+3}], s{sT0} offen offset:{1024*t} sc1")
    for t in range(2):
        O = OB(t)
        for r in range(8, 12): a(f"v_mul_f32 v{O+r}, v{O+r}, v{Lr[t]}")
        for r in range(2): a(f"v_cvt_pk_bf16_f32 v{PB(1)+2*t+r}, v{O+8+2*r}, v{O+9+2*r}")
    a("s_mov_b32 exec_hi, 0")
    a(f"buffer_store_dwordx4 {R(PB(1),4)}, v{vL16}, s[{SWS}:{SWS+3}], s{sT2} offen sc1")
    a(f"s_lshl_b32 s{sT0}, s2, 7")
    a(f"s_lshl_b32 s{sT1}, s{sW}, 2")
    a(f"s_add_u32 s{sT0}, s{sT0}, s{sT1}")
    a(f"s_add_u32 s{sT0}, s{sT0}, {WS_FLAG}")
    a(f"v_mov_b32 v{vT[1]}, 0")
    a(f"v_mov_b32 v{vT[3]}, s{sTag}")
    a("s_mov_b64 exec, 1")
    a("s_waitcnt vmcnt(0)")
    a(f"buffer_store_dword v{vT[3]}, v{vT[1]}, s[{SWS}:{SWS+3}], s{sT0} offen sc1")
    a("s_mov_b64 exec, -1")
    a.label(f"{name}_adone")
    stamp_out()
    a("s_endpgm")
    a.label(f"{name}_w3")
    a(f"s_cmp_eq_u32 s{sCnt}, {NIT-1}")
    a(f"s_cbranch_scc1 {name}_w3r")
    a(f"s_cmp_eq_u32 s{sCnt}, {NIT}")
    a(f"s_cbranch_scc1 {name}_w3a")
    a(f"s_cmp_eq_u32 s{sCnt}, {NIT-3}")
    a(f"s_cbranch_scc1 {name}_w3b")
    stamp(10)
    spin(F_P4, 4)
    stamp(11)
    a(f"s_branch {name}_w3r")
    a.label(f"{name}_w3b")
    stamp(14)
    spin(F_P5, 4)
    stamp(15)
    a(f"s_branch {name}_w3r")
    a.label(f"{name}_w3a")
    spin(F_P3, 4)
    stamp(9)
    a(f"s_branch {name}_w3r")
    a.label(f"{name}_slow")
    a(f"s_mov_b32 s{sFlag}, 1")
    a(f"s_cmp_eq_u32 s{sHf}, 0")
    a(f"s_cbranch_scc1 {name}_sl0")
    for t in range(2):
        for r in range(4): a(f"v_mov_b32 v{Q1(t)+r}, v{Q1(t+2)+r}")
        for r in range(6): a(f"v_mov_b32 v{Q2(t)+r}, v{Q2(t+2)+r}")
    a.label(f"{name}_sl0")
    a(f"s_mul_i32 s{sT2}, s{sHf}, {DUO}")
    a(f"s_add_u32 s{sT2}, s{sT2}, {28*DUO}")
    a(f"v_subrev_u32 v{vK2A}, s{sT2}, v{vK2A}")
    a(f"v_subrev_u32 v{vVA}, s{sT2}, v{vVA}")
    M = [vT[4], vT[5]]
    for t in range(2):
        a(f"v_mov_b32 v{M[t]}, 0xff7fffff")
        a(f"v_mov_b32 v{Q2(t)}, 0"); a(f"v_mov_b32 v{Q2(t)+4}, 0")
    def slow_loads(withv):
        a(f"buffer_load_dwordx4 {R(K1B,4)}, v{vL16}, s[{SWS}:{SWS+3}], s{sOff} offen sc1")
        a(f"buffer_load_dwordx4 {R(K1S,4)}, v{vL16}, s[{SWS}:{SWS+3}], s{sOff} offen offset:1024 sc1")
        a(f"buffer_load_dwordx4 {R(K2B+2,4)}, v{vK2A}, s[{SWS}:{SWS+3}], s{sOff} offen sc1")
        if withv:
            for jj in range(2):
                for m in range(2):
                    a(f"buffer_load_dwordx4 {R(vreg(jj)+4*m,4)}, v{vVA}, s[{SWS}:{SWS+3}], s{sOff} offen offset:{1376*jj+688*m} sc1")
        a("s_waitcnt vmcnt(0)")
    def slow_qk(jj):
        for t in range(2):
            a(f"v_mfma_f32_32x32x16_bf16 {R(SBf(t),16)}, {R(k1reg(jj),4)}, {R(Q1(t),4)}, 0")
            a(f"v_mfma_f32_32x32x16_bf16 {R(SBf(t),16)}, {R(K2B+4*jj,4)}, {R(Q2(t)+2*jj,4)}, {R(SBf(t),16)}")
    a(f"s_mov_b32 s{sOff}, {WS_KV}")
    a(f"s_mov_b32 s{sCnt}, 32")
    a.label(f"{name}_sl1")
    slow_loads(False)
    for jj in range(2):
        slow_qk(jj)
        for t in range(2):
            for r in range(0, 16, 2): a(f"v_max3_f32 v{M[t]}, v{SBf(t)+r}, v{SBf(t)+r+1}, v{M[t]}")
    a(f"s_add_u32 s{sOff}, s{sOff}, {DUO}")
    a(f"s_sub_u32 s{sCnt}, s{sCnt}, 1")
    a(f"s_cmp_lg_u32 s{sCnt}, 0")
    a(f"s_cbranch_scc1 {name}_sl1")
    for t in range(2): a(f"v_mov_b32 v{vT[t]}, v{M[t]}")
    for t in range(2): a(f"v_permlane32_swap_b32 v{vT[t]}, v{M[t]}")
    for t in range(2): a(f"v_max_f32 v{M[t]}, v{M[t]}, v{vT[t]}")
    for t in range(2):
        a(f"v_cvt_pk_bf16_f32 v{vT[t]}, -v{M[t]}, 0")
        a(f"v_lshlrev_b32 v{vT[t]}, 16, v{vT[t]}")
        a(f"v_sub_f32 v{vT[2+t]}, -v{M[t]}, v{vT[t]}")
    a("s_mov_b32 exec_hi, 0")
    for t in range(2):
        a(f"v_cvt_pk_bf16_f32 v{Q2(t)}, v{vT[t]}, v{vT[2+t]}")
        a(f"v_mov_b32 v{Q2(t)+4}, v{Q2(t)}")
    a("s_mov_b32 exec_hi, -1")
    for t in range(2):
        for r in range(16): a(f"v_mov_b32 v{OB(t)+r}, 0")
    a(f"s_mov_b32 s{sOff}, {WS_KV}")
    a(f"s_mov_b32 s{sCnt}, 32")
    a.label(f"{name}_sl2")
    slow_loads(True)
    for jj in range(2):
        slow_qk(jj)
        for t in range(2):
            for r in range(16): a(f"v_exp_f32 v{SBf(t)+r}, v{SBf(t)+r}")
            for r in range(8): a(f"v_cvt_pk_bf16_f32 v{PB(t)+r}, v{SBf(t)+2*r}, v{SBf(t)+2*r+1}")
            for m in range(2):
                a(f"v_mfma_f32_32x32x16_bf16 {R(OB(t),16)}, {R(vreg(jj)+4*m,4)}, {R(PB(t)+4*m,4)}, {R(OB(t),16)}")
    a(f"s_add_u32 s{sOff}, s{sOff}, {DUO}")
    a(f"s_sub_u32 s{sCnt}, s{sCnt}, 1")
    a(f"s_cmp_lg_u32 s{sCnt}, 0")
    a(f"s_cbranch_scc1 {name}_sl2")
    a("s_nop 15")
    a(f"s_branch {name}_fin2")

    import kf_g
    kf_g.gen_g(a, name, phase0, locals())
    a.label(f"{name}_end")
    a("s_endpgm")
    return dict(name=name, vgpr=256, lds=LDS_SIZE, block=512, grid=256)
```

```python
from asmlib import *
from layout import *
from k1 import srd, VMQ
import kf
from kf import *

def gen_g(a, name, phase0, E):
    globals().update({k: v for k, v in E.items() if k not in ('a', 'name', 'phase0')})
    STAMP = kf.STAMP
    L = vLane
    vOne = 90; vCnt = 91; vTch = 89; sRep = 5; vRep = 95
    sXoff = 90; sWoff = 91; sM0x = 98; sM0w = 99
    t0, t1, t2, t3, t4, t5, t6 = vT
    a.label(f"{name}_G")
    a(f"s_sub_u32 s{sGw}, s{sW}, 4")
    vR8 = 224; vC8 = 225; vRr = 226; vCB = 227
    a(f"v_lshrrev_b32 v{vR8}, 3, v{L}")
    a(f"v_and_b32 v{vC8}, 7, v{L}")
    gq = VMQ()
    if phase0:
        vXD0 = 16; vQD = [17, 18, 19, 20, 21]; vJX = 22; vJW = 23; vJG = 228; vTagL = 229; vZero = 230
        a(f"s_lshl_b32 s{sT0}, s{sGw}, 3")
        a(f"v_add_u32 v{t0}, s{sT0}, v{vR8}")
        a(f"v_bfe_u32 v{t2}, v{t0}, 1, 3")
        a(f"v_xor_b32 v{t2}, v{t2}, v{vC8}")
        a(f"v_mul_u32_u24 v{t0}, 1280, v{t0}")
        a(f"v_lshl_add_u32 v{vXD0}, v{t2}, 4, v{t0}")
        a(f"v_mov_b32 v{vZero}, 0")
        a(f"s_mul_i32 s{sT1}, s{sP}, {32*1280}")
        a(f"s_lshl_b32 s{sT2}, s{sGw}, 10")
        a(f"s_mul_i32 s{sT3}, s{sCG}, 5")
        a(f"s_lshr_b32 s{sT0}, s{sCG}, 1")
        a(f"s_lshl_b32 s{sT0}, s{sT0}, 3")
        a(f"s_sub_u32 s{sT3}, s{sT3}, s{sT0}")
    a("s_waitcnt lgkmcnt(0)")
    srd(a, SX, 60, S*D*2)
    if STAMP:
        a(f"s_add_u32 s92, s94, 0x70000000"); a(f"v_mov_b32 v{vST}, s92"); a("s_nop 1")
        a(f"v_writelane_b32 v{vST}, s94, 0"); a(f"v_writelane_b32 v{vST}, s96, 62")
    if phase0:
        stamp(40)
        srd(a, SDB, 82, 256)
        a(f"s_cmp_lg_u32 s2, 0")
        a(f"s_cbranch_scc1 {name}_n0")
        a(f"s_cmp_lg_u32 s{sGw}, 3")
        a(f"s_cbranch_scc1 {name}_n0")
        a("s_memrealtime s[92:93]")
        a("s_waitcnt lgkmcnt(0)")
        a("s_or_b32 s92, s92, 1")
        a(f"v_mov_b32 v{vTagL}, s92")
        a("s_mov_b64 exec, 1")
        a(f"buffer_store_dword v{vTagL}, v{vZero}, s[{SDB}:{SDB+3}], 0 offen sc1")
        a("s_mov_b64 exec, -1")
        a.label(f"{name}_n0")
        a(f"s_cmp_eq_u32 s{sCG}, 0")
        a(f"s_cselect_b32 s{SK}, s64, s66")
        a(f"s_cselect_b32 s{SK+1}, s65, s67")
        a(f"s_and_b32 s{SK+1}, s{SK+1}, 0xffff")
        a(f"s_mov_b32 s{SK+2}, {D*DH*2}")
        a(f"s_mov_b32 s{SK+3}, 0x20000")
        a(f"s_lshr_b32 s{sA}, s2, 5")
        a(f"s_cmp_ge_u32 s{sA}, 6")
        a(f"s_cselect_b32 s{sT0}, 6, 0")
        a(f"s_sub_u32 s{sA}, s{sA}, s{sT0}")
        a(f"s_cmp_ge_u32 s{sCG}, 2")
        a(f"s_cbranch_scc1 {name}_nokv0")
        def wkv(j):
            a(f"s_lshl_b32 s{sT0}, s{sA}, 12")
            a(f"s_add_u32 s{sT0}, s{sT0}, s{sT2}")
            a(f"s_add_u32 m0, s{sT0}, {P0_WKV}")
            a(f"s_add_u32 s{sA}, s{sA}, 1")
            a(f"buffer_load_dwordx4 v{vL16}, s[{SK}:{SK+3}], s{sT0} offen lds")
            a(f"s_cmp_eq_u32 s{sA}, 6")
            a(f"s_cselect_b32 s{sA}, 0, s{sA}")
        for j in range(2): wkv(j)
        a.label(f"{name}_nokv0")
        for c in range(10):
            a(f"s_lshl_b32 s{sT0}, s{sT3}, 12")
            a(f"s_add_u32 s{sT0}, s{sT0}, s{sT2}")
            a(f"s_add_u32 m0, s{sT0}, {P0_X}")
            a(f"s_lshl_b32 s{sT0}, s{sT3}, 7")
            a(f"s_add_u32 s{sT0}, s{sT0}, s{sT1}")
            a(f"buffer_load_dwordx4 v{vXD0}, s[{SX}:{SX+3}], s{sT0} offen lds"); gq.issue('x')
            a(f"s_add_u32 s{sT3}, s{sT3}, 1")
            a(f"s_cmp_eq_u32 s{sT3}, 10")
            a(f"s_cselect_b32 s{sT3}, 0, s{sT3}")
        srd(a, SA, 62, D*D*2)
        a(f"s_cmp_ge_u32 s{sCG}, 2")
        a(f"s_cbranch_scc1 {name}_nokv")
        for j in range(4): wkv(j)
        a(f"s_cmp_lg_u32 s{sGw}, 0")
        a(f"s_cbranch_scc1 {name}_kv1")
        a(f"s_mov_b32 m0, {P0_WKV + 24576}")
        a(f"s_mov_b32 s{sT0}, 24576")
        a(f"buffer_load_dwordx4 v{vL16}, s[{SK}:{SK+3}], s{sT0} offen lds")
        a.label(f"{name}_kv1")
        a(f"s_cmp_lg_u32 s{sGw}, 1")
        a(f"s_cbranch_scc1 {name}_nokv")
        srd(a, SR, 78, D*2)
        a(f"s_mov_b32 m0, {P0_GW}")
        a(f"s_mov_b32 s{sT0}, 0")
        a(f"buffer_load_dwordx4 v{vL16}, s[{SR}:{SR+3}], s{sT0} offen lds")
        a(f"s_mov_b32 m0, {P0_GW+1024}")
        a(f"s_mov_b32 s{sT0}, 1024")
        a(f"buffer_load_dwordx4 v{vL16}, s[{SR}:{SR+3}], s{sT0} offen lds")
        a.label(f"{name}_nokv")
        a(f"s_cmp_lg_u32 s{sGw}, 3")
        a(f"s_cbranch_scc1 {name}_n1")
        a(f"buffer_load_dword v{vTagL}, v{vZero}, s[{SDB}:{SDB+3}], 0 offen sc1")
        a.label(f"{name}_n1")
    srd(a, SWS, 6, WS_END + (1<<20))
    srd(a, SO, 80, S*D*2)
    srd(a, SKV, 6, WS_KV + 32*DUO)
    tile_decode()
    a(f"v_and_b32 v{t1}, 31, v{L}")
    a(f"v_lshl_add_u32 v{t1}, v{t1}, 2, v{vFl}")
    a(f"v_mov_b32 v{t2}, 0")
    a(f"ds_write_b32 v{t1}, v{t2}")
    a(f"v_mov_b32 v{vOne}, 1")
    a(f"v_bfe_u32 v{vRr}, v{L}, 2, 2")
    a(f"v_and_b32 v{t5}, 3, v{L}")
    a(f"v_bfe_u32 v{t6}, v{L}, 4, 1")
    a(f"v_lshlrev_b32 v{t5}, 3, v{t5}")
    a(f"v_lshl_add_u32 v{vCB}, v{t6}, 5, v{t5}")
    a(f"v_mul_u32_u24 v{vRep}, {FL_REP}, v{L}")
    a(f"s_and_b32 s{sT0}, s2, 7")
    a(f"s_mul_i32 s{sRep}, s{sT0}, {FL_REP}")
    if phase0:
        for j in range(5):
            a(f"v_add_u32 v{t0}, {64*j}, v{L}")
            a(f"v_mul_u32_u24 v{t2}, 3277, v{t0}")
            a(f"v_lshrrev_b32 v{t2}, 16, v{t2}")
            a(f"v_mul_u32_u24 v{t5}, 20, v{t2}")
            a(f"v_sub_u32 v{t5}, v{t0}, v{t5}")
            a(f"v_mul_u32_u24 v{t2}, 1280, v{t2}")
            a(f"v_lshl_add_u32 v{vQD[j]}, v{t5}, 4, v{t2}")
        a(f"s_mul_i32 s{sA}, s{sGw}, {16*1280}")
        a(f"s_mul_i32 s{sT0}, s{sCG}, 320")
        a(f"s_add_u32 s{sA}, s{sA}, s{sT0}")
        a(f"s_mul_i32 s{sB}, s{sGw}, 5120")
        def wq_dma(c):
            for j in range(5):
                a(f"s_add_u32 m0, s{sB}, {P0_WQ + (c%NQS)*20480 + j*1024}")
                if j == 0: a(f"s_add_u32 s{sT3}, s{sA}, {c*64*1280}")
                else: a("s_nop 0")
                a(f"buffer_load_dwordx4 v{vQD[j]}, s[{SA}:{SA+3}], s{sT3} offen lds"); gq.issue(('wq', c))
    vXA = [240, 241, 242, 243]; vWA = 244; vXD = [245, 246]; vWD = 247; vRD = 248; vRA = [249, 250]
    a(f"v_lshrrev_b32 v{t2}, 1, v{vR8}")
    a(f"v_xor_b32 v{t3}, v{vC8}, v{t2}")
    a(f"v_mul_u32_u24 v{t4}, 1280, v{vR8}")
    a(f"v_lshl_add_u32 v{vXD[0]}, v{t3}, 4, v{t4}")
    a(f"v_xor_b32 v{t3}, 4, v{t3}")
    a(f"v_lshl_add_u32 v{vXD[1]}, v{t3}, 4, v{t4}")
    a(f"v_add_u32 v{vXD[1]}, {8*1280}, v{vXD[1]}")
    a(f"v_and_b32 v{t3}, 1, v{t2}")
    a(f"v_lshlrev_b32 v{t3}, 2, v{t3}")
    a(f"v_xor_b32 v{t3}, v{t3}, v{vC8}")
    a(f"v_lshl_add_u32 v{vRD}, v{t3}, 4, v{t4}")
    a(f"v_mul_u32_u24 v{t4}, {F*2}, v{vR8}")
    a(f"v_lshl_add_u32 v{vWD}, v{t3}, 4, v{t4}")
    a(f"v_bfe_u32 v{t3}, v{L}, 1, 3")
    a(f"v_xor_b32 v{t3}, v{t3}, v{vH}")
    a(f"v_lshlrev_b32 v{t3}, 4, v{t3}")
    a(f"v_lshl_add_u32 v{t3}, v{vPos}, 7, v{t3}")
    if phase0:
        a(f"s_lshl_b32 s{sT0}, s{sGw}, 5")
        a(f"v_xor_b32 v{vJX}, s{sT0}, v{t3}")
        a(f"v_add_u32 v{vJX}, {P0_X}, v{vJX}")
    a(f"s_lshr_b32 s{sT0}, s{sGw}, 1")
    a(f"s_lshl_b32 s{sT0}, s{sT0}, 14")
    a(f"s_add_u32 s{sT0}, s{sT0}, {LGX}")
    a(f"v_add_u32 v{vXA[0]}, s{sT0}, v{t3}")
    for s_ in range(1, 4): a(f"v_xor_b32 v{vXA[s_]}, {32*s_}, v{vXA[0]}")
    a(f"v_lshrrev_b32 v{t4}, 1, v{vRr}")
    a(f"s_and_b32 s{sT0}, s{sGw}, 1")
    a(f"v_xor_b32 v{t5}, s{sT0}, v{t4}")
    a(f"v_lshl_add_u32 v{t5}, v{t5}, 6, v{vCB}")
    a(f"v_lshl_add_u32 v{t6}, v{vH}, 3, v{vRr}")
    a(f"v_lshl_add_u32 v{vWA}, v{vRr}, 7, v{t5}")
    a(f"v_lshl_add_u32 v{vWA}, v{vH}, 11, v{vWA}")
    a(f"v_add_u32 v{vWA}, {LGW}, v{vWA}")
    if phase0:
        a(f"s_lshl_b32 s{sT0}, s{sGw}, 4")
        a(f"v_add_u32 v{t6}, s{sT0}, v{t6}")
        a(f"v_mul_u32_u24 v{vJW}, 40, v{t6}")
        a(f"v_add_u32 v{vJW}, v{vJW}, v{vCB}")
        a(f"v_add_u32 v{vJW}, {P0_WKV}, v{vJW}")
        a(f"s_lshl_b32 s{sT0}, s{sGw}, 5")
        a(f"s_add_u32 s{sT0}, s{sT0}, {P0_GW}")
        a(f"v_lshl_add_u32 v{vJG}, v{vH}, 4, s{sT0}")
        a(f"v_lshl_add_u32 v{t6}, v{vH}, 2, v{vRr}")
        a(f"v_lshl_add_u32 v{t5}, v{t4}, 6, v{vCB}")
        a(f"v_lshl_add_u32 v{vRA[0]}, v{t6}, 7, v{t5}")
        a(f"s_mul_i32 s{sT0}, s{sGw}, 20480")
        a(f"s_add_u32 s{sT0}, s{sT0}, {LG}")
        a(f"v_add_u32 v{vRA[0]}, s{sT0}, v{vRA[0]}")
        a(f"v_xor_b32 v{vRA[1]}, 64, v{vRA[0]}")
        a(f"v_lshrrev_b32 v{t5}, 2, v{vR8}")
        a(f"v_mul_u32_u24 v{t5}, {36*1280}, v{t5}")
        a(f"v_add_u32 v251, v{vRD}, v{t5}")
    a(f"s_lshl_b32 s{sT0}, s{sRB}, 8")
    a(f"s_lshl_b32 s{sT1}, s{sGw}, 6")
    a(f"s_add_u32 s{sT0}, s{sT0}, s{sT1}")
    a(f"s_mul_i32 s{sXoff}, s{sT0}, 1280")
    a(f"s_lshl_b32 s{sM0x}, s{sGw}, 13")
    a(f"s_add_u32 s{sM0x}, s{sM0x}, {LGX}")
    a(f"s_lshl_b32 s{sM0w}, s{sGw}, 11")
    a(f"s_add_u32 s{sM0w}, s{sM0w}, {LGW}")
    a(f"s_mul_i32 s{sWoff}, s{sGw}, {8*F*2}")
    a(f"s_lshl_b32 s{sT0}, s{sCT}, 7")
    a(f"s_add_u32 s{sWoff}, s{sWoff}, s{sT0}")
    touch_setup(sGw, vTch)
    if phase0:
        JACC = 96; JF = lambda i: 112 + 8*i
        gq.q = []
        wq_dma(0)
        stamp(41)
        a("s_waitcnt vmcnt(5)")
        a("s_waitcnt lgkmcnt(0)")
        stamp(42)
        a("s_barrier")
        stamp(1)
        a(f"s_cmp_lg_u32 s{sGw}, 3")
        a(f"s_cbranch_scc1 {name}_tg1")
        a.label(f"{name}_tg0")
        a(f"v_readfirstlane_b32 s{sT0}, v{vTagL}")
        a(f"s_cmp_lg_u32 s{sT0}, 0")
        a(f"s_cbranch_scc1 {name}_tgd")
        a("s_sleep 4")
        a(f"buffer_load_dword v{vTagL}, v{vZero}, s[{SDB}:{SDB+3}], 0 offen sc1")
        a("s_waitcnt vmcnt(0)")
        bounded(f"{name}_tg0")
        a.label(f"{name}_tgd")
        a(f"ds_write_b32 v{vFl}, v{vTagL} offset:{F_TAG}")
        a.label(f"{name}_tg1")
        wq_dma(1)
        a(f"s_cmp_ge_u32 s{sCG}, 2")
        a(f"s_cbranch_scc1 {name}_j9")
        a(f"s_cmp_eq_u32 s{sCG}, 1")
        a(f"s_cbranch_scc1 {name}_jV")
        def job(kind):
            def rd(c):
                a(f"ds_read_b128 {R(JF(c),4)}, v{vJX} offset:{c*4096}")
                for e in range(2):
                    a(f"ds_read_b64_tr_b16 {P(JF(c)+4+2*e)}, v{vJW} offset:{(64*c+4*e)*40}")
                if kind == 'K':
                    a(f"s_mov_b32 exec_lo, {1<<20}"); a(f"s_mov_b32 exec_hi, {1<<20}")
                    a(f"ds_read_b128 {R(JF(c)+4,4)}, v{vJG} offset:{128*c}")
                    a("s_mov_b64 exec, -1")
            per = 4 if kind == 'K' else 3
            for c in range(3): rd(c)
            for c in range(10):
                left = min(2, 9 - c)
                a(f"s_waitcnt lgkmcnt({left*per})")
                C = R(JACC,16) if c else "0"
                fx = R(JF(c),4); fw = R(JF(c)+4,4)
                if kind == 'K': a(f"v_mfma_f32_32x32x16_bf16 {R(JACC,16)}, {fw}, {fx}, {C}")
                else: a(f"v_mfma_f32_32x32x16_bf16 {R(JACC,16)}, {fx}, {fw}, {C}")
                if c + 3 < 10: rd(c+3)
        job('K')
        a(f"s_branch {name}_j8")
        a.label(f"{name}_jV")
        job('V')
        a.label(f"{name}_j8")
        a("s_nop 7")
        a(f"s_cmp_eq_u32 s{sGw}, 0")
        a(f"s_cbranch_scc1 {name}_j9")
        a(f"s_lshl_b32 s{sT0}, s{sGw}, 12")
        a(f"s_add_u32 s{sT0}, s{sT0}, {P0_JR - 4096}")
        a(f"v_add_u32 v{t0}, s{sT0}, v{vL16}")
        for g_ in range(4): a(f"ds_write_b128 v{t0}, {R(JACC+4*g_,4)} offset:{1024*g_}")
        a.label(f"{name}_j9")
        a("s_waitcnt lgkmcnt(0)")
        a("s_barrier")
        stamp(2)
        get_tag(t0)
        a(f"s_cmp_lg_u32 s{sGw}, 0")
        a(f"s_cbranch_scc1 {name}_pb9")
        a(f"s_cmp_ge_u32 s{sCG}, 2")
        a(f"s_cbranch_scc1 {name}_pb9")
        a(f"v_add_u32 v{t0}, {P0_JR}, v{vL16}")
        for g_ in range(12): a(f"ds_read_b128 {R(112+4*g_,4)}, v{t0} offset:{1024*g_}")
        a(f"s_lshr_b32 s{sT2}, s{sP}, 1")
        a(f"s_mul_i32 s{sT2}, s{sT2}, {DUO}")
        a(f"s_add_u32 s{sT2}, s{sT2}, {WS_KV}")
        a(f"s_and_b32 s{sCnt}, s{sP}, 1")
        a("s_waitcnt lgkmcnt(0)")
        for r in range(0, 16, 2): a(f"v_pk_add_f32 {P(JACC+r)}, {P(JACC+r)}, {P(112+r)}")
        for r in range(0, 16, 2): a(f"v_pk_add_f32 {P(128+r)}, {P(128+r)}, {P(144+r)}")
        for r in range(0, 16, 2): a(f"v_pk_add_f32 {P(JACC+r)}, {P(JACC+r)}, {P(128+r)}")
        TMP = 160; J = JACC
        a(f"s_cmp_eq_u32 s{sCG}, 1")
        a(f"s_cbranch_scc1 {name}_pbV")
        for j in range(6): a(f"v_cvt_pk_bf16_f32 v{TMP+j}, v{J+2*j}, v{J+2*j+1}")
        a(f"s_lshl_b32 s{sT0}, s{sCnt}, 10")
        a(f"s_add_u32 s{sT0}, s{sT0}, s{sT2}")
        a(f"buffer_store_dwordx4 {R(TMP,4)}, v{vL16}, s[{SWS}:{SWS+3}], s{sT0} offen sc1")
        a(f"s_lshl_b32 s{sT0}, s{sCnt}, 3")
        a(f"s_add_u32 s{sT0}, s{sT0}, s{sT2}")
        a(f"s_add_u32 s{sT0}, s{sT0}, 2048")
        a(f"v_mov_b32 v{TMP+8}, 0")
        a(f"v_mov_b32 v{TMP+9}, 0")
        a(f"v_mul_f32 v{TMP+10}, {f2u(-math.log2(math.e)):#x}, v{J+8}")
        for j in range(4): a(f"v_dot2c_f32_bf16 v{TMP+8}, v{TMP+j}, v{TMP+j}")
        a(f"v_exp_f32 v{TMP+10}, v{TMP+10}")
        a(f"s_mov_b32 exec_hi, 0")
        a(f"buffer_store_dwordx2 {P(TMP+4)}, v{vL16}, s[{SWS}:{SWS+3}], s{sT0} offen sc1")
        for j in range(4,6): a(f"v_dot2c_f32_bf16 v{TMP+9}, v{TMP+j}, v{TMP+j}")
        a(f"s_mov_b64 exec, -1")
        a(f"v_add_f32 v{TMP+10}, 1.0, v{TMP+10}")
        a(f"v_rcp_f32 v{TMP+10}, v{TMP+10}")
        a(f"v_lshlrev_b32 v{TMP+11}, 2, v{vPos}")
        a(f"s_lshl_b32 s{sT0}, s{sP}, 7")
        a(f"s_add_u32 s{sT0}, s{sT0}, {WS_G}")
        a(f"v_add_f32 v{TMP+8}, v{TMP+8}, v{TMP+9}")
        a(f"s_mov_b32 exec_lo, 0")
        a(f"buffer_store_dword v{TMP+10}, v{TMP+11}, s[{SWS}:{SWS+3}], s{sT0} offen sc1")
        a(f"s_mov_b64 exec, -1")
        a(f"v_mov_b32 v{TMP+9}, v{TMP+8}")
        a(f"v_permlane32_swap_b32 v{TMP+8}, v{TMP+9}")
        a(f"v_add_f32 v{TMP+8}, v{TMP+8}, v{TMP+9}")
        for sh in (1,2,4,8):
            a(f"v_max_f32_dpp v{TMP+8}, v{TMP+8}, v{TMP+8} row_shr:{sh} row_mask:0xf bank_mask:0xf")
        a(f"v_readlane_b32 s{sT0}, v{TMP+8}, 15")
        a(f"v_readlane_b32 s{sT1}, v{TMP+8}, 31")
        a(f"s_max_u32 s{sT0}, s{sT0}, s{sT1}")
        a(f"v_mov_b32 v{TMP+8}, s{sT0}")
        a(f"s_lshl_b32 s{sT1}, s{sP}, 2")
        a(f"s_add_u32 s{sT1}, s{sT1}, {WS_KN}")
        a(f"s_mov_b64 exec, 1")
        a(f"buffer_store_dword v{TMP+8}, v{vZero}, s[{SWS}:{SWS+3}], s{sT1} offen sc1")
        a(f"s_mov_b64 exec, -1")
        a(f"s_branch {name}_pbF")
        a.label(f"{name}_pbV")
        for j in range(8): a(f"v_cvt_pk_bf16_f32 v{TMP+j}, v{J+2*j}, v{J+2*j+1}")
        a(f"s_mov_b32 exec_lo, {1<<20}"); a(f"s_mov_b32 exec_hi, {1<<20}")
        for j in range(8): a(f"v_mov_b32 v{TMP+j}, 0x3f803f80")
        a(f"s_mov_b32 exec_lo, 0"); a(f"s_mov_b32 exec_hi, {1<<21}")
        for j in range(8): a(f"v_mov_b32 v{TMP+j}, 0")
        a(f"s_mov_b32 exec_lo, {(1<<21)-1}"); a(f"s_mov_b32 exec_hi, {(1<<22)-1}")
        a(f"v_mul_u32_u24 v{TMP+8}, 336, v{vH}")
        a(f"v_lshl_add_u32 v{TMP+8}, v{vPos}, 4, v{TMP+8}")
        a(f"s_mul_i32 s{sT0}, s{sCnt}, 1376")
        a(f"s_add_u32 s{sT0}, s{sT0}, s{sT2}")
        a(f"s_add_u32 s{sT0}, s{sT0}, 2560")
        a(f"buffer_store_dwordx4 {R(TMP,4)}, v{TMP+8}, s[{SWS}:{SWS+3}], s{sT0} offen sc1")
        a(f"buffer_store_dwordx4 {R(TMP+4,4)}, v{TMP+8}, s[{SWS}:{SWS+3}], s{sT0} offen offset:688 sc1")
        a(f"s_mov_b64 exec, -1")
        a.label(f"{name}_pbF")
        stamp(43)
        a.label(f"{name}_pb9")
        gq.issue('st')
        wq_dma(2); wq_dma(3)
        gq.wait(a, ('wq', 0))
        a("s_barrier")
        def kvflag():
            lbl = a.newlabel(f"{name}_pf")
            a(f"s_cmp_lg_u32 s{sGw}, 0")
            a(f"s_cbranch_scc1 {lbl}")
            a(f"s_cmp_ge_u32 s{sCG}, 2")
            a(f"s_cbranch_scc1 {lbl}")
            a(f"s_lshl_b32 s{sT0}, s{sP}, 1")
            a(f"s_add_u32 s{sT0}, s{sT0}, s{sCG}")
            a(f"s_lshl_b32 s{sT0}, s{sT0}, 2")
            a(f"s_add_u32 s{sT0}, s{sT0}, {WS_FLKV}")
            a(f"v_mov_b32 v{TMP+8}, s{sTag}")
            i = gq.q.index('st')
            a(f"s_waitcnt vmcnt({len(gq.q) - 1 - i})")
            a(f"s_mov_b64 exec, 0xff")
            a(f"buffer_store_dword v{TMP+8}, v{vRep}, s[{SWS}:{SWS+3}], s{sT0} offen sc1")
            a(f"s_mov_b64 exec, -1")
            stamp(3)
            a.label(lbl)
        vKF = 232
        a(f"v_lshlrev_b32 v234, 3, v{L}")
        a(f"s_add_u32 s{sOff}, s{sRep}, {WS_FLKV}")
        a(f"s_mov_b32 s{sFlag}, 0")
        def kvcheck():
            lbl = a.newlabel(f"{name}_kc")
            a(f"v_cmp_ne_u32 vcc, s{sTag}, v{vKF}")
            a(f"v_cmp_ne_u32 s[92:93], s{sTag}, v{vKF+1}")
            a("s_nop 1")
            a("s_or_b64 vcc, vcc, s[92:93]")
            a(f"s_cbranch_vccnz {lbl}")
            a(f"ds_write_b32 v{vFl}, v{vOne} offset:{F_KVR}")
            a(f"s_mov_b32 s{sFlag}, 1")
            a.label(lbl)
        def kvdma(q, r, tag):
            a(f"s_add_u32 m0, s{sA}, {r*4096}")
            a(f"s_add_u32 s{sT2}, s{sB}, {r*4096}")
            a(f"buffer_load_dwordx4 v{vL16}, s[{SKV}:{SKV+3}], s{sT2} offen sc1 lds"); q.issue(tag)
        def kv_poll():
            if not phase0:
                a("s_barrier"); return
            lbl = a.newlabel(f"{name}_kp")
            a(f"s_cmp_lg_u32 s{sGw}, 1")
            a(f"s_cbranch_scc1 {lbl}_d")
            a.label(lbl)
            a(f"s_cmp_lg_u32 s{sFlag}, 0")
            a(f"s_cbranch_scc1 {lbl}_d")
            a(f"buffer_load_dwordx2 {P(vKF)}, v234, s[{SWS}:{SWS+3}], s{sOff} offen sc1")
            a("s_waitcnt vmcnt(0)")
            kvcheck()
            a("s_sleep 2")
            bounded(lbl)
            a.label(lbl + "_d")
            stamp(5)
        def kv_p12(q):
            for r in range(8): kvdma(q, r, 'p1' if r < 3 else 'p2')
        def kv_p3(q):
            for r in range(8, 17): kvdma(q, r, 'p3')
            a(f"s_cmp_eq_u32 s{sGw}, 3")
            a(f"s_cselect_b32 exec_lo, 0xffffff, -1")
            a(f"s_cselect_b32 exec_hi, 0, -1")
            kvdma(q, 17, 'p3')
            a("s_mov_b64 exec, -1")

        for c in range(1, 10):
            if c == 2: kvflag()
            gq.wait(a, ('wq', c))
            if c == 8:
                a(f"s_cmp_lg_u32 s{sGw}, 1")
                a(f"s_cbranch_scc1 {name}_kc7")
                gq.copy().wait(a, 'kf'); kvcheck(); a("s_waitcnt lgkmcnt(0)")
                a.label(f"{name}_kc7")
            a("s_barrier")
            if c + 3 < 10: wq_dma(c+3)
            if c == 6:
                a(f"s_cmp_eq_u32 s{sGw}, 1")
                a(f"s_cselect_b32 exec_lo, -1, 1")
                a(f"s_cselect_b32 exec_hi, -1, 0")
                a(f"buffer_load_dwordx2 {P(vKF)}, v234, s[{SWS}:{SWS+3}], s{sOff} offen sc1"); gq.issue('kf')
                a("s_mov_b64 exec, -1")
        a(f"ds_read_b32 v{vCnt}, v{vFl} offset:{F_KVR}")
        a(f"s_lshl_b32 s{sA}, s{sGw}, 10")
        a(f"s_add_u32 s{sB}, s{sA}, {WS_KV + 2*DUO}")
        a("s_waitcnt lgkmcnt(0)")
        a(f"v_readfirstlane_b32 s{sFlag}, v{vCnt}")
        a(f"s_cmp_eq_u32 s{sFlag}, 0")
        a(f"s_cbranch_scc1 {name}_np")
        kv_p12(gq)
        a.label(f"{name}_np")
        a("s_barrier")
        stamp(4)
        a(f"s_cmp_lg_u32 s{sFlag}, 0")
        a(f"s_cbranch_scc1 {name}_np2")
        kv_poll()
        spin(F_KVR, 1, tmp=vCnt)
        gq.q = [x for x in gq.q if x not in ('p1', 'p2')]
        kv_p12(gq)
        a.label(f"{name}_np2")

    else:
        a(f"s_mov_b32 s{sTag}, 1")
        for c in range(4): touch(gq, c, vTch)
    srd(a, SA, 72, D*F*2)
    srd(a, SB, 74, D*F*2)
    vXD4 = [245, 246, 253, 254]; vWD2 = 255
    a(f"v_add_u32 v253, {16*1280 - 2048}, v245")
    a(f"v_add_u32 v254, {16*1280 - 2048 - 1024}, v246")
    a(f"v_subrev_u32 v246, 1024, v246")
    a(f"s_sub_u32 s{SB}, s{SB}, 1024")
    a(f"s_subb_u32 s{SB+1}, s{SB+1}, 0")
    a(f"s_add_u32 s{SB+2}, s{SB+2}, 1024")
    a(f"v_mov_b32 v{vWD2}, v{vWD}")

    def xdma(q, c, j):
        if j % 4 == 0:
            a(f"s_add_u32 m0, s{sM0x}, {(c&1)*32768 + j*1024}")
            a(f"s_add_u32 s{sT3}, s{sXoff}, {c*128 + (j>>2)*32*1280}")
        a(f"buffer_load_dwordx4 v{vXD4[j&3]}, s[{SX}:{SX+3}], s{sT3} offen offset:{(j&3)*1024} lds"); q.issue(('x', c))
    def wdma(q, u):
        a(f"s_add_u32 m0, s{sM0w}, {(u%3)*8192}")
        a(f"s_add_u32 s{sT0}, s{sWoff}, {u*32*F*2}")
        a(f"buffer_load_dwordx4 v{vWD}, s[{SA}:{SA+3}], s{sT0} offen lds"); q.issue(('w', u))
        a(f"buffer_load_dwordx4 v{vWD2}, s[{SB}:{SB+3}], s{sT0} offen offset:1024 lds"); q.issue(('w', u))
    a(f"s_cmp_ge_u32 s{sCT}, 27")
    a(f"s_cbranch_scc1 {name}_R")
    q = gq.copy()
    FX = lambda b, t: 24 + 16*b + 4*t
    FW = lambda b, s01, p: 56 + 16*b + 8*s01 + 4*p
    ACC = lambda p, t: 96 + (4*p + t)*16
    wdma(q, 0)
    for j in range(8): xdma(q, 0, j)
    wdma(q, 1)
    q.wait(a, 'p1'); signal(F_P1, vOne)
    q.wait(a, 'p2'); signal(F_P2, vOne)
    stamp(5)
    kv_p3(q)
    sig = {'p3': F_P3, 'p4': F_P4}
    issued = set()
    def maybe_signal():
        for tg in list(sig):
            if tg in q.q: issued.add(tg)
            if tg in issued and tg not in q.q:
                signal(sig.pop(tg), vOne)
    def xreads(gs):
        c, s_ = divmod(gs, 4)
        return [f"ds_read_b128 {R(FX(gs&1,t),4)}, v{vXA[s_]} offset:{(c&1)*32768 + t*4096}" for t in range(4)]
    def wreads(u):
        return [f"ds_read_b64_tr_b16 {P(FW(u&1,s01,p)+2*e)}, v{vWA} offset:{(u%3)*8192 + p*1024 + s01*4096 + e*512}" for s01 in range(2) for p in range(2) for e in range(2)]
    def mf(gs):
        u = gs >> 1
        o = []
        for t in range(4):
            for p in range(2):
                C = R(ACC(p,t),16) if gs else "0"
                o.append(f"v_mfma_f32_32x32x16_bf16 {R(ACC(p,t),16)}, {R(FW(u&1,gs&1,p),4)}, {R(FX(gs&1,t),4)}, {C}")
        return o
    def arrive(u):
        maybe_signal()
        if u == 20: q.wait(a, 'p4')
        tags = [('w', u)] + ([('x', u//2)] if u % 2 == 0 else [])
        tags = [t for t in tags if t in q.q]
        if tags:
            last = max(tags, key=lambda t: max(i for i, x in enumerate(q.q) if x == t))
            q.wait(a, last)
        maybe_signal()
        signal(F_G1, vOne)
        a(f"ds_read_b32 v{vCnt}, v{vFl} offset:{F_G1}")
    def check(u):
        lbl = a.newlabel(f"{name}_ck")
        a("s_waitcnt lgkmcnt(0)")
        a(f"v_readfirstlane_b32 s{sT0}, v{vCnt}")
        a(f"s_cmp_ge_u32 s{sT0}, {4*(u+1)}")
        a(f"s_cbranch_scc1 {lbl}")
        spin(F_G1, 4*(u+1), tmp=vCnt)
        a.label(lbl)
    pend = []
    def after_sync(u):
        nonlocal pend
        if u + 2 < 20: pend += [lambda: wdma(q, u+2)]
        if u % 2 == 0 and u//2 + 1 < 10:
            pend += [(lambda g=g: [xdma(q, u//2 + 1, j) for j in range(4*g, 4*g+4)]) for g in range(2)]
    if g1prio: a(f"s_setprio {g1prio}")
    arrive(0); check(0)
    stamp(7)
    for r in wreads(0)[:4] + xreads(0): a(r)
    after_sync(0)
    for _ in range(2): pend.pop(0)()
    for gs in range(40):
        M = mf(gs)
        dbg = (32 <= gs < 36)
        a("s_waitcnt lgkmcnt(0)")
        if dbg: stamp(44 + 4*(gs-32))
        if gs % 2 == 0:
            u = gs // 2
            Rr = wreads(u)[4:] + xreads(gs+1)
            for mi, m in enumerate(M):
                a(m)
                a(Rr[mi])
                if mi % 2 == 1 and pend and mi < 7: pend.pop(0)()
        else:
            u = (gs + 1) // 2
            if u % 2 == 0:
                while pend: pend.pop(0)()
            if u % 2 == 0 and u < 20: stamp(20 + u//2)
            if g1prio and u == 2*g1hi: a("s_setprio 0")
            arrive(u)
            if dbg: stamp(45 + 4*(gs-32))
            early = xreads(gs+1) if (u % 2 == 1) else []
            for mi, m in enumerate(M[:4]):
                a(m)
                if pend: pend.pop(0)()
            if dbg: stamp(46 + 4*(gs-32))
            check(u)
            if dbg: stamp(47 + 4*(gs-32))
            if gs == 39:
                stamp(8)
                pend = [(lambda r=r: kvdma(q, r, 'p5')) for r in range(25, 39)]
                Rr = []
            else:
                Rr = wreads(u)[:4] + xreads(gs+1)
                after_sync(u)
                if u == 18:
                    pend += [(lambda r=r: kvdma(q, r, 'p4')) for r in range(17, 25)]
            for mi, m in enumerate(M[4:]):
                a(m)
                for r in Rr[2*mi:2*mi+2]: a(r)
    stamp(9)
    if gm >= 1:
        while pend: pend.pop(0)()
    a(f"s_setprio {gprio}")
    c0 = -2.0*math.sqrt(2.0/math.pi)*math.log2(math.e); c1 = c0*0.044715
    vC0 = 248; vC1 = 250; vOn2 = 252
    for r, val in ((vC0, c0), (vC1, c1), (vOn2, 1.0)):
        a(f"v_mov_b32 v{r}, {f2u(val):#x}"); a(f"v_mov_b32 v{r+1}, {f2u(val):#x}")
    a(f"s_lshl_b32 s{sT0}, s{sRB}, 3")
    a(f"s_lshr_b32 s{sT1}, s{sGw}, 1")
    a(f"s_lshl_b32 s{sT1}, s{sT1}, 2")
    a(f"s_add_u32 s{sT0}, s{sT0}, s{sT1}")
    a(f"s_mul_i32 s{sT0}, s{sT0}, 108")
    a(f"s_lshl_b32 s{sT1}, s{sCT}, 2")
    a(f"s_add_u32 s{sT0}, s{sT0}, s{sT1}")
    a(f"s_and_b32 s{sT1}, s{sGw}, 1")
    a(f"s_lshl_b32 s{sT1}, s{sT1}, 1")
    a(f"s_add_u32 s{sT0}, s{sT0}, s{sT1}")
    a(f"s_lshl_b32 s{sT0}, s{sT0}, 10")
    a(f"s_add_u32 s{sT3}, s{sT0}, {WS_H}")
    for t in range(4):
        G_ = ACC(0,t); U_ = ACC(1,t); T = 224
        for j in range(8): a(f"v_pk_mul_f32 {P(T+2*j)}, {P(G_+2*j)}, {P(G_+2*j)}")
        for j in range(8): a(f"v_pk_fma_f32 {P(T+2*j)}, {P(T+2*j)}, {P(vC1)}, {P(vC0)}")
        for j in range(8): a(f"v_pk_mul_f32 {P(T+2*j)}, {P(T+2*j)}, {P(G_+2*j)}")
        for j in range(16):
            a(f"v_exp_f32 v{T+j}, v{T+j}")
            if j % 2 == 1: a(f"v_pk_mul_f32 {P(U_+j-1)}, {P(U_+j-1)}, {P(G_+j-1)}")
            if j % 4 == 3 and pend: pend.pop(0)()
        for j in range(8): a(f"v_pk_add_f32 {P(T+2*j)}, {P(T+2*j)}, {P(vOn2)}")
        for j in range(16):
            a(f"v_rcp_f32 v{T+j}, v{T+j}")
            if j % 4 == 3 and pend: pend.pop(0)()
        for j in range(8): a(f"v_pk_mul_f32 {P(U_+2*j)}, {P(U_+2*j)}, {P(T+2*j)}")
        for j in range(8): a(f"v_cvt_pk_bf16_f32 v{G_+j}, v{U_+2*j}, v{U_+2*j+1}")
        for m in range(2):
            a(f"buffer_store_dwordx4 {R(G_+4*m,4)}, v{vL16}, s[{SWS}:{SWS+3}], s{sT3} offen offset:{m*1024} sc1"); q.issue('h')
        if t < 3: a(f"s_add_u32 s{sT3}, s{sT3}, {108*1024}")
        if t == 2:
            assert not pend
            q.wait(a, 'p5'); signal(F_P5, vOne)
    a("s_setprio 0")
    stamp(10)
    a(f"s_branch {name}_pubh")

    a.label(f"{name}_R")
    q = gq.copy()
    if phase0:
        sU = 90; sNK = 91; sDst = 98; sK16 = 99; sGrp = 100
        a(f"s_mul_i32 s{sCnt}, s{sRB}, 5")
        a(f"s_add_u32 s{sCnt}, s{sCnt}, s{sCT}")
        a(f"s_sub_u32 s{sCnt}, s{sCnt}, 27")
        a(f"s_lshl_b32 s{sCnt}, s{sCnt}, 2")
        a(f"s_add_u32 s{sCnt}, s{sCnt}, s{sGw}")
        a(f"s_mul_i32 s{sCnt}, s{sCnt}, 10")
        a(f"s_mul_i32 s101, s{sGw}, 20480")
        def unit(i):
            a(f"s_add_u32 s{sU}, s{sCnt}, {i}")
            a(f"s_min_u32 s{sU}, s{sU}, 1479")
            a(f"s_cmp_ge_u32 s{sU}, 1080")
            a(f"s_cselect_b32 s{SR}, s68, s76")
            a(f"s_cselect_b32 s{SR+1}, s69, s77")
            a(f"s_mov_b32 s{SR+2}, {F*D*2}")
            a(f"s_cselect_b32 s{SR+2}, {D*D*2}, s{SR+2}")
            a(f"s_cselect_b32 s{sNK}, 40, 108")
            a(f"s_mov_b32 s{sDst}, {WS_WD}")
            a(f"s_cselect_b32 s{sDst}, {WS_WO}, s{sDst}")
            a(f"s_cselect_b32 s{sT0}, 1080, 0")
            a(f"s_and_b32 s{SR+1}, s{SR+1}, 0xffff")
            a(f"s_mov_b32 s{SR+3}, 0x20000")
            a(f"s_sub_u32 s{sU}, s{sU}, s{sT0}")
            a(f"s_mul_hi_u32 s{sK16}, s{sU}, {(2**32+9)//10}")
            a(f"s_mul_i32 s{sT0}, s{sK16}, 10")
            a(f"s_sub_u32 s{sGrp}, s{sU}, s{sT0}")
    q.wait(a, 'p1'); signal(F_P1, vOne)
    q.wait(a, 'p2'); signal(F_P2, vOne)
    kv_p3(q)
    if phase0:
        for i in range(10):
            unit(i)
            a(f"s_mul_hi_u32 s{sT1}, s{sK16}, {(2**32+4)//5}")
            a(f"s_mul_i32 s{sT2}, s{sT1}, 5")
            a(f"s_sub_u32 s{sT2}, s{sK16}, s{sT2}")
            a(f"s_mul_i32 s{sT1}, s{sT1}, 80")
            a(f"s_mul_i32 s{sT3}, s{sT2}, 20")
            a(f"s_cmp_eq_u32 s{sT2}, 4")
            a(f"s_cselect_b32 s{sT3}, 16, s{sT3}")
            a(f"s_cselect_b32 s{sT2}, 1, 0")
            a(f"s_add_u32 s{sT1}, s{sT1}, s{sT3}")
            a(f"s_lshl_b32 s{sT0}, s{sK16}, 4")
            a(f"s_cmp_eq_u32 s{sNK}, 40")
            a(f"s_cselect_b32 s{sT0}, s{sT1}, s{sT0}")
            a(f"s_cselect_b32 s{sT2}, s{sT2}, 0")
            a(f"s_mul_i32 s{sT0}, s{sT0}, 1280")
            a(f"s_lshl_b32 s{sT1}, s{sGrp}, 7")
            a(f"s_add_u32 s{sT0}, s{sT0}, s{sT1}")
            a(f"s_cmp_eq_u32 s{sT2}, 1")
            a(f"s_cselect_b64 s[92:93], -1, 0")
            a(f"s_mov_b32 s{sT1}, {8*1280}")
            a(f"s_cselect_b32 s{sT1}, {20*1280}, s{sT1}")
            a(f"v_cndmask_b32 v252, v{vRD}, v251, s[92:93]")
            a(f"s_add_u32 m0, s101, {LG + i*2048}")
            a(f"s_add_u32 s{sT1}, s{sT0}, s{sT1}")
            a(f"buffer_load_dwordx4 v252, s[{SR}:{SR+3}], s{sT0} offen lds"); q.issue(('r', i))
            a(f"s_add_u32 m0, s101, {LG + i*2048 + 1024}")
            a("s_nop 0")
            a(f"buffer_load_dwordx4 v252, s[{SR}:{SR+3}], s{sT1} offen lds"); q.issue(('r', i))
        q.wait(a, 'p3'); signal(F_P3, vOne)
        for i in range(10):
            q.wait(a, ('r', i))
            for c in range(2):
                for e in range(2):
                    a(f"ds_read_b64_tr_b16 {P(96+8*i+4*c+2*e)}, v{vRA[c]} offset:{i*2048 + 8*e*128}")
            unit(i)
            a("s_waitcnt lgkmcnt(0)")
            for c in range(2):
                a(f"s_lshl_b32 s{sT0}, s{sGrp}, 1")
                if c: a(f"s_add_u32 s{sT0}, s{sT0}, 1")
                a(f"s_mul_hi_u32 s{sT1}, s{sT0}, {(2**32+4)//5}")
                a(f"s_mul_i32 s{sT2}, s{sT1}, 5")
                a(f"s_sub_u32 s{sT2}, s{sT0}, s{sT2}")
                a(f"s_mul_i32 s{sT1}, s{sT1}, s{sNK}")
                a(f"s_add_u32 s{sT1}, s{sT1}, s{sK16}")
                a(f"s_mul_i32 s{sT1}, s{sT1}, 5120")
                a(f"s_lshl_b32 s{sT2}, s{sT2}, 10")
                a(f"s_add_u32 s{sT1}, s{sT1}, s{sT2}")
                a(f"s_add_u32 s{sT1}, s{sT1}, s{sDst}")
                a(f"buffer_store_dwordx4 {R(96+8*i+4*c,4)}, v{vL16}, s[{SWS}:{SWS+3}], s{sT1} offen sc1"); q.issue('h')
        signal(F_G1, vOne)
        spin(F_G1, 4, tmp=vCnt)
    for r in range(17, 39): kvdma(q, r, 'p4')
    q.wait(a, 'p4'); signal(F_P4, vOne); signal(F_P5, vOne)

    a.label(f"{name}_pubh")
    a(f"s_mul_i32 s{sT0}, s{sGw}, 27")
    a(f"s_lshr_b32 s{sT0}, s{sT0}, 2")
    a(f"v_and_b32 v{t1}, 7, v{L}")
    a(f"v_add_u32 v{t1}, s{sT0}, v{t1}")
    a(f"v_min_u32 v{t1}, 26, v{t1}")
    a(f"v_lshlrev_b32 v{t2}, 2, v{t1}")
    a(f"s_lshr_b32 s{sT1}, s{sP}, 3")
    a(f"s_lshl_b32 s{sT1}, s{sT1}, 7")
    a(f"s_add_u32 s{sT1}, s{sT1}, s{sRep}")
    a(f"s_add_u32 s{sT1}, s{sT1}, {WS_FLH}")
    a(f"v_min_u32 v{t4}, 39, v{L}")
    a(f"v_lshlrev_b32 v{t4}, 2, v{t4}")
    a(f"s_add_u32 s{sT2}, s{sRep}, {WS_FLR}")
    a(f"s_mul_i32 s{sT0}, s{sGw}, 27")
    a(f"s_mul_i32 s{sB}, s{sP}, 108")
    a(f"s_add_u32 s{sB}, s{sB}, s{sT0}")
    a(f"s_lshl_b32 s{sB}, s{sB}, 10")
    a(f"s_add_u32 s{sB}, s{sB}, {WS_H}")
    a(f"s_mul_i32 s{sA}, s{sCG}, 108")
    a(f"s_add_u32 s{sA}, s{sA}, s{sT0}")
    a(f"s_mul_i32 s{sA}, s{sA}, 5120")
    a(f"s_add_u32 s{sA}, s{sA}, {WS_WD}")
    q = VMQ()
    FB = lambda b: [16, 40, 64, 176, 200, 224][b]
    AC = lambda i: 96 + 16*i
    def poll(lb, va, so, keep):
        a.label(lb)
        a(f"buffer_load_dword v{t3}, v{va}, s[{SWS}:{SWS+3}], s{so} offen sc1")
        a("s_waitcnt vmcnt(0)")
        a(f"v_cmp_ne_u32 vcc, s{sTag}, v{t3}")
        a("s_nop 4")
        a(f"s_cbranch_vccz {lb}d")
        a("s_sleep 6")
        bounded(lb)
        a.label(lb + "d")
    def wl(s_):
        b = FB(s_ % g2depth)
        for i in range(4):
            a(f"buffer_load_dwordx4 {R(b+4+4*i,4)}, v{vL16}, s[{SWS}:{SWS+3}], s{sA} offen offset:{1024*i} sc1"); q.issue(s_)
        a(f"s_add_u32 s{sT0}, s{sA}, 4096")
        a(f"buffer_load_dwordx4 {R(b+20,4)}, v{vL16}, s[{SWS}:{SWS+3}], s{sT0} offen sc1"); q.issue(s_)
        a(f"s_add_u32 s{sA}, s{sA}, 5120")
    def hl(s_):
        b = FB(s_ % g2depth)
        a(f"buffer_load_dwordx4 {R(b,4)}, v{vL16}, s[{SWS}:{SWS+3}], s{sB} offen sc1"); q.issue(s_)
        a(f"s_add_u32 s{sB}, s{sB}, 1024")
    def loads(s_): hl(s_); wl(s_)
    a(f"s_mov_b32 s{sCnt}, s{sT1}")
    a(f"v_mov_b32 v{t6}, v{t2}")
    a(f"s_mov_b32 s{sOff}, s{sT2}")
    a(f"buffer_load_dword v{t3}, v{t4}, s[{SWS}:{SWS+3}], s{sOff} offen sc1")
    a("s_waitcnt vmcnt(0)")
    a("s_mov_b64 exec, 1")
    a(f"ds_add_rtn_u32 v{t1}, v{vFl}, v{vOne} offset:{F_HST}")
    a("s_mov_b64 exec, -1")
    a(f"s_lshl_b32 s{sT1}, s{sRB}, 5")
    a(f"s_add_u32 s{sT1}, s{sT1}, s{sCT}")
    a(f"s_lshl_b32 s{sT1}, s{sT1}, 2")
    a(f"s_add_u32 s{sT1}, s{sT1}, {WS_FLH}")
    a(f"s_mul_i32 s{sT2}, s{sRB}, 5")
    a(f"s_add_u32 s{sT2}, s{sT2}, s{sCT}")
    a(f"s_lshl_b32 s{sT2}, s{sT2}, 2")
    a(f"s_add_u32 s{sT2}, s{sT2}, {WS_FLR - 27*4}")
    a(f"s_cmp_ge_u32 s{sCT}, 27")
    a(f"s_cselect_b32 s{sT1}, s{sT2}, s{sT1}")
    a(f"v_mov_b32 v{t2}, s{sTag}")
    a("s_waitcnt lgkmcnt(0)")
    a(f"v_readfirstlane_b32 s{sT0}, v{t1}")
    a(f"s_cmp_lg_u32 s{sT0}, 3")
    a(f"s_cbranch_scc1 {name}_ph1")
    a("s_mov_b64 exec, 0xff")
    a(f"buffer_store_dword v{t2}, v{vRep}, s[{SWS}:{SWS+3}], s{sT1} offen sc1")
    a("s_mov_b64 exec, -1")
    a.label(f"{name}_ph1")
    stamp(11)
    a(f"v_cmp_ne_u32 vcc, s{sTag}, v{t3}")
    a("s_nop 4")
    a(f"s_cbranch_vccz {name}_rpd")
    poll(f"{name}_rp", t4, sOff, 0)
    a(f"s_mov_b32 s{sT1}, s{sCnt}")
    a(f"v_mov_b32 v{t2}, v{t6}")
    a(f"v_lshlrev_b32 v{t1}, 2, v{vPos}")
    a(f"s_lshl_b32 s{sT2}, s{sP}, 7")
    a(f"s_add_u32 s{sT2}, s{sT2}, {WS_G}")
    a(f"buffer_load_dword v{vG}, v{t1}, s[{SWS}:{SWS+3}], s{sT2} offen sc1")
    for s_ in range(g2depth): wl(s_)
    sA3 = 90; sB3 = 91
    a(f"s_mul_i32 s{sT0}, s{sGw}, 10")
    a(f"s_mul_i32 s{sA3}, s{sCG}, 40")
    a(f"s_add_u32 s{sA3}, s{sA3}, s{sT0}")
    a(f"s_mul_i32 s{sA3}, s{sA3}, 5120")
    a(f"s_add_u32 s{sA3}, s{sA3}, {WS_WO}")
    a(f"s_mul_i32 s{sB3}, s{sP}, 40")
    a(f"s_add_u32 s{sB3}, s{sB3}, s{sT0}")
    a(f"s_lshl_b32 s{sB3}, s{sB3}, 10")
    a(f"s_add_u32 s{sB3}, s{sB3}, {WS_O}")
    progress_wait(8*2*DUO, t1, t5, t3, 8)
    a(f"s_mul_i32 s{sT2}, s{sGw}, 20480")
    for k in range(5):
        a(f"s_add_u32 m0, s{sT2}, {4096*k}")
        a(f"s_add_u32 s{sT0}, s{sA3}, {6*5120 + 4096*k}")
        for j in range(4):
            a(f"buffer_load_dwordx4 v{vL16}, s[{SWS}:{SWS+3}], s{sT0} offen offset:{1024*j} sc1 lds")
    a(f"v_add_u32 v{t4}, s{sT2}, v{vL16}")
    poll(f"{name}_hp", t2, sT1, 0)
    stamp(12)
    q.q = []
    for s_ in range(g2depth): hl(s_)
    B3 = lambda i: FB((21 + i) % 6)
    def wo_load(i):
        b = B3(i)
        for k in range(4):
            a(f"buffer_load_dwordx4 {R(b+4+4*k,4)}, v{vL16}, s[{SWS}:{SWS+3}], s{sA3} offen offset:{1024*k} sc1"); q.issue('wo')
        a(f"s_add_u32 s{sT0}, s{sA3}, 4096")
        a(f"buffer_load_dwordx4 {R(b+20,4)}, v{vL16}, s[{SWS}:{SWS+3}], s{sT0} offen sc1"); q.issue('wo')
        a(f"s_add_u32 s{sA3}, s{sA3}, 5120")
    assert g2depth == 6
    for s_ in range(27):
        q.wait(a, s_)
        b = FB(s_ % g2depth)
        for i in range(5):
            C = R(AC(i),16) if s_ > 0 else "0"
            a(f"v_mfma_f32_32x32x16_bf16 {R(AC(i),16)}, {R(b+4+4*i,4)}, {R(b,4)}, {C}")
        if s_ + g2depth < 27: loads(s_+g2depth)
        else: wo_load(s_ - 21)
    stamp(13)
    if STAMP: a(f"v_mov_b32 v14, v{vST}")
    a("s_setprio 3")
    a(f"v_sub_f32 v{vG}, 1.0, v{vG}")
    a(f"v_mov_b32 v{vG+1}, v{vG}")
    for r in range(96, 176, 2): a(f"v_pk_mul_f32 {R(r,2)}, {R(r,2)}, {R(vG,2)}")
    progress_wait(14*2*DUO, t1, t2, t3, 8)
    a(f"s_andn2_b32 s{sT1}, s2, 0x18")
    a(f"s_lshl_b32 s{sT0}, s{sGw}, 3")
    a(f"s_or_b32 s{sT1}, s{sT1}, s{sT0}")
    a(f"s_lshl_b32 s{sT1}, s{sT1}, 7")
    a(f"s_add_u32 s{sT1}, s{sT1}, {WS_FLAG}")
    a(f"v_and_b32 v{t1}, 3, v{L}")
    a(f"v_lshlrev_b32 v{t1}, 2, v{t1}")
    a("s_waitcnt vmcnt(0)"); q.q = []
    stamp(14, 14)
    a.label(f"{name}_g5")
    a(f"buffer_load_dword v{t2}, v{t1}, s[{SWS}:{SWS+3}], s{sT1} offen sc1")
    a("s_waitcnt vmcnt(0)")
    a(f"v_cmp_ne_u32 vcc, s{sTag}, v{t2}")
    a("s_nop 4")
    a(f"s_cbranch_vccz {name}_g5d")
    a("s_sleep 1")
    bounded(f"{name}_g5")
    a.label(f"{name}_g5d")
    a(f"s_add_u32 s{sT1}, s{sB3}, 4096")
    a(f"s_add_u32 s{sT2}, s{sB3}, 8192")
    OR = lambda i: B3(i) if i < 6 else [248, 252, 88, 92][i-6]
    for s_ in range(10):
        a(f"buffer_load_dwordx4 {R(OR(s_),4)}, v{vL16}, s[{SWS}:{SWS+3}], s{(sB3,sT1,sT2)[s_//4]} offen offset:{1024*(s_%4)} sc1"); q.issue(('o', s_))
    stamp(15, 14)
    for s_ in range(10):
        q.wait(a, ('o', s_))
        if s_ >= 6: a(f"s_waitcnt lgkmcnt({5*(9-s_) if 5*(9-s_) <= 15 else 15})")
        b = B3(s_ % 6)
        for i in range(5):
            a(f"v_mfma_f32_32x32x16_bf16 {R(AC(i),16)}, {R(b+4+4*i,4)}, {R(OR(s_),4)}, {R(AC(i),16)}")
        if s_ < 4:
            for k in range(5): a(f"ds_read_b128 {R(b+4+4*k,4)}, v{t4} offset:{s_*5120 + k*1024}")
    if STAMP: a(f"v_mov_b32 v{vST}, v14")
    stamp(16)
    a(f"v_mov_b32 v{vFl}, {L_FLAG}")
    a(f"v_mov_b32 v{vOne}, 1")
    a(f"v_mul_u32_u24 v{t3}, 1280, v{vPos}")
    a(f"v_lshrrev_b32 v{t5}, 5, v{L}")
    a(f"v_lshl_add_u32 v{t3}, v{t5}, 3, v{t3}")
    a(f"s_mul_i32 s{sT1}, s{sP}, {32*1280}")
    a(f"s_mul_i32 s{sT2}, s{sCG}, 320")
    a(f"s_add_u32 s{sT1}, s{sT1}, s{sT2}")
    a(f"s_mul_i32 s{sT2}, s{sGw}, 80")
    a(f"s_add_u32 s{sT1}, s{sT1}, s{sT2}")
    a(f"v_add_u32 v{t6}, 40960, v{vL16}")
    for w in range(1, 4):
        a(f"s_cmp_eq_u32 s{sGw}, {w}")
        a(f"s_cbranch_scc1 {name}_rd{w}")
    for w in range(4):
        if w: a.label(f"{name}_rd{w}"); a("s_nop 4")
        for gi in range(20):
            if gi // 5 != w: a(f"ds_write_b128 v{t4}, {R(96+4*gi,4)} offset:{1024*gi}")
        a("s_waitcnt lgkmcnt(0)")
        signal(F_RED, vOne)
        spin(F_RED, 4)
        k = 0
        for src in range(4):
            if src == w: continue
            for gi in range(5):
                a(f"ds_read_b128 {R(176+20*k+4*gi,4)}, v{vL16 if src < 2 else t6} offset:{(src&1)*20480 + 1024*(5*w+gi)}")
            k += 1
        own = 96 + 20*w
        a("s_waitcnt lgkmcnt(5)")
        for r in range(0, 20, 2): a(f"v_pk_add_f32 {P(176+r)}, {P(176+r)}, {P(196+r)}")
        a("s_waitcnt lgkmcnt(0)")
        for r in range(0, 20, 2): a(f"v_pk_add_f32 {P(own+r)}, {P(own+r)}, {P(216+r)}")
        for r in range(0, 20, 2): a(f"v_pk_add_f32 {P(own+r)}, {P(own+r)}, {P(176+r)}")
        for r in range(10): a(f"v_cvt_pk_bf16_f32 v{16+r}, v{own+2*r}, v{own+2*r+1}")
        for gi in range(5):
            a(f"buffer_store_dwordx2 {P(16+2*gi)}, v{t3}, s[{SO}:{SO+3}], s{sT1} offen offset:{16*gi}")
        if w < 3: a(f"s_branch {name}_rde")
    a.label(f"{name}_rde")
    stamp_out()
```

```python
import sys
sys.path.insert(0,'gen')
import build, k1, os
if os.environ.get('KH'): import kh as kf
else: import kf
from functools import partial
mode = sys.argv[1]; out = sys.argv[2]
kf.STAMP = 'S' in mode
opts = eval("dict(%s)" % (sys.argv[3] if len(sys.argv) > 3 else ""))
k1.SKIP_H = True
if '1' in mode: build.build([k1.gen_k1, partial(kf.gen_kf, phase0=False, **opts)], out)
else: build.build([partial(kf.gen_kf, phase0=True, **opts)], out)
```
